```python
import torch

def _softmax(x, axis=-1):
    return torch.softmax(x, dim=axis)
def _gelu(x):
    return torch.nn.functional.gelu(x, approximate="tanh")
def _silu(x):
    return torch.nn.functional.silu(x)
def _sigmoid(x):
    return torch.sigmoid(x)
def _layernorm(x, axis=-1, eps=1e-5):
    m = x.mean(dim=axis, keepdim=True)
    v = x.var(dim=axis, keepdim=True, unbiased=False)
    return (x - m) / torch.sqrt(v + eps)
def _scatter_add(tgt, idx, src, axis=0):
    return tgt.clone().index_add_(axis, idx, src)
def _segment_sum(src, seg, n):
    out = torch.zeros((n,) + src.shape[1:], dtype=src.dtype)
    return out.index_add_(0, seg, src)
def _pad(x, pw):
    flat = tuple(v for pair in reversed(pw) for v in pair)
    return torch.nn.functional.pad(x, flat)

kernel_name = 'sequential_preLN__ssm_conv_s4d__glu_gated_glu__prompt'

def setup_inputs():

    _w = (lambda a: (lambda t: t.to(torch.bfloat16) if t.is_floating_point() else t)(torch.as_tensor(a)))
    def _A_setup():
        Bsz, L, D, N = 1, 2048, 512, 128
        return {
            "u": _w((lambda *s: torch.randn(*s, dtype=torch.bfloat16) * 0.05)(Bsz, L, D)),
            "log_A_real": _w((lambda *s: torch.randn(*s, dtype=torch.bfloat16) * 6.4)(D, N) * 0.5),
            "A_imag": _w((lambda *s: torch.randn(*s, dtype=torch.bfloat16) * 0.05)(D, N) * 3.14),
            "C_real": _w((lambda *s: torch.randn(*s, dtype=torch.bfloat16) * 0.05)(D, N) / N ** 0.5),
            "C_imag": _w((lambda *s: torch.randn(*s, dtype=torch.bfloat16) * 0.05)(D, N) / N ** 0.5),
            "log_dt": _w((lambda *s: torch.randn(*s, dtype=torch.bfloat16) * 0.05)(D) * 0.5 - 4.0),
            "D_skip": _w((lambda *s: torch.randn(*s, dtype=torch.bfloat16) * 0.05)(D)),
        }
    _A_in = _A_setup()

    def _B_setup():
        B, S, D, F = 1, 2048, 512, 1792
        return {
            "x": _w((lambda *s: torch.randn(*s, dtype=torch.bfloat16) * 0.05)(B, S, D)),
            "w_gate": _w((lambda *s: torch.randn(*s, dtype=torch.bfloat16) * 0.05)(D, F)),
            "w_up": _w((lambda *s: torch.randn(*s, dtype=torch.bfloat16) * 0.05)(D, F)),
            "w_down": _w((lambda *s: torch.randn(*s, dtype=torch.bfloat16) * 0.05)(F, D)),
        }
    _B_in = _B_setup()

    return {
        "A_u": _A_in["u"],
        "A_log_A_real": _A_in["log_A_real"],
        "A_A_imag": _A_in["A_imag"],
        "A_C_real": _A_in["C_real"],
        "A_C_imag": _A_in["C_imag"],
        "A_log_dt": _A_in["log_dt"],
        "A_D_skip": _A_in["D_skip"],
        "B_x": _B_in["x"],
        "B_w_gate": _B_in["w_gate"],
        "B_w_up": _B_in["w_up"],
        "B_w_down": _B_in["w_down"],
    }

def reference(A_u, A_log_A_real, A_A_imag, A_C_real, A_C_imag, A_log_dt, A_D_skip, B_x, B_w_gate, B_w_up, B_w_down):
    def _A_ref(u, log_A_real, A_imag, C_real, C_imag, log_dt, D_skip):
        L = u.shape[1]
        dt = torch.exp(log_dt)
        A = -torch.exp(log_A_real) + 1j * A_imag
        C = (C_real + 1j * C_imag) * dt[:, None]
        pos = (lambda x, dt: x.to(dt))(torch.arange(L), log_dt.dtype)
        P = torch.exp((A * dt[:, None])[:, :, None] * pos[None, None, :])
        K = 2.0 * torch.einsum("dn,dnl->dl", C, P).real
        L2 = 2 * L
        u_t = (lambda x, *d: x.permute(*d))(u, 0, 2, 1)
        Kf = (lambda x, *a, **k: torch.fft.rfft(x.float(), *a, **k))(K, L2)
        Uf = (lambda x, *a, **k: torch.fft.rfft(x.float(), *a, **k))(u_t, L2)
        y = (lambda x, *a, **k: torch.fft.irfft(x, *a, **k).to(torch.bfloat16))(Uf * Kf[None, :, :], L2)[:, :, :L]
        y = (lambda x, *d: x.permute(*d))(y, 0, 2, 1)
        return y + u * D_skip[None, None, :]

    def _B_ref(x, w_gate, w_up, w_down):
        g = torch.einsum("bsd,df->bsf", x, w_gate)
        u = torch.einsum("bsd,df->bsf", x, w_up)
        h = _sigmoid(g) * u
        return torch.einsum("bsf,fd->bsd", h, w_down)

    x = A_u
    h = x + _A_ref(_layernorm(x, axis=-1), A_log_A_real, A_A_imag, A_C_real, A_C_imag, A_log_dt, A_D_skip)
    h2 = h + _B_ref(_layernorm(h, axis=-1), B_w_gate, B_w_up, B_w_down)
    return h2
```

```python
import sys
sys.path.insert(0,'mb')
from asmlib import K, emit as _emit
import hazard
WS_E  = 0x000000
WS_CS = 0x400000
WS_HT = 0x500000
WS_HG = 0x800000
WS_SIZE = 0x10000000
def finish(path, kernels, verbose=True):
    for k in kernels:
        k.lines = hazard.fix(k.lines, verbose)
    _emit(path, kernels)
def srd(k, s, size):
    k(f"s_mov_b32 s{s+2}, {size:#x}\ns_mov_b32 s{s+3}, 0x20000")
def srd_off(k, s, src, off, size):
    k(f"s_add_u32 s{s}, s{src}, {off:#x}\ns_addc_u32 s{s+1}, s{src+1}, 0\ns_mov_b32 s{s+2}, {size:#x}\ns_mov_b32 s{s+3}, 0x20000")
import os
STAMP = int(os.environ.get("STAMP","0"))
WS_TS = 0x3000000
def stamp(k, i, real=False):
    if not STAMP: return
    k(f"s_{'memrealtime' if real else 'memtime'} s[{80+2*i}:{81+2*i}]")
def stamp_flush(k, kid, n, ws, wave, vt=250):
    if not STAMP: return
    k("s_waitcnt lgkmcnt(0)")
    k(f"s_lshl_b32 s76, s2, 10\ns_lshl_b32 s77, s{wave}, 6\ns_add_u32 s76, s76, s77\ns_add_u32 s76, s76, {WS_TS + kid*0x40000:#x}")
    k(f"s_add_u32 s76, s{ws}, s76\ns_addc_u32 s77, s{ws+1}, 0\ns_mov_b32 s78, 64\ns_mov_b32 s79, 0x20000")
    k(f"v_mov_b32 v{vt+1}, 0")
    for i in range(n):
        k(f"v_mov_b32 v{vt}, s{80+2*i}\nbuffer_store_dword v{vt}, v{vt+1}, s[76:79], 0 offen offset:{4*i}")
```

```python
from common import *
def gen_k1():
    k = K("k1_kernel", 256, 512, 8*2112 + 4096*2, 64)
    ROWS = 2112
    CSL = 8*ROWS
    k("""
    s_cmp_ge_u32 s2, 256
    s_cbranch_scc1 L1_end
    s_load_dwordx2 s[4:5], s[0:1], 0
    s_load_dwordx4 s[12:15], s[0:1], 64
    s_load_dwordx2 s[20:21], s[0:1], 104
    v_lshrrev_b32 v1, 6, v0
    v_and_b32 v2, 63, v0
    v_readfirstlane_b32 s3, v1
    s_cmp_ge_u32 s3, 4
    s_cbranch_scc1 L1_cs
    """)
    k("""
    s_lshl_b32 s22, s2, 13
    s_lshl_b32 s23, s3, 11
    s_add_u32 s22, s22, s23
    v_lshlrev_b32 v3, 4, v2
    s_waitcnt lgkmcnt(0)
    """)
    srd(k, 4, 2048*512*2)
    k("""
    buffer_load_dwordx4 v[8:11], v3, s[4:7], s22 offen
    buffer_load_dwordx4 v[12:15], v3, s[4:7], s22 offen offset:1024
    """)
    srd_off(k, 8, 20, WS_E, 0x400000)
    k(f"""
    v_mov_b32 v1, 0x3b000000
    s_mul_i32 s24, s3, {2*ROWS}
    v_lshlrev_b32 v4, 5, v2
    v_add_u32 v4, s24, v4
    v_bfe_u32 v5, v2, 2, 2
    v_mul_u32_u24 v5, {ROWS}, v5
    v_lshrrev_b32 v6, 4, v2
    v_lshl_add_u32 v5, v6, 5, v5
    v_and_b32 v6, 3, v2
    v_lshl_add_u32 v5, v6, 3, v5
    s_lshl_b32 s24, s3, 9
    v_add_u32 v5, s24, v5
    v_lshrrev_b32 v7, 2, v2
    v_lshlrev_b32 v7, 14, v7
    v_lshl_add_u32 v7, v6, 4, v7
    s_lshl_b32 s24, s3, 20
    s_lshl_b32 s25, s2, 6
    s_add_u32 s24, s24, s25
    """)
    for i in range(2):
        k(f"s_waitcnt vmcnt({1-i})")
        for j in range(4):
            k(f"v_lshlrev_b32 v{16+8*i+2*j}, 16, v{8+4*i+j}")
            k(f"v_and_b32 v{17+8*i+2*j}, 0xffff0000, v{8+4*i+j}")
        f = 16+8*i
        S, Q = 32+2*i, 33+2*i
        k(f"v_add_f32 v{S}, v{f}, v{f+1}\nv_mul_f32 v{Q}, v{f}, v{f}")
        k(f"v_fmac_f32 v{Q}, v{f+1}, v{f+1}")
        for j in range(2,8):
            k(f"v_add_f32 v{S}, v{S}, v{f+j}\nv_fmac_f32 v{Q}, v{f+j}, v{f+j}")
    for dpp in ("row_shr:1","row_shr:2","row_shr:4","row_shr:8"):
        for r in range(32,36):
            k(f"v_add_f32_dpp v{r}, v{r}, v{r} {dpp} row_mask:0xf bank_mask:0xf bound_ctrl:1")
    for dpp in ("row_bcast:15 row_mask:0xa","row_bcast:31 row_mask:0xc"):
        for r in range(32,36):
            k(f"v_add_f32_dpp v{r}, v{r}, v{r} {dpp} bank_mask:0xf")
    for r in range(4):
        k(f"v_readlane_b32 s{28+r}, v{32+r}, 63")
    for i in range(2):
        M, V, T = 36+3*i, 37+3*i, 38+3*i
        k(f"""
        v_mul_f32 v{M}, s{28+2*i}, v1
        v_mul_f32 v{V}, s{29+2*i}, v1
        v_fma_f32 v{V}, -v{M}, v{M}, v{V}
        v_max_f32 v{V}, 0, v{V}
        v_cvt_pk_bf16_f32 v{T}, v{M}, v{V}
        v_lshlrev_b32 v{M}, 16, v{T}
        v_and_b32 v{V}, 0xffff0000, v{T}
        v_add_f32 v{V}, 0x3727c5ac, v{V}
        v_cvt_pk_bf16_f32 v{V}, v{V}, v{V}
        v_and_b32 v{V}, 0xffff0000, v{V}
        v_sqrt_f32 v{V}, v{V}
        v_cvt_pk_bf16_f32 v{V}, v{V}, v{V}
        v_and_b32 v{V}, 0xffff0000, v{V}
        v_rcp_f32 v{V}, v{V}
        """)
    for i in range(2):
        M, V = 36+3*i, 37+3*i
        f = 16+8*i; o = 44+8*i
        for j in range(8): k(f"v_sub_f32 v{f+j}, v{f+j}, v{M}")
        for j in range(4): k(f"v_cvt_pk_bf16_f32 v{o+2*j}, v{f+2*j}, v{f+2*j+1}")
        for j in range(4):
            k(f"v_lshlrev_b32 v{f+2*j}, 16, v{o+2*j}\nv_and_b32 v{f+2*j+1}, 0xffff0000, v{o+2*j}")
        for j in range(8): k(f"v_mul_f32 v{f+j}, v{f+j}, v{V}")
        for j in range(4):
            k(f"v_cvt_pk_bf16_f32 v{o+2*j}, v{f+2*j}, v{f+2*j+1}\nv_mov_b32 v{o+2*j+1}, v{8+4*i+j}")
        k(f"ds_write_b128 v4, v[{o}:{o+3}] offset:{i*ROWS}\nds_write_b128 v4, v[{o+4}:{o+7}] offset:{i*ROWS+16}")
    k("s_waitcnt lgkmcnt(0)\ns_barrier")
    for it in range(4):
        k(f"ds_read_b64_tr_b16 v[{16+4*it}:{17+4*it}], v5 offset:{it*128}")
        k(f"ds_read_b64_tr_b16 v[{18+4*it}:{19+4*it}], v5 offset:{it*128+4*ROWS}")
    for it in range(4):
        k(f"s_waitcnt lgkmcnt({6-2*it})")
        k(f"buffer_store_dwordx4 v[{16+4*it}:{19+4*it}], v7, s[8:11], s24 offen")
        if it<3: k(f"s_add_u32 s24, s24, {16*16384}")
    k("s_endpgm")
    k(f"""
    L1_cs:
    s_cmp_ge_u32 s2, 224
    s_cbranch_scc1 L1_end
    ; kchunk = b/56 ; cc = b%56 ; mat = cc/28 ; col0 = (cc%28)*64
    s_mul_i32 s22, s2, 1171
    s_lshr_b32 s22, s22, 16
    s_mul_i32 s23, s22, 56
    s_sub_u32 s23, s2, s23           ; cc
    s_cmp_ge_u32 s23, 28
    s_cselect_b32 s25, 28, 0
    s_cselect_b32 s26, 1, 0
    s_sub_u32 s25, s23, s25          ; cc%28
    s_lshl_b32 s25, s25, 7           ; col0*2
    s_mul_i32 s24, s22, {128*3584}
    s_add_u32 s24, s24, s25          ; soffset
    v_and_b32 v3, 255, v0
    v_lshrrev_b32 v4, 3, v3          ; rg
    v_mul_u32_u24 v4, 3584, v4
    v_and_b32 v5, 7, v3
    v_lshl_add_u32 v4, v5, 4, v4
    s_waitcnt lgkmcnt(0)
    s_cmp_eq_u32 s26, 0
    s_cselect_b32 s4, s12, s14
    s_cselect_b32 s5, s13, s15
    """)
    srd(k, 4, 512*1792*2)
    for i in range(4):
        k(f"buffer_load_dwordx4 v[{8+4*i}:{11+4*i}], v4, s[4:7], s24 offen")
        if i<3: k(f"s_add_u32 s24, s24, {32*3584}")
    srd_off(k, 8, 20, WS_CS, 4*3584*4)
    k(f"""
    v_lshrrev_b32 v6, 4, v3
    v_lshlrev_b32 v6, 8, v6
    v_lshl_add_u32 v6, v5, 5, v6
    s_mul_i32 s24, s22, {3584*4}
    s_lshl_b32 s25, s23, 8
    s_add_u32 s24, s24, s25
    v_lshlrev_b32 v7, 2, v2
    """)
    for i in range(4):
        k(f"s_waitcnt vmcnt({3-i})")
        for j in range(4):
            if i==0:
                k(f"v_lshlrev_b32 v{24+2*j}, 16, v{8+j}\nv_and_b32 v{25+2*j}, 0xffff0000, v{8+j}")
            else:
                k(f"v_lshlrev_b32 v32, 16, v{8+4*i+j}\nv_and_b32 v33, 0xffff0000, v{8+4*i+j}")
                k(f"v_add_f32 v{24+2*j}, v{24+2*j}, v32\nv_add_f32 v{25+2*j}, v{25+2*j}, v33")
    for j in range(8):
        k(f"v_add_f32_dpp v{24+j}, v{24+j}, v{24+j} row_ror:8 row_mask:0xf bank_mask:0xf")
    k(f"""
    ds_write_b128 v6, v[24:27] offset:{CSL}
    ds_write_b128 v6, v[28:31] offset:{CSL+16}
    s_waitcnt lgkmcnt(0)
    s_barrier
    s_cmp_lg_u32 s3, 4
    s_cbranch_scc1 L1_end
    """)
    for p in range(16):
        k(f"ds_read_b32 v{8+p}, v7 offset:{CSL+p*256}")
    k("s_waitcnt lgkmcnt(0)")
    for st in (8,4,2,1):
        for p in range(st): k(f"v_add_f32 v{8+p}, v{8+p}, v{8+p+st}")
    k("""
    buffer_store_dword v8, v7, s[8:11], s24 offen
    L1_end:
    s_endpgm
    """)
    return k
```

```python
from common import *
TB=0; TA=33792; TBL=16896; TROW=528
UC=67584; UCC=4640; UCH=4*UCC
XT=104704; T1=112896
KC=121088; KCC=4224
LDS2=137984
LOG2E="0x3fb8aa3b"; INV2PI="0x3e22f983"
def cmul(k, dst, x, w, tmp):
    k(f"v_pk_mul_f32 v[{tmp}:{tmp+1}], v[{x}:{x+1}], v[{w}:{w+1}] op_sel_hi:[0,1]")
    k(f"v_pk_fma_f32 v[{dst}:{dst+1}], v[{x}:{x+1}], v[{w}:{w+1}], v[{tmp}:{tmp+1}] op_sel:[1,1,0] op_sel_hi:[1,0,1] neg_lo:[0,1,0]")
def direct(k, dst, lr, fr, P, t):
    Pl = {1:None, 8:"0x41000000", 256:"0x43800000"}[P]
    if Pl:
        k(f"v_mul_f32 v{t}, {Pl}, v{lr}\nv_mul_f32 v{t+1}, {Pl}, v{fr}")
        k(f"v_exp_f32 v{t}, v{t}\nv_fract_f32 v{t+1}, v{t+1}")
    else:
        k(f"v_exp_f32 v{t}, v{lr}\nv_fract_f32 v{t+1}, v{fr}")
    k(f"v_cos_f32 v{dst}, v{t+1}\nv_sin_f32 v{dst+1}, v{t+1}")
    k(f"v_mul_f32 v{dst}, v{dst}, v{t}\nv_mul_f32 v{dst+1}, v{dst+1}, v{t}")
def rho(r,h): return (r&3)+8*(r>>2)+4*h
def gen_k2():
    k = K("k2_kernel", 256, 512, LDS2, 200)
    k(f"""
    s_cmp_ge_u32 s2, 256
    s_cbranch_scc1 L2_end
    s_load_dwordx8 s[8:15], s[0:1], 8
    s_load_dwordx4 s[16:19], s[0:1], 40
    s_load_dwordx2 s[20:21], s[0:1], 104
    v_lshrrev_b32 v1, 6, v0
    v_and_b32 v2, 63, v0                     ; lane
    v_and_b32 v3, 255, v0                    ; b
    v_readfirstlane_b32 s3, v1               ; wave
    s_lshl_b32 s22, s2, 2
    s_lshl_b32 s23, s2, 14
    s_lshl_b32 s24, s2, 9
    v_lshlrev_b32 v4, 1, v3
    v_lshlrev_b32 v5, 6, v3                  ; E voffset = b*64
    v_subrev_u32 v6, 64, v5                  ; prev
    s_lshr_b32 s25, s3, 2
    s_lshl_b32 s26, s25, 4
    s_waitcnt lgkmcnt(0)
    s_load_dword s27, s[16:17], s22
    s_load_dword s28, s[18:19], s22
    s_add_u32 s32, s20, s23
    s_addc_u32 s33, s21, 0
    s_mov_b32 s34, 16384
    s_mov_b32 s35, 0x20000
    s_mov_b32 s36, s8
    s_mov_b32 s37, s9
    s_mov_b32 s38, {512*128*2}
    s_mov_b32 s39, 0x20000
    s_mov_b32 s40, s10
    s_mov_b32 s41, s11
    s_mov_b32 s42, {512*128*2}
    s_mov_b32 s43, 0x20000
    s_mov_b32 s44, s12
    s_mov_b32 s45, s13
    s_mov_b32 s46, {512*128*2}
    s_mov_b32 s47, 0x20000
    s_mov_b32 s48, s14
    s_mov_b32 s49, s15
    s_mov_b32 s50, {512*128*2}
    s_mov_b32 s51, 0x20000
    buffer_load_ushort v8, v4, s[36:39], s24 offen
    buffer_load_ushort v9, v4, s[40:43], s24 offen
    buffer_load_ushort v10, v4, s[44:47], s24 offen
    buffer_load_ushort v11, v4, s[48:51], s24 offen
    buffer_load_dwordx4 v[12:15], v6, s[32:35], s26 offen
    buffer_load_dwordx4 v[16:19], v5, s[32:35], s26 offen
    buffer_load_dwordx4 v[20:23], v5, s[32:35], s26 offen offset:32
    """)
    srd_off(k, 52, 20, WS_HT, 512*2048*2)
    k(f"""
    v_mov_b32 v24, 0
    v_mov_b32 v25, 0
    v_mov_b32 v26, 0
    v_mov_b32 v27, 0
    s_mul_i32 s29, s3, {UCC}
    s_add_u32 s29, s29, {UC}
    v_lshlrev_b32 v7, 4, v2
    v_add_u32 v28, s29, v7
    s_and_b32 s29, s3, 3
    s_mul_i32 s29, s29, {KCC}
    s_add_u32 s29, s29, {KC}
    v_add_u32 v29, s29, v7
    s_mov_b64 exec, 0xffffff
    ds_write_b128 v28, v[24:27]
    s_mov_b64 exec, 0x7f
    ds_write_b128 v29, v[24:27]
    s_mov_b64 exec, -1
    s_bfe_u32 s30, s3, 0x10001               ; ch' = (w>>1)&1
    s_mul_i32 s29, s30, {TBL}
    s_mul_i32 s31, s25, {TA}
    s_add_u32 s29, s29, s31
    s_and_b32 s31, s3, 1
    s_lshl_b32 s31, s31, 8
    s_add_u32 s29, s29, s31
    v_lshlrev_b32 v30, 2, v2
    v_add_u32 v30, s29, v30
    s_mul_i32 s29, s25, {UCH}
    s_add_u32 s29, s29, {UC+24*16}
    v_lshlrev_b32 v31, 4, v3
    v_add_u32 v32, s29, v31
    s_lshl_b32 s29, s25, 12
    s_add_u32 s29, s29, {XT}
    v_add_u32 v31, s29, v31
    s_waitcnt lgkmcnt(0)
    s_lshl_b32 s29, s30, 4
    s_lshr_b32 s27, s27, s29
    s_lshl_b32 s27, s27, 16
    s_lshr_b32 s28, s28, s26
    s_lshl_b32 s28, s28, 16                  ; D (f32 bits)
    v_mov_b32 v33, {LOG2E}
    v_mul_f32 v34, s27, v33
    v_exp_f32 v34, v34
    v_cvt_pk_bf16_f32 v34, v34, v34
    v_and_b32 v34, 0xffff0000, v34           ; dt
    s_waitcnt vmcnt(5)
    v_lshlrev_b32 v8, 16, v8
    v_lshlrev_b32 v9, 16, v9
    v_mul_f32 v8, v8, v33
    v_exp_f32 v8, v8
    v_mul_f32 v9, v9, v34                    ; ai*dt
    v_cvt_pk_bf16_f32 v8, v8, v8
    v_and_b32 v8, 0xffff0000, v8
    v_mul_f32 v8, v8, v34                    ; ea*dt
    v_mul_f32 v9, {INV2PI}, v9               ; fr
    v_mul_f32 v8, 0xbfb8aa3b, v8
    s_cmp_lg_u32 s25, 0
    s_cbranch_scc1 L2_aside
    """)
    W=36; X0=38; X1=40; T=42; C=44
    direct(k, W, 8, 9, 8, T)
    k(f"v_mov_b32 v{C}, 0x00003f80\nds_write_b32 v30, v{C}")
    k(f"v_cvt_pk_bf16_f32 v{C+1}, v{W}, v{W+1}\nds_write_b32 v30, v{C+1} offset:{TROW}")
    cur=W
    for j in range(2,32):
        nxt = X0 if cur!=X0 else X1
        cmul(k, nxt, cur, W, T)
        c=C+(j&3)
        k(f"v_cvt_pk_bf16_f32 v{c}, v{nxt}, v{nxt+1}\nds_write_b32 v30, v{c} offset:{TROW*j}")
        cur=nxt
    k("s_branch L2_uprep")
    k("L2_aside:")
    Z1=36; Z8=38; V=40; Z2=42; Z4=44; T=46; E=48; X0=50; X1=52; CC=54; C=56
    k("v_sub_f32 v9, 0, v9")
    direct(k, Z1, 8, 9, 1, T)
    direct(k, Z8, 8, 9, 8, T)
    direct(k, V, 8, 9, 256, T)
    k(f"""
    s_waitcnt vmcnt(3)
    v_add_f32 v34, v34, v34
    v_lshlrev_b32 v10, 16, v10
    v_lshlrev_b32 v11, 16, v11
    v_mul_f32 v{CC}, v10, v34
    v_mul_f32 v{CC+1}, -v11, v34
    """)
    cnt=[0]
    def put(src, rows):
        c=C+(cnt[0]&3); cnt[0]+=1
        k(f"v_cvt_pk_bf16_f32 v{c}, v{src}, v{src+1}")
        for (r,h) in rows: k(f"ds_write_b32 v30, v{c} offset:{TROW*rho(r,h)}")
    put(CC,[(0,0)])
    cmul(k,Z2,Z1,Z1,T)
    cur=CC
    for r in range(1,8):
        nxt = X0 if cur!=X0 else X1
        cmul(k,nxt,cur,Z1,T); put(nxt,[(r,0)]); cur=nxt
    cmul(k,Z4,Z2,Z2,T)
    cmul(k,E,CC,V,T); put(E,[(0,1),(1,1)])
    cur=E
    for rows in ([(2,1)],[(3,1),(4,1),(5,1)],[(6,1)],[(7,1)]):
        nxt = X0 if cur!=X0 else X1
        cmul(k,nxt,cur,Z2,T); put(nxt,rows); cur=nxt
    Es=[E,CC]
    ecur=E
    for h in (0,1):
        en = CC if ecur==E else E
        cmul(k,en,ecur,V,T); put(en,[(8,h)]); ecur=en
        cmul(k,X0,ecur,Z4,T); put(X0,[(9,h)])
        cmul(k,X1,X0,Z4,T); put(X1,[(10,h)])
    for (r,h) in ((11,0),(11,1),(13,0),(13,1)):
        en = CC if ecur==E else E
        cmul(k,en,ecur,V,T); put(en,[(r,h)]); ecur=en
        cmul(k,X0,ecur,Z8,T); put(X0,[(r+1,h)])
    k("L2_uprep:")
    k("s_waitcnt vmcnt(0)")
    for j in range(6): k(f"v_mov_b32 v{36+j}, v{13+j}")
    k(f"""
    ds_write_b128 v32, v[14:17] offset:{UCC}
    ds_write_b128 v32, v[16:19] offset:{3*UCC}
    ds_write_b128 v31, v[20:23]
    ds_write_b128 v32, v[36:39]
    ds_write_b128 v32, v[38:41] offset:{2*UCC}
    """)
    for j in range(4):
        k(f"v_lshlrev_b32 v{44+2*j}, 16, v{16+j}\nv_and_b32 v{45+2*j}, 0xffff0000, v{16+j}")
    for j in range(8): k(f"v_mul_f32 v{44+j}, s28, v{44+j}")
    for j in range(4): k(f"v_cvt_pk_bf16_f32 v{52+j}, v{44+2*j}, v{45+2*j}")
    k(f"ds_write_b128 v31, v[52:55] offset:{T1-XT}")
    k(f"""
    v_and_b32 v4, 31, v2
    v_mul_u32_u24 v4, {TROW}, v4
    v_lshrrev_b32 v5, 5, v2
    v_lshl_add_u32 v4, v5, 4, v4
    s_mul_i32 s29, s30, {TBL}
    v_add_u32 v4, s29, v4
    s_waitcnt lgkmcnt(0)
    s_barrier
    s_cmp_lg_u32 s25, 0
    s_cbranch_scc1 L2_end
    """)
    NB=6
    def rd(s):
        b=64+8*(s%NB)
        k(f"ds_read_b128 v[{b}:{b+3}], v4 offset:{TA+32*s}\nds_read_b128 v[{b+4}:{b+7}], v4 offset:{TB+32*s}")
    for s in range(NB-1): rd(s)
    k(f"""
    s_mul_i32 s29, s3, {KCC}
    s_add_u32 s29, s29, {KC+7*16}
    v_add_u32 v5, s29, v7
    v_and_b32 v8, 1, v2
    v_mul_u32_u24 v8, {KCC}, v8
    v_bfe_u32 v9, v2, 1, 3
    v_lshrrev_b32 v10, 4, v2                 ; q
    v_sub_u32 v9, v9, v10
    v_add_u32 v9, 3, v9
    v_lshl_add_u32 v8, v9, 4, v8
    s_mul_i32 s29, s30, {2*KCC}
    s_and_b32 s31, s3, 1                     ; c-half
    s_lshl_b32 s56, s31, 8                   ; 64*4*half
    s_add_u32 s29, s29, s56
    s_add_u32 s29, s29, {KC}
    v_add_u32 v8, s29, v8
    v_and_b32 v9, 3, v2
    v_mul_u32_u24 v11, {UCC}, v9
    v_bfe_u32 v12, v2, 2, 2
    v_lshl_add_u32 v13, v12, 3, v10
    v_lshl_add_u32 v11, v13, 4, v11
    s_mul_i32 s29, s30, {UCH}
    s_sub_u32 s29, s29, s56
    s_add_u32 s29, s29, {UC+16*16}
    v_add_u32 v11, s29, v11
    v_lshlrev_b32 v13, 5, v10
    v_lshl_add_u32 v13, v9, 2, v13
    v_lshl_add_u32 v13, v12, 7, v13
    v_and_b32 v14, 1, v2
    v_cmp_eq_u32 s[58:59], 1, v14
    """)
    D=16
    for s in range(16):
        if s+NB-1<16: rd(s+NB-1)
        outstanding = 2*(min(15,s+NB-1)-s)
        k(f"s_waitcnt lgkmcnt({outstanding})")
        b=64+8*(s%NB)
        k(f"v_mfma_f32_32x32x16_bf16 v[{D}:{D+15}], v[{b}:{b+3}], v[{b+4}:{b+7}], {'0' if s==0 else f'v[{D}:{D+15}]'}")
    e=lambda r: D+r
    O=32
    k(f"v_cndmask_b32 v48, v{e(11)}, v{e(12)}, s[58:59]\nv_cndmask_b32 v49, v{e(13)}, v{e(14)}, s[58:59]")
    k("s_cmp_eq_u32 s31, 0\ns_cbranch_scc1 L2_a0")
    def grp(idx, pairs):
        o=O+4*idx
        for t,(lo,hi) in enumerate(pairs):
            if t>0 and pairs[t-1]==(lo,hi): k(f"v_mov_b32 v{o+t}, v{o+t-1}")
            else: k(f"v_cvt_pk_bf16_f32 v{o+t}, v{lo}, v{hi}")
        k(f"ds_write_b128 v5, v[{o}:{o+3}] offset:{idx*1024}")
    grp(0,[(e(7),e(6)),(e(5),e(4)),(e(3),e(2)),(e(1),e(0))])
    grp(1,[(e(10),e(10)),(e(9),e(9)),(e(9),e(8)),(e(8),e(8))])
    grp(2,[(e(12),e(12)),(e(12),48),(e(11),e(11)),(e(11),e(11))])
    grp(3,[(e(14),e(14)),(e(14),49),(e(13),e(13)),(e(13),e(13))])
    k("s_branch L2_conv\nL2_a0:")
    k("v_mov_b32 v50, 0")
    k(f"v_mov_b32_dpp v50, v{e(7)} wave_shr:1 row_mask:0xf bank_mask:0xf bound_ctrl:1")
    grp(1,[(e(10),e(9)),(e(9),e(9)),(e(8),e(8)),(e(8),e(8))])
    grp(2,[(e(12),e(12)),(48,e(11)),(e(11),e(11)),(e(11),e(11))])
    grp(3,[(e(14),e(14)),(49,e(13)),(e(13),e(13)),(e(13),e(13))])
    grp(0,[(e(6),e(5)),(e(4),e(3)),(e(2),e(1)),(e(0),50)])
    k("L2_conv:")
    AF=[64,128]; BF=[96,160]; ACC=16
    def rdA(buf,g,cl): k(f"ds_read_b128 v[{AF[buf]+4*g}:{AF[buf]+4*g+3}], v8 offset:{512*g+64*cl}")
    def rdB(buf,t,cl): k(f"ds_read_b128 v[{BF[buf]+4*t}:{BF[buf]+4*t+3}], v11 offset:{512*t+(12-4*cl)*16}")
    k("s_waitcnt lgkmcnt(0)")
    for t in range(8): rdB(0,t,0)
    k("s_barrier")
    for g in range(8): rdA(0,g,0)
    first=[True]*8
    for cl in range(4):
        buf=cl&1
        pend=[]
        if cl<3:
            for g in range(8): pend += [("A",g),("B",g)]
        seq=[(t,g) for t in range(8) for g in range(t+1)] if cl>0 else [(t,g) for g in range(8) for t in range(g,8)]
        issued=0
        for idx,(t,g) in enumerate(seq):
            if cl==0:
                if t==g: k(f"s_waitcnt lgkmcnt({min(15,7-g+issued)})")
            else:
                if g==0: k(f"s_waitcnt lgkmcnt({min(15,14-2*t+issued)})")
            a=AF[buf]+4*g; b=BF[buf]+4*(t-g); c=ACC+4*t
            k(f"v_mfma_f32_16x16x32_bf16 v[{c}:{c+3}], v[{a}:{a+3}], v[{b}:{b+3}], {'0' if first[t] else f'v[{c}:{c+3}]'}")
            first[t]=False
            start = 8 if cl==0 else 4
            if pend and idx>=start and (idx-start)%1==0 and (idx%2==0 or len(seq)-idx<=len(pend)+2):
                kind,j=pend.pop(0)
                (rdA if kind=="A" else rdB)(buf^1,j,cl+1); issued+=1
        assert not pend
    k(f"""
    s_lshl_b32 s29, s3, 12
    v_add_u32 v4, s29, v7
    s_xor_b32 s29, s3, 1
    s_lshl_b32 s29, s29, 12
    v_add_u32 v5, s29, v7
    s_lshl_b32 s29, s30, 12
    s_lshl_b32 s56, s31, 11
    s_add_u32 s29, s29, s56
    s_lshl_b32 s57, s2, 13
    s_add_u32 s57, s57, s29
    s_add_u32 s29, s29, {XT}
    v_add_u32 v6, s29, v13
    """)
    for t in range(4):
        k(f"ds_read_b32 v{64+4*t}, v6 offset:{512*t}\nds_read_b32 v{65+4*t}, v6 offset:{512*t+16}")
        k(f"ds_read_b32 v{66+4*t}, v6 offset:{512*t+T1-XT}\nds_read_b32 v{67+4*t}, v6 offset:{512*t+16+T1-XT}")
    k("s_cmp_eq_u32 s31, 0\ns_cbranch_scc1 L2_r0")
    for t in range(4): k(f"ds_write_b128 v4, v[{ACC+4*t}:{ACC+4*t+3}] offset:{1024*t}")
    k("s_waitcnt lgkmcnt(0)")
    for j in range(16): k(f"v_mov_b32 v{ACC+j}, v{ACC+16+j}")
    k("s_branch L2_r1\nL2_r0:")
    for t in range(4): k(f"ds_write_b128 v4, v[{ACC+16+4*t}:{ACC+16+4*t+3}] offset:{1024*t}")
    k("L2_r1:\ns_waitcnt lgkmcnt(0)\ns_barrier")
    for t in range(4): k(f"ds_read_b128 v[{96+4*t}:{99+4*t}], v5 offset:{1024*t}")
    for t in range(4):
        for hh in range(2):
            i=2*t+hh
            k(f"v_lshlrev_b32 v{112+2*i}, 16, v{64+4*t+hh}\nv_and_b32 v{113+2*i}, 0xffff0000, v{64+4*t+hh}")
            k(f"v_lshlrev_b32 v{128+2*i}, 16, v{66+4*t+hh}\nv_and_b32 v{129+2*i}, 0xffff0000, v{66+4*t+hh}")
    for t in range(4):
        k(f"s_waitcnt lgkmcnt({3-t})")
        a=ACC+4*t
        for r in range(4): k(f"v_add_f32 v{a+r}, v{a+r}, v{96+4*t+r}")
        def rnd():
            k(f"v_cvt_pk_bf16_f32 v{a}, v{a}, v{a+1}\nv_cvt_pk_bf16_f32 v{a+2}, v{a+2}, v{a+3}")
        def unp():
            k(f"v_and_b32 v{a+1}, 0xffff0000, v{a}\nv_and_b32 v{a+3}, 0xffff0000, v{a+2}")
            k(f"v_lshlrev_b32 v{a}, 16, v{a}\nv_lshlrev_b32 v{a+2}, 16, v{a+2}")
        rnd(); unp()
        for r in range(4): k(f"v_add_f32 v{a+r}, v{a+r}, v{128+4*t+r}")
        rnd(); unp()
        for r in range(4): k(f"v_add_f32 v{a+r}, v{a+r}, v{112+4*t+r}")
        rnd()
        k(f"buffer_store_dword v{a}, v13, s[52:55], s57 offen offset:{512*t}")
        k(f"buffer_store_dword v{a+2}, v13, s[52:55], s57 offen offset:{512*t+16}")
    k("L2_end:\ns_endpgm")
    return k
```

```python
from common import *
NH=8; NW=6; HS=8192; WSL=14464; UOFF=7296
WB=NH*HS
MISC=WB+NW*WSL
PART=MISC; FS=MISC+4096; AP=MISC+6144
LDS3=MISC+6144+4096
CUM=[2,4,6,8,10,13,15,18,20,23,25,28,30,32,32,32]
def hb(j): return max(j,(CUM[j]-1)>>1)
def gen_k3():
    k = K("k3_kernel", 256, 768, LDS3, 168)
    k(f"""
    s_cmp_ge_u32 s2, 256
    s_cbranch_scc1 L3_end
    """)
    stamp(k,0,True); stamp(k,1)
    k(f"""
    s_load_dwordx4 s[12:15], s[0:1], 64
    s_load_dwordx2 s[20:21], s[0:1], 104
    v_lshrrev_b32 v1, 6, v0
    v_and_b32 v2, 63, v0
    v_readfirstlane_b32 s3, v1
    s_and_b32 s22, s2, 1
    s_lshl_b32 s22, s22, 3
    s_bfe_u32 s23, s2, 0x30003
    s_add_u32 s22, s22, s23          ; rb
    s_bfe_u32 s23, s2, 0x20001
    s_lshl_b32 s23, s23, 2
    s_lshr_b32 s24, s2, 6
    s_add_u32 s23, s23, s24          ; fs
    s_and_b32 s25, s3, 3
    s_cmp_lt_u32 s3, 4
    s_cbranch_scc1 L3_comp
    s_cmp_lt_u32 s3, 8
    s_cbranch_scc1 L3_stat
    """)
    k(f"""
    v_lshrrev_b32 v3, 4, v2
    v_and_b32 v4, 15, v2
    v_lshlrev_b32 v5, 2, v3
    v_xor_b32 v4, v4, v5
    v_lshlrev_b32 v4, 4, v4
    v_lshl_add_u32 v4, v3, 12, v4
    s_lshl_b32 s26, s25, 15
    v_add_u32 v4, s26, v4            ; H voffset 0
    v_add_u32 v5, {16384-1024}, v4   ; H voffset 1
    s_lshl_b32 s26, s22, 8
    s_mul_i32 s27, s23, 224          ; W soffset (+ j*114688)
    s_lshl_b32 s28, s25, 11
    s_and_b32 s29, s25, 1
    s_mul_i32 s30, s29, {UOFF}
    s_add_u32 s30, s30, {WB}
    """)
    for i in range(7):
        k(f"""
        v_add_u32 v6, {64*i}, v2
        v_mul_u32_u24 v7, 4682, v6
        v_lshrrev_b32 v7, 16, v7
        v_mul_u32_u24 v16, 14, v7
        v_sub_u32 v6, v6, v16
        v_mul_u32_u24 v7, 3584, v7
        v_lshl_add_u32 v{8+i}, v6, 4, v7
        """)
        if i&3: k(f"v_subrev_u32 v{8+i}, {1024*(i&3)}, v{8+i}")
    k(f"""
    s_waitcnt lgkmcnt(0)
    s_cmp_eq_u32 s29, 0
    s_cselect_b32 s4, s12, s14
    s_cselect_b32 s5, s13, s15
    """)
    srd(k, 4, 512*1792*2)
    srd_off(k, 8, 20, WS_HT, 512*2048*2)
    k("s_cmp_ge_u32 s25, 2\ns_cbranch_scc1 L3_ld1")
    for par in (0,1):
        if par: k("L3_ld1:")
        q=[]
        def issue(kind,j):
            if j>15: return
            if kind=="H":
                k(f"s_add_u32 m0, s28, {(j%NH)*HS}\ns_add_u32 s31, s26, {j*131072}")
                k("buffer_load_dwordx4 v4, s[8:11], s31 offen lds\nbuffer_load_dwordx4 v5, s[8:11], s31 offen offset:1024 lds")
                q.extend([("H",j)]*2)
            else:
                if (j&1)!=par: return
                k(f"s_add_u32 m0, s30, {(j%NW)*WSL}\ns_add_u32 s31, s27, {j*114688}")
                for i in range(7):
                    if i==4: k(f"s_add_u32 m0, s30, {(j%NW)*WSL+4096}")
                    k(f"buffer_load_dwordx4 v{8+i}, s[4:7], s31 offen offset:{1024*(i&3)} lds")
                q.extend([("W",j)]*7)
        for it in "H0 W0 H1 W1 H2 H3 W2 H4 W3 H5 W4 H6 W5 H7".split(): issue(it[0],int(it[1:]))
        for j in range(16):
            need=[idx for idx,(kind,b) in enumerate(q) if (kind=="W" and b<=j) or (kind=="H" and b<=hb(j))]
            n=len(q)-1-max(need)
            k(f"s_waitcnt vmcnt({n})\ns_barrier")
            if j>=2: issue("H",j+NH-2); issue("W",j+NW-2)
        stamp(k,2); stamp_flush(k,3,3,20,3,vt=20)
        k("s_endpgm")
    k(f"""
    L3_stat:
    v_and_b32 v3, 255, v0
    v_lshrrev_b32 v4, 5, v3          ; blk
    v_lshlrev_b32 v4, 4, v4
    v_and_b32 v5, 15, v3
    v_add_u32 v4, v4, v5
    v_bfe_u32 v5, v3, 4, 1
    v_mul_u32_u24 v5, 1792, v5
    v_add_u32 v4, v4, v5
    v_lshlrev_b32 v4, 2, v4
    v_cmp_gt_u32 vcc, 224, v3
    v_mov_b32 v5, 0x7fffff00
    v_cndmask_b32 v4, v5, v4, vcc
    s_mul_i32 s26, s23, 448
    s_waitcnt lgkmcnt(0)
    """)
    srd_off(k, 8, 20, WS_CS, 4*3584*4)
    for p in range(4):
        k(f"buffer_load_dword v{8+p}, v4, s[8:11], s26 offen")
        if p<3: k(f"s_add_u32 s26, s26, {3584*4}")
    k(f"""
    v_lshlrev_b32 v3, 4, v3
    v_lshrrev_b32 v5, 4, v2
    v_lshlrev_b32 v6, 10, v5
    v_and_b32 v7, 15, v2
    v_lshl_add_u32 v6, v7, 4, v6
    s_lshl_b32 s26, s25, 8
    v_add_u32 v6, s26, v6
    s_lshl_b32 s26, s25, 2
    v_xor_b32 v7, s26, v7
    v_lshlrev_b32 v7, 5, v7
    v_and_b32 v12, 1, v5
    v_lshl_add_u32 v7, v12, 4, v7
    v_lshrrev_b32 v12, 1, v5
    v_lshl_add_u32 v7, v12, 9, v7
    s_lshl_b32 s26, s25, 10
    s_add_u32 s26, s26, {PART}
    v_add_u32 v7, s26, v7
    v_and_b32 v13, 31, v2
    s_lshl_b32 s26, s25, 5
    v_add_u32 v13, s26, v13
    v_lshlrev_b32 v14, 4, v13
    v_add_u32 v14, {FS}, v14
    v_lshlrev_b32 v13, 2, v13
    v_lshl_add_u32 v13, v12, 9, v13
    v_add_u32 v13, {PART}, v13
    v_add_u32 v3, {AP}, v3
    s_waitcnt vmcnt(0)
    v_add_f32 v8, v8, v9
    v_add_f32 v10, v10, v11
    v_add_f32 v8, v8, v10
    v_cvt_pk_bf16_f32 v9, v8, v8
    v_and_b32 v9, 0xffff0000, v9     ; hi
    v_sub_f32 v8, v8, v9
    v_cvt_pk_bf16_f32 v10, v8, v8
    v_and_b32 v10, 0xffff0000, v10   ; mid
    v_sub_f32 v8, v8, v10
    v_cvt_pk_bf16_f32 v16, v9, v10
    v_cvt_pk_bf16_f32 v17, v8, 0
    v_mov_b32 v18, 0
    v_mov_b32 v19, 0
    ds_write_b128 v3, v[16:19]
    """)
    S=24; Q=32; RB=[40,44,48]; T=52
    done=0
    for j in range(16):
        if j==0: k("s_waitcnt lgkmcnt(0)")
        k("s_barrier")
        rs=list(range(done,CUM[j])); done=CUM[j]
        for n,r in enumerate(rs):
            k(f"ds_read_b128 v[{RB[n]}:{RB[n]+3}], v6 offset:{((r>>1)%NH)*HS+(r&1)*4096}")
        for n,r in enumerate(rs):
            k(f"s_waitcnt lgkmcnt({len(rs)-1-n})")
            for d in range(4):
                src=RB[n]+d
                if r==0:
                    k(f"v_lshlrev_b32 v{S+2*d}, 16, v{src}\nv_and_b32 v{S+2*d+1}, 0xffff0000, v{src}")
                    k(f"v_mul_f32 v{Q+2*d}, v{S+2*d}, v{S+2*d}\nv_mul_f32 v{Q+2*d+1}, v{S+2*d+1}, v{S+2*d+1}")
                else:
                    t=T+2*(d&1)+ (1 if False else 0)
                    k(f"v_lshlrev_b32 v{t}, 16, v{src}\nv_and_b32 v{t+1}, 0xffff0000, v{src}")
                    k(f"v_add_f32 v{S+2*d}, v{S+2*d}, v{t}\nv_add_f32 v{S+2*d+1}, v{S+2*d+1}, v{t+1}")
                    k(f"v_fmac_f32 v{Q+2*d}, v{t}, v{t}\nv_fmac_f32 v{Q+2*d+1}, v{t+1}, v{t+1}")
        if j==13:
            for i in range(8): k(f"v_permlane32_swap_b32 v{S+i}, v{Q+i}")
            for i in range(8): k(f"v_add_f32 v{S+i}, v{S+i}, v{Q+i}")
            for i in range(4): k(f"v_permlane16_swap_b32 v{S+i}, v{S+4+i}")
            for i in range(4): k(f"v_add_f32 v{S+i}, v{S+i}, v{S+4+i}")
            k(f"ds_write_b128 v7, v[{S}:{S+3}]\ns_waitcnt lgkmcnt(0)")
        if j==14:
            for p in range(4): k(f"ds_read_b32 v{40+p}, v13 offset:{1024*p}")
            k(f"""
            v_mov_b32 v1, 0x3b000000
            s_waitcnt lgkmcnt(0)
            v_add_f32 v40, v40, v41
            v_add_f32 v42, v42, v43
            v_add_f32 v40, v40, v42
            v_mov_b32 v41, v40
            v_permlane32_swap_b32 v40, v41
            v_mul_f32 v40, v40, v1
            v_mul_f32 v41, v41, v1
            v_fma_f32 v41, -v40, v40, v41
            v_max_f32 v41, 0, v41
            v_cvt_pk_bf16_f32 v41, v41, v41
            v_and_b32 v41, 0xffff0000, v41
            v_add_f32 v41, 0x3727c5ac, v41
            v_cvt_pk_bf16_f32 v41, v41, v41
            v_and_b32 v41, 0xffff0000, v41
            v_sqrt_f32 v41, v41
            v_cvt_pk_bf16_f32 v44, -v40, -v40
            v_cvt_pk_bf16_f32 v41, v41, v41
            v_and_b32 v47, 0xffff0000, v41
            v_rcp_f32 v46, v47
            v_mov_b32 v45, v44
            v_mul_f32 v46, 0xbfb8aa3b, v46
            ds_write_b128 v14, v[44:47]
            s_waitcnt lgkmcnt(0)
            """)
    stamp(k,2); stamp_flush(k,3,3,20,3,vt=60)
    k("s_endpgm")
    NA=4; AW=16; BW=32; BP=40; ZS=44; ACC=56
    k(f"""
    L3_comp:
    s_setprio 1
    v_lshrrev_b32 v3, 5, v2          ; h
    v_bfe_u32 v4, v2, 2, 2           ; r
    v_lshl_add_u32 v5, v3, 3, v4     ; 8h + r
    v_bfe_u32 v6, v2, 4, 1           ; gq&1
    v_and_b32 v7, 3, v2
    v_lshlrev_b32 v7, 3, v7          ; c*8
    v_mul_u32_u24 v8, 224, v5
    v_mul_u32_u24 v9, {UOFF}, v6
    v_add3_u32 v8, v8, v9, v7
    v_add_u32 v8, {WB}, v8
    v_add_u32 v9, {4*WSL}, v8
    v_xor_b32 v10, s25, v4
    v_lshlrev_b32 v10, 6, v10
    v_lshl_add_u32 v10, v5, 8, v10
    v_lshl_add_u32 v10, v6, 5, v10
    v_add_u32 v10, v10, v7           ; vB
    v_and_b32 v11, 31, v2
    v_lshlrev_b32 v12, 4, v11
    s_lshl_b32 s26, s25, 9
    v_add_u32 v13, s26, v12
    v_add_u32 v13, {FS}, v13
    v_add_u32 v12, {AP}, v12
    v_cmp_eq_u32 vcc, 0, v3
    v_mov_b32 v{BP+2}, 0
    v_mov_b32 v{BP+3}, 0
    v_lshlrev_b32 v14, 4, v2
    s_lshl_b32 s26, s22, 2
    s_add_u32 s26, s26, s25
    s_mul_i32 s26, s26, 112
    s_mul_i32 s27, s23, 7
    s_add_u32 s26, s26, s27
    s_lshl_b32 s26, s26, 10
    s_waitcnt lgkmcnt(0)
    """)
    srd_off(k, 8, 20, WS_HG, 2048*1792*2)
    q=[]
    def rdA(t):
        b=AW+4*(t%NA)
        if t>=231: return
        if t>=224:
            k(f"ds_read_b128 v[{b}:{b+3}], v12 offset:{(t-224)*512}"); q.append(("A",t)); return
        s=t//7; fb=t%7; j=s>>1; kk=s&1; sl=j%NW
        va = 8 if sl<4 else 9
        off=(sl%4)*WSL + kk*16*224 + fb*32
        k(f"ds_read_b64_tr_b16 v[{b}:{b+1}], v{va} offset:{off}\nds_read_b64_tr_b16 v[{b+2}:{b+3}], v{va} offset:{off+4*224}")
        q.extend([("A",t)]*2)
    def rdB(s):
        b=BW+4*(s&1)
        if s==32:
            k(f"ds_read_b64 v[{BP}:{BP+1}], v13\nds_read_b64 v[{ZS}:{ZS+1}], v13 offset:8"); q.extend([("B",s)]*2); return
        j=s>>1; off=(j%NH)*HS+(s&1)*4096
        k(f"ds_read_b64_tr_b16 v[{b}:{b+1}], v10 offset:{off}\nds_read_b64_tr_b16 v[{b+2}:{b+3}], v10 offset:{off+1024}")
        q.extend([("B",s)]*2)
    k("s_barrier")
    stamp(k,2)
    if STAMP: k("s_waitcnt lgkmcnt(0)")
    rdB(0)
    for t in range(NA): rdA(t)
    for t in range(231):
        s=t//7; fb=t%7
        need=max(idx for idx,tag in enumerate(q) if tag==("A",t) or tag==("B",s))
        n=len(q)-1-need
        k(f"s_waitcnt lgkmcnt({n})")
        a=AW+4*(t%NA); c=ACC+16*fb
        if s==32:
            if fb==0:
                k(f"v_cndmask_b32 v{BP}, 0, v{BP}, vcc\nv_cndmask_b32 v{BP+1}, 0, v{BP+1}, vcc")
            b=BP
        else: b=BW+4*(s&1)
        k(f"v_mfma_f32_32x32x16_bf16 v[{c}:{c+15}], v[{a}:{a+3}], v[{b}:{b+3}], {'0' if s==0 else f'v[{c}:{c+15}]'}")
        if fb==7-NA and s<32:
            if s&1 and s<31: k("s_barrier")
            rdB(s+1)
        rdA(t+NA)
    stamp(k,3)
    for fb in range(7):
        c=ACC+16*fb; o=AW+4*(fb&3)
        for i in range(4): k(f"v_pk_mul_f32 v[{c+2*i}:{c+2*i+1}], v[{c+2*i}:{c+2*i+1}], v[{ZS}:{ZS+1}] op_sel_hi:[1,0]")
        for i in range(8): k(f"v_exp_f32 v{c+i}, v{c+i}")
        for i in range(4): k(f"v_pk_fma_f32 v[{c+2*i}:{c+2*i+1}], v[{c+2*i}:{c+2*i+1}], v[{ZS}:{ZS+1}], v[{ZS}:{ZS+1}] op_sel:[0,1,1] op_sel_hi:[1,1,1]")
        for i in range(8): k(f"v_rcp_f32 v{c+i}, v{c+i}")
        for i in range(4): k(f"v_pk_mul_f32 v[{c+2*i}:{c+2*i+1}], v[{c+2*i}:{c+2*i+1}], v[{c+8+2*i}:{c+9+2*i}]")
        for i in range(4): k(f"v_cvt_pk_bf16_f32 v{o+i}, v{c+2*i}, v{c+2*i+1}")
        if fb==4: k("s_add_u32 s26, s26, 4096")
        k(f"buffer_store_dwordx4 v[{o}:{o+3}], v14, s[8:11], s26 offen offset:{1024*(fb&3)}")
    stamp(k,4); stamp(k,5,True); stamp_flush(k,3,6,20,3,vt=48)
    k("L3_end:\ns_endpgm")
    return k
```

```python
from common import *
D4=14; NS4=D4+1; WAREA=NS4*2048+2048
LDS4=4*WAREA
def gen_k4():
    ACC=16; AF=80; BR=96
    nv=BR+8*NS4
    k = K("k4_kernel", 256, 256, LDS4, nv+2)
    k(f"""
    s_cmp_ge_u32 s2, 256
    s_cbranch_scc1 L4_end
    """)
    stamp(k,0,True); stamp(k,1)
    k(f"""
    s_load_dwordx4 s[12:15], s[0:1], 80
    s_load_dwordx2 s[20:21], s[0:1], 104
    v_lshrrev_b32 v1, 6, v0
    v_and_b32 v2, 63, v0
    v_readfirstlane_b32 s3, v1
    s_and_b32 s22, s2, 7
    s_lshl_b32 s22, s22, 2
    s_bfe_u32 s23, s2, 0x20003
    s_add_u32 s22, s22, s23          ; tl
    s_lshr_b32 s23, s2, 5            ; td
    v_lshrrev_b32 v3, 3, v2
    v_and_b32 v4, 7, v2
    v_bfe_u32 v5, v2, 4, 1
    v_lshlrev_b32 v5, 2, v5
    v_xor_b32 v4, v4, v5
    v_lshlrev_b32 v4, 4, v4
    v_lshl_add_u32 v3, v3, 10, v4
    v_add_u32 v4, {8192-1024}, v3
    s_mul_i32 s24, s3, {448*1024}
    s_lshl_b32 s25, s23, 7
    s_add_u32 s24, s24, s25
    v_lshlrev_b32 v5, 4, v2
    v_add_u32 v6, {112*1024}, v5
    s_mul_i32 s25, s22, 224
    s_mul_i32 s26, s3, 28
    s_add_u32 s25, s25, s26
    s_lshl_b32 s25, s25, 10
    s_mul_i32 s27, s3, {WAREA}
    s_waitcnt lgkmcnt(0)
    s_mov_b32 s4, s12
    s_mov_b32 s5, s13
    """)
    srd(k, 4, 1792*512*2)
    srd_off(k, 8, 20, WS_HG, 2048*1792*2)
    q=[]
    def loads(s):
        if s>28: return []
        if s==28:
            q.extend([("H",0)]*2)
            return [f"s_add_u32 m0, s27, {NS4*2048}\ns_nop 0\nbuffer_load_dwordx4 v12, s[32:35], s30 offen lds",
                    "buffer_load_dwordx4 v13, s[32:35], s30 offen offset:1024 lds"]
        b=BR+8*(s%NS4)
        q.extend([("A",s)]*2+[("B",s)]*2)
        return [f"s_add_u32 m0, s27, {(s%NS4)*2048}\ns_add_u32 s28, s24, {s*16384}\nbuffer_load_dwordx4 v3, s[4:7], s28 offen lds",
                f"buffer_load_dwordx4 v4, s[4:7], s28 offen offset:1024 lds",
                f"s_add_u32 s29, s25, {s*1024}\nbuffer_load_dwordx4 v[{b}:{b+3}], v5, s[8:11], s29 offen",
                f"buffer_load_dwordx4 v[{b+4}:{b+7}], v6, s[8:11], s29 offen"]
    for s in range(D4):
        for l in loads(s): k(l)
    k(f"""
    v_lshrrev_b32 v7, 5, v2          ; h
    v_bfe_u32 v8, v2, 2, 2           ; r
    v_lshl_add_u32 v9, v7, 2, v8     ; 4h+r
    v_bfe_u32 v10, v2, 4, 1          ; mh
    v_and_b32 v11, 3, v2
    v_lshlrev_b32 v11, 3, v11
    v_lshl_add_u32 v11, v10, 5, v11  ; mh*32 + c*8
    v_lshl_add_u32 v14, v9, 6, v11
    v_add_u32 v14, s27, v14
    v_lshl_add_u32 v9, v9, 7, v11
    v_lshrrev_b32 v8, 1, v8
    v_lshl_add_u32 v8, v8, 6, v9
    v_add_u32 v8, s27, v8            ; db0
    v_xor_b32 v9, 64, v8
    v_lshrrev_b32 v12, 2, v2
    v_lshlrev_b32 v12, 12, v12
    v_and_b32 v13, 3, v2
    v_lshl_add_u32 v12, v13, 4, v12
    v_add_u32 v13, {65536-1024}, v12
    s_and_b32 s36, s3, 1             ; db
    s_lshr_b32 s37, s3, 1            ; lb
    s_lshl_b32 s38, s23, 1
    s_add_u32 s38, s38, s36          ; d block32
    s_lshl_b32 s39, s22, 1
    s_add_u32 s39, s39, s37          ; l block32
    s_lshl_b32 s30, s38, 17
    s_lshl_b32 s31, s39, 6
    s_add_u32 s30, s30, s31          ; h soffset
    s_lshl_b32 s40, s39, 15
    s_lshl_b32 s41, s38, 6
    s_add_u32 s40, s40, s41
    v_and_b32 v15, 31, v2
    v_lshlrev_b32 v15, 10, v15
    v_lshl_add_u32 v15, v7, 4, v15
    s_mov_b32 s44, s14
    s_mov_b32 s45, s15
    """)
    srd(k, 44, 2048*512*2)
    srd_off(k, 32, 20, WS_HT, 512*2048*2)
    def vw(tag):
        need=max(i for i,t in enumerate(q) if t==tag)
        k(f"s_waitcnt vmcnt({len(q)-1-need})")
    def rdA(s):
        for db in range(2):
            b=AF+8*(s&1)+4*db
            k(f"ds_read_b64_tr_b16 v[{b}:{b+1}], v{8+db} offset:{(s%NS4)*2048}\nds_read_b64_tr_b16 v[{b+2}:{b+3}], v{8+db} offset:{(s%NS4)*2048+1024}")
    vw(("A",0));
    stamp(k,2)
    if STAMP: k("s_waitcnt lgkmcnt(0)")
    rdA(0)
    for s in range(28):
        if s<27:
            vw(("A",s+1)); rdA(s+1); k("s_waitcnt lgkmcnt(4)")
        else:
            vw(("B",s)); k("s_waitcnt lgkmcnt(0)")
        ld=loads(s+D4)
        for i,(db,lb) in enumerate(((0,0),(1,0),(0,1),(1,1))):
            c=ACC+16*(db+2*lb); a=AF+8*(s&1)+4*db; b=BR+8*(s%NS4)+4*lb
            k(f"v_mfma_f32_32x32x16_bf16 v[{c}:{c+15}], v[{a}:{a+3}], v[{b}:{b+3}], {'0' if s==0 else f'v[{c}:{c+15}]'}")
            if i<len(ld): k(ld[i])
    stamp(k,3)
    k(f"v_add_u32 v3, s27, v5")
    for w in range(4):
        k(f"s_cmp_lg_u32 s3, {w}\ns_cbranch_scc1 L4_w{w}") if w<3 else None
        for qd in range(4):
            if qd==w: continue
            for j in range(4):
                k(f"ds_write_b128 v3, v[{ACC+16*qd+4*j}:{ACC+16*qd+4*j+3}] offset:{qd*4096+j*1024}")
        if w:
            for j in range(16): k(f"v_mov_b32 v{ACC+j}, v{ACC+16*w+j}")
        if w<3: k(f"s_branch L4_red\nL4_w{w}:")
    k(f"""
    L4_red:
    s_lshl_b32 s28, s3, 12
    v_add_u32 v3, s28, v5
    s_waitcnt vmcnt(0)
    """)
    for j in range(4): k(f"ds_read_b64_tr_b16 v[{80+2*j}:{81+2*j}], v14 offset:{NS4*2048+j*512}")
    k("s_waitcnt lgkmcnt(0)\ns_barrier")
    for p in range(1,4):
        k(f"s_add_u32 s28, s3, {p}\ns_and_b32 s28, s28, 3\ns_mul_i32 s28, s28, {WAREA}\nv_add_u32 v4, s28, v3")
        for j in range(4): k(f"ds_read_b128 v[{96+16*(p-1)+4*j}:{99+16*(p-1)+4*j}], v4 offset:{j*1024}")
    for j in range(8):
        k(f"v_and_b32 v{49+2*j}, 0xffff0000, v{80+j}\nv_lshlrev_b32 v{48+2*j}, 16, v{80+j}")
    for p in range(3):
        k(f"s_waitcnt lgkmcnt({8-4*p})")
        for j in range(8): k(f"v_pk_add_f32 v[{ACC+2*j}:{ACC+2*j+1}], v[{ACC+2*j}:{ACC+2*j+1}], v[{96+16*p+2*j}:{97+16*p+2*j}]")
    for j in range(8): k(f"v_cvt_pk_bf16_f32 v{64+j}, v{ACC+2*j}, v{ACC+2*j+1}")
    for j in range(8): k(f"v_lshlrev_b32 v{ACC+2*j}, 16, v{64+j}\nv_and_b32 v{ACC+2*j+1}, 0xffff0000, v{64+j}")
    for j in range(8): k(f"v_pk_add_f32 v[{ACC+2*j}:{ACC+2*j+1}], v[{ACC+2*j}:{ACC+2*j+1}], v[{48+2*j}:{49+2*j}]")
    for j in range(8): k(f"v_cvt_pk_bf16_f32 v{64+j}, v{ACC+2*j}, v{ACC+2*j+1}")
    for jj in range(2):
        k(f"v_permlane32_swap_b32 v{64+4*jj}, v{66+4*jj}\nv_permlane32_swap_b32 v{65+4*jj}, v{67+4*jj}")
        k(f"buffer_store_dwordx4 v[{64+4*jj}:{67+4*jj}], v15, s[44:47], s40 offen offset:{32*jj}")
    stamp(k,4); stamp(k,5,True); stamp_flush(k,4,6,20,3,vt=90)
    k("L4_end:\ns_endpgm")
    return k
```

```python
HEAD_ARGS = """; Kernarg layout (112 bytes, ptrs only, base s[0:1]):
"""
class K:
    def __init__(self, name, grid, block, lds, vgpr, agpr=0, sgpr=102):
        self.name, self.grid, self.block, self.lds = name, grid, block, lds
        self.vgpr, self.agpr, self.sgpr = vgpr, agpr, sgpr
        self.lines = []
    def __call__(self, s):
        for ln in s.split("\n"):
            ln = ln.strip()
            if not ln: continue
            if ln.endswith(":"): self.lines.append(ln)
            else: self.lines.append("    " + ln)
    def text(self):
        return (f".globl {self.name}\n.p2align 8\n.type {self.name},@function\n{self.name}:\n"
                + "\n".join(self.lines) + "\n")
    def kd(self):
        acc = (self.vgpr + 3)//4*4
        nfv = acc + self.agpr if self.agpr else self.vgpr
        return (f".p2align 6\n.amdhsa_kernel {self.name}\n"
                f"  .amdhsa_next_free_vgpr {nfv}\n  .amdhsa_next_free_sgpr {self.sgpr}\n"
                f"  .amdhsa_accum_offset {acc}\n  .amdhsa_group_segment_fixed_size 0\n"
                f"  .amdhsa_kernarg_size 112\n  .amdhsa_user_sgpr_count 2\n"
                f"  .amdhsa_user_sgpr_kernarg_segment_ptr 1\n  .amdhsa_system_sgpr_workgroup_id_x 1\n"
                f"  .amdhsa_float_denorm_mode_32 3\n"
                f".end_amdhsa_kernel\n")
def emit(path, kernels, order=None):
    order = order or kernels
    s = HEAD_ARGS
    for k in order:
        g, b = k.grid, k.block
        if k.name.startswith("sequential"): s += f"; @launch grid=({g},1,1) block=({b},1,1) lds={k.lds}\n"
        else: s += f"; @launch kernel={k.name} grid=({g},1,1) block=({b},1,1) lds={k.lds}\n"
    s += '.amdgcn_target "amdgcn-amd-amdhsa--gfx950"\n.text\n'
    for k in kernels: s += k.text()
    s += '.section .rodata,"a"\n'
    for k in kernels: s += k.kd()
    open(path, "w").write(s)
def srd(k, s, soff_lo, size):
    k(f"s_mov_b32 s{s+2}, {size}\ns_mov_b32 s{s+3}, 0x00020000")
```

```python
import re
TRANS = ("v_exp_f32","v_log_f32","v_rcp_f32","v_rsq_f32","v_sqrt_f32","v_sin_f32","v_cos_f32","v_rcp_iflag_f32",
         "v_exp_f16","v_log_f16","v_rcp_f16","v_rsq_f16","v_sqrt_f16","v_sin_f16","v_cos_f16")
def regs_of(tok):
    tok = tok.strip()
    tok = tok.lstrip("-").strip("|")
    if tok.startswith("neg(") or tok.startswith("abs("): tok = tok[4:-1]
    m = re.fullmatch(r"([vas])\[(\d+):(\d+)\]", tok)
    if m: return {(m.group(1), i) for i in range(int(m.group(2)), int(m.group(3))+1)}
    m = re.fullmatch(r"([vas])(\d+)", tok)
    if m: return {(m.group(1), int(m.group(2)))}
    if tok == "vcc": return {("s","vcc")}
    if tok in ("vcc_lo","vcc_hi"): return {("s","vcc")}
    if tok in ("exec","exec_lo","exec_hi"): return {("s","exec")}
    if tok == "m0": return {("s","m0")}
    return set()
def split_ops(rest):
    ops=[]; cur=""; depth=0
    for ch in rest:
        if ch in "[(": depth+=1
        if ch in "])": depth-=1
        if ch=="," and depth==0: ops.append(cur); cur=""
        else: cur+=ch
    ops.append(cur)
    mods=""
    last=ops[-1].strip()
    parts=last.split(None,1)
    if parts:
        ops[-1]=parts[0]; mods=parts[1] if len(parts)>1 else ""
    return [o.strip() for o in ops], mods
class I: pass
def parse(line):
    s=line.split(";")[0].strip()
    i=I(); i.text=line; i.op=None
    if not s or s.endswith(":") or s.startswith("."):
        i.label = s[:-1] if s.endswith(":") else None
        return i
    i.label=None
    p=s.split(None,1); op=p[0]; rest=p[1] if len(p)>1 else ""
    base=re.sub(r"_(e32|e64|dpp|sdwa)$","",op)
    i.op=base
    ops,mods=split_ops(rest) if rest else ([],"")
    i.ops=ops; i.mods=mods
    R=[regs_of(o) for o in ops]
    i.w=set(); i.r=set(); i.srcC=set(); i.srcAB=set()
    i.valu=base.startswith("v_") and not base.startswith("v_mfma")
    i.mfma=base.startswith("v_mfma")
    i.vmem=base.startswith(("buffer_","global_","flat_"))
    i.ds=base.startswith("ds_")
    i.salu=base.startswith("s_")
    i.trans=base in TRANS
    i.dpp=bool(re.search(r"\b(row_|quad_perm|wave_|bank_mask)",mods)) or op.endswith("_dpp")
    i.sdwa_dst = ("dst_sel" in mods and "dst_sel:DWORD" not in mods) or (i.valu and "op_sel" in mods and not base.startswith("v_pk") and not base.startswith("v_dot") and not base.startswith("v_fma_mix"))
    i.dot = base.startswith("v_dot")
    i.lds_dma = i.vmem and (" lds" in " "+mods or "load_lds" in base)
    i.passes=0; i.wide=set()
    if i.mfma:
        i.w=R[0]; i.srcAB=R[1]|R[2]; i.srcC=R[3]; i.r=i.srcAB|i.srcC
        i.passes = 8 if "32x32" in base else 4
        if "4x4x4" in base: i.passes=2
    elif i.valu:
        if base.startswith("v_cmpx"): i.w={("s","exec")}; i.r=set().union(*R)
        elif base.startswith("v_cmp"): i.w=R[0]; i.r=set().union(*R[1:])
        elif base.startswith("v_permlane") and "swap" in base: i.w=R[0]|R[1]; i.r=R[0]|R[1]
        elif base=="v_swap_b32": i.w=R[0]|R[1]; i.r=R[0]|R[1]
        elif re.match(r"v_(add|sub|subrev)_co_u32",base): i.w=R[0]|R[1]; i.r=set().union(*R[2:])
        elif re.match(r"v_(addc|subb|subbrev)_co_u32",base): i.w=R[0]|R[1]; i.r=set().union(*R[2:])
        elif base.startswith("v_div_scale"): i.w=R[0]|R[1]; i.r=set().union(*R[2:])
        elif base in("v_nop",): pass
        else:
            i.w=R[0]; i.r=set().union(*R[1:]) if len(R)>1 else set()
            if base.startswith(("v_fmac","v_mac","v_dot2c","v_dot4c","v_pk_fmac","v_writelane")) or i.dpp or i.sdwa_dst: i.r|=R[0]
            if base=="v_cndmask_b32" and len(ops)==3: i.r|={("s","vcc")}
            if base=="v_div_fmas_f32": i.r|={("s","vcc")}
    elif i.vmem:
        allr=set().union(*R) if R else set()
        if "load" in base and not i.lds_dma:
            i.w=R[0]; i.r=set().union(*R[1:])
        elif "atomic" in base and ("sc0" in mods.split()):
            i.w=R[0]; i.r=allr
        else:
            i.r=allr
            if re.search(r"store_dwordx[34]",base):
                i.wide = R[0] if base.startswith("buffer_") else R[1]
        if i.lds_dma: i.r|={("s","m0")}
    elif i.ds:
        allr=set().union(*R) if R else set()
        if base.startswith(("ds_read","ds_bpermute","ds_permute","ds_swizzle")) or "_rtn" in base:
            i.w=R[0]; i.r=set().union(*R[1:])
            if "d16" in base: i.r|=R[0]
        else: i.r=allr
    elif i.salu:
        if base in ("s_nop","s_waitcnt","s_barrier","s_endpgm","s_setprio","s_sleep") or base.startswith(("s_cbranch","s_branch","s_cmp","s_bitcmp")):
            i.r=set().union(*R) if R else set()
        else:
            i.w=R[0] if R else set(); i.r=set().union(*R[1:]) if len(R)>1 else set()
            if "saveexec" in base: i.w|={("s","exec")}; i.r|={("s","exec")}
    return i
def isv(rs): return {r for r in rs if r[0] in "va"}
def iss(rs): return {r for r in rs if r[0]=="s"}
def need(p,c):
    n=0
    pv=isv(p.w); ps=iss(p.w)
    if p.valu:
        if c.mfma and pv&c.r: n=max(n,3 if p.dot else 2)
        if c.mfma and ("s","exec") in p.w: n=max(n,4)
        if c.valu:
            if p.trans and not c.trans and pv&c.r: n=max(n,1)
            if p.trans and c.trans and pv&c.r: n=max(n,1)
            if c.dpp and pv&c.r: n=max(n,2)
            if c.dpp and ("s","exec") in p.w: n=max(n,5)
            if c.op.startswith("v_permlane") and pv&c.r: n=max(n,2)
            if c.op.startswith("v_permlane") and ("s","exec") in p.w: n=max(n,4)
            if c.op in("v_readlane_b32","v_readfirstlane_b32") and pv&c.r: n=max(n,1)
            if c.op in("v_readlane_b32","v_readfirstlane_b32","v_writelane_b32") and ("s","exec") in p.w: n=max(n,4)
            if ps&c.r:
                n=max(n,2)
                if c.op in("v_readlane_b32","v_writelane_b32","v_div_fmas_f32"): n=max(n,4)
            if p.sdwa_dst and pv&(c.r|c.w): n=max(n,1)
            if p.dot and pv&(c.r|c.w):
                if not(c.op==p.op and not (pv & (regs_of(c.ops[1])|regs_of(c.ops[2])))): n=max(n,3)
        if p.dot and (c.vmem or c.ds) and pv&c.r: n=max(n,3)
        if c.vmem and ps&c.r: n=max(n,5)
        if c.salu and ps&c.r: n=max(n,1)
    if p.mfma:
        P={2:(5,4,2,1),4:(8,6,0,3),8:(12,10,0,7)}[p.passes]
        if c.mfma:
            if p.w&c.srcAB: n=max(n,P[0])
            if p.w&c.srcC:
                n=max(n, P[2] if (p.w==c.srcC and p.passes==c.passes) else P[1])
            elif p.w&c.w: n=max(n,P[1])
        else:
            if (c.valu and p.w&(c.r|c.w)) or ((c.vmem or c.ds) and p.w&(c.r|c.w)): n=max(n,P[0])
            if c.valu and p.srcC&c.w: n=max(n,P[3])
    if p.salu and ("s","m0") in p.w and (c.lds_dma or (c.ds and "addtid" in c.op)): n=max(n,1)
    if p.wide and (p.wide&c.w): n=max(n,2 if (c.valu or c.mfma) else 1)
    return n
def states(i):
    if i.op=="s_nop": return int(i.ops[0],0)+1
    return 1
def fix(lines, verbose=False):
    ins=[parse(l) for l in lines]
    snaps={}
    for rnd in range(3):
        out=[]; hist=[]
        added=0
        for i in ins:
            if i.op is None:
                if i.label and i.label in snaps:
                    for snap in snaps[i.label].values():
                        hist = hist + [[p,a] for p,a in snap]
                out.append(i.text); continue
            n=0
            for p,a in hist:
                n=max(n,need(p,i)-a)
            if n>0:
                added+=n
                k=n
                while k>0:
                    t=min(k,16); out.append(f"    s_nop {t-1}"); k-=t
                for h in hist: h[1]+=n
            out.append(i.text)
            st=states(i)
            for h in hist: h[1]+=st
            hist=[h for h in hist if h[1]<21]
            hist.append([i,0])
            if i.op.startswith(("s_cbranch","s_branch")):
                snaps.setdefault(i.ops[0],{})[id(i)]=[(p,a) for p,a in hist]
                if i.op=="s_branch": hist=[]
            if i.op=="s_endpgm": hist=[]
    if verbose: print("nops added:",added)
    return out
```

```python
import sys
sys.path.insert(0,'gen')
from common import *
from k1 import gen_k1
ks=[gen_k1()]
try:
    from k2 import gen_k2; ks.append(gen_k2())
    from k3 import gen_k3; ks.append(gen_k3())
    from k4 import gen_k4; ks.append(gen_k4())
except ImportError as e: print(e)
out = sys.argv[1] if len(sys.argv)>1 else "cur.s"
finish(out, ks)
```

```python
import sys
sys.path.insert(0,'gen')
from common import *
from asmlib import emit
from k1 import gen_k1
from k2 import gen_k2
from k3 import gen_k3
from k4 import gen_k4
def null():
    k=K("nul_kernel",256,64,0,8); k("s_endpgm"); return k
ks=[gen_k1(),gen_k2(),gen_k3(),gen_k4(),null()]
for k in ks: k.lines=hazard.fix(k.lines)
k1,k2,k3,k4,n=ks
emit("a.s",ks[:4])
emit("b.s",ks,[k1,k2,k3,k4,n,n,n,n])
emit("c.s",ks[:4],[k1,k2,k3,k4,k4])
emit("d.s",ks[:4],[k1,k2,k3,k3,k4])
emit("e.s",ks[:4],[k1,k2,k2,k3,k4])
emit("f.s",ks[:4],[k1,k1,k2,k3,k4])
```

```python
from common import *
def gen_k1():
    k = K("k1_kernel", 256, 512, 8*2112 + 4096*2, 64)
    ROWS = 2112
    CSL = 8*ROWS
    k("""
    s_cmp_ge_u32 s2, 256
    s_cbranch_scc1 L1_end
    """)
    stamp(k,0,True); stamp(k,1)
    k("""
    s_load_dwordx2 s[4:5], s[0:1], 0
    s_load_dwordx4 s[12:15], s[0:1], 64
    s_load_dwordx2 s[20:21], s[0:1], 104
    v_lshrrev_b32 v1, 6, v0
    v_and_b32 v2, 63, v0
    v_readfirstlane_b32 s3, v1
    s_cmp_ge_u32 s3, 4
    s_cbranch_scc1 L1_cs
    """)
    k("""
    s_lshl_b32 s22, s2, 13
    s_lshl_b32 s23, s3, 11
    s_add_u32 s22, s22, s23
    v_lshlrev_b32 v3, 4, v2
    s_waitcnt lgkmcnt(0)
    """)
    srd(k, 4, 2048*512*2)
    k("""
    buffer_load_dwordx4 v[8:11], v3, s[4:7], s22 offen
    buffer_load_dwordx4 v[12:15], v3, s[4:7], s22 offen offset:1024
    """)
    srd_off(k, 8, 20, WS_E, 0x400000)
    k(f"""
    v_mov_b32 v1, 0x3b000000
    s_mul_i32 s24, s3, {2*ROWS}
    v_lshlrev_b32 v4, 5, v2
    v_add_u32 v4, s24, v4
    v_bfe_u32 v5, v2, 2, 2
    v_mul_u32_u24 v5, {ROWS}, v5
    v_lshrrev_b32 v6, 4, v2
    v_lshl_add_u32 v5, v6, 5, v5
    v_and_b32 v6, 3, v2
    v_lshl_add_u32 v5, v6, 3, v5
    s_lshl_b32 s24, s3, 9
    v_add_u32 v5, s24, v5
    v_lshrrev_b32 v7, 2, v2
    v_lshlrev_b32 v7, 14, v7
    v_lshl_add_u32 v7, v6, 4, v7
    s_lshl_b32 s24, s3, 20
    s_lshl_b32 s25, s2, 6
    s_add_u32 s24, s24, s25
    """)
    for i in range(2):
        k(f"s_waitcnt vmcnt({1-i})")
        for j in range(4):
            k(f"v_lshlrev_b32 v{16+8*i+2*j}, 16, v{8+4*i+j}")
            k(f"v_and_b32 v{17+8*i+2*j}, 0xffff0000, v{8+4*i+j}")
        f = 16+8*i
        S, Q = 32+2*i, 33+2*i
        k(f"v_add_f32 v{S}, v{f}, v{f+1}\nv_mul_f32 v{Q}, v{f}, v{f}")
        k(f"v_fmac_f32 v{Q}, v{f+1}, v{f+1}")
        for j in range(2,8):
            k(f"v_add_f32 v{S}, v{S}, v{f+j}\nv_fmac_f32 v{Q}, v{f+j}, v{f+j}")
    for dpp in ("row_shr:1","row_shr:2","row_shr:4","row_shr:8"):
        for r in range(32,36):
            k(f"v_add_f32_dpp v{r}, v{r}, v{r} {dpp} row_mask:0xf bank_mask:0xf bound_ctrl:1")
    for dpp in ("row_bcast:15 row_mask:0xa","row_bcast:31 row_mask:0xc"):
        for r in range(32,36):
            k(f"v_add_f32_dpp v{r}, v{r}, v{r} {dpp} bank_mask:0xf")
    for r in range(4):
        k(f"v_readlane_b32 s{28+r}, v{32+r}, 63")
    for i in range(2):
        M, V, T = 36+3*i, 37+3*i, 38+3*i
        k(f"""
        v_mul_f32 v{M}, s{28+2*i}, v1
        v_mul_f32 v{V}, s{29+2*i}, v1
        v_fma_f32 v{V}, -v{M}, v{M}, v{V}
        v_max_f32 v{V}, 0, v{V}
        v_cvt_pk_bf16_f32 v{T}, v{M}, v{V}
        v_lshlrev_b32 v{M}, 16, v{T}
        v_and_b32 v{V}, 0xffff0000, v{T}
        v_add_f32 v{V}, 0x3727c5ac, v{V}
        v_cvt_pk_bf16_f32 v{V}, v{V}, v{V}
        v_and_b32 v{V}, 0xffff0000, v{V}
        v_sqrt_f32 v{V}, v{V}
        v_cvt_pk_bf16_f32 v{V}, v{V}, v{V}
        v_and_b32 v{V}, 0xffff0000, v{V}
        v_rcp_f32 v{V}, v{V}
        """)
    for i in range(2):
        M, V = 36+3*i, 37+3*i
        f = 16+8*i; o = 44+8*i
        for j in range(8): k(f"v_sub_f32 v{f+j}, v{f+j}, v{M}")
        for j in range(4): k(f"v_cvt_pk_bf16_f32 v{o+2*j}, v{f+2*j}, v{f+2*j+1}")
        for j in range(4):
            k(f"v_lshlrev_b32 v{f+2*j}, 16, v{o+2*j}\nv_and_b32 v{f+2*j+1}, 0xffff0000, v{o+2*j}")
        for j in range(8): k(f"v_mul_f32 v{f+j}, v{f+j}, v{V}")
        for j in range(4):
            k(f"v_cvt_pk_bf16_f32 v{o+2*j}, v{f+2*j}, v{f+2*j+1}\nv_mov_b32 v{o+2*j+1}, v{8+4*i+j}")
        k(f"ds_write_b128 v4, v[{o}:{o+3}] offset:{i*ROWS}\nds_write_b128 v4, v[{o+4}:{o+7}] offset:{i*ROWS+16}")
    k("s_waitcnt lgkmcnt(0)\ns_barrier")
    for it in range(4):
        k(f"ds_read_b64_tr_b16 v[{16+4*it}:{17+4*it}], v5 offset:{it*128}")
        k(f"ds_read_b64_tr_b16 v[{18+4*it}:{19+4*it}], v5 offset:{it*128+4*ROWS}")
    for it in range(4):
        k(f"s_waitcnt lgkmcnt({6-2*it})")
        k(f"buffer_store_dwordx4 v[{16+4*it}:{19+4*it}], v7, s[8:11], s24 offen")
        if it<3: k(f"s_add_u32 s24, s24, {16*16384}")
    stamp(k,2); stamp(k,3); stamp(k,4); stamp(k,5,True); stamp_flush(k,1,6,20,3,vt=60)
    k("s_endpgm")
    k(f"""
    L1_cs:
    s_cmp_ge_u32 s2, 224
    s_cbranch_scc1 L1_end
    ; kchunk = b/56 ; cc = b%56 ; mat = cc/28 ; col0 = (cc%28)*64
    s_mul_i32 s22, s2, 1171
    s_lshr_b32 s22, s22, 16
    s_mul_i32 s23, s22, 56
    s_sub_u32 s23, s2, s23           ; cc
    s_cmp_ge_u32 s23, 28
    s_cselect_b32 s25, 28, 0
    s_cselect_b32 s26, 1, 0
    s_sub_u32 s25, s23, s25          ; cc%28
    s_lshl_b32 s25, s25, 7           ; col0*2
    s_mul_i32 s24, s22, {128*3584}
    s_add_u32 s24, s24, s25          ; soffset
    v_and_b32 v3, 255, v0
    v_lshrrev_b32 v4, 3, v3          ; rg
    v_mul_u32_u24 v4, 3584, v4
    v_and_b32 v5, 7, v3
    v_lshl_add_u32 v4, v5, 4, v4
    s_waitcnt lgkmcnt(0)
    s_cmp_eq_u32 s26, 0
    s_cselect_b32 s4, s12, s14
    s_cselect_b32 s5, s13, s15
    """)
    srd(k, 4, 512*1792*2)
    for i in range(4):
        k(f"buffer_load_dwordx4 v[{8+4*i}:{11+4*i}], v4, s[4:7], s24 offen")
        if i<3: k(f"s_add_u32 s24, s24, {32*3584}")
    srd_off(k, 8, 20, WS_CS, 4*3584*4)
    k(f"""
    v_lshrrev_b32 v6, 4, v3
    v_lshlrev_b32 v6, 8, v6
    v_lshl_add_u32 v6, v5, 5, v6
    s_mul_i32 s24, s22, {3584*4}
    s_lshl_b32 s25, s23, 8
    s_add_u32 s24, s24, s25
    v_lshlrev_b32 v7, 2, v2
    """)
    for i in range(4):
        k(f"s_waitcnt vmcnt({3-i})")
        for j in range(4):
            if i==0:
                k(f"v_lshlrev_b32 v{24+2*j}, 16, v{8+j}\nv_and_b32 v{25+2*j}, 0xffff0000, v{8+j}")
            else:
                k(f"v_lshlrev_b32 v32, 16, v{8+4*i+j}\nv_and_b32 v33, 0xffff0000, v{8+4*i+j}")
                k(f"v_add_f32 v{24+2*j}, v{24+2*j}, v32\nv_add_f32 v{25+2*j}, v{25+2*j}, v33")
    for j in range(8):
        k(f"v_add_f32_dpp v{24+j}, v{24+j}, v{24+j} row_ror:8 row_mask:0xf bank_mask:0xf")
    k(f"""
    ds_write_b128 v6, v[24:27] offset:{CSL}
    ds_write_b128 v6, v[28:31] offset:{CSL+16}
    s_waitcnt lgkmcnt(0)
    s_barrier
    s_cmp_lg_u32 s3, 4
    s_cbranch_scc1 L1_end
    """)
    for p in range(16):
        k(f"ds_read_b32 v{8+p}, v7 offset:{CSL+p*256}")
    k("s_waitcnt lgkmcnt(0)")
    for st in (8,4,2,1):
        for p in range(st): k(f"v_add_f32 v{8+p}, v{8+p}, v{8+p+st}")
    k("""
    buffer_store_dword v8, v7, s[8:11], s24 offen
    L1_end:
    s_endpgm
    """)
    return k
```

```python
from common import *
TB=0; TA=33792; TBL=16896; TROW=528
UC=67584; UCC=4640; UCH=4*UCC
XT=104704; T1=112896
KC=121088; KCC=4224
LDS2=137984
LOG2E="0x3fb8aa3b"; INV2PI="0x3e22f983"
def cmul(k, dst, x, w, tmp):
    k(f"v_pk_mul_f32 v[{tmp}:{tmp+1}], v[{x}:{x+1}], v[{w}:{w+1}] op_sel_hi:[0,1]")
    k(f"v_pk_fma_f32 v[{dst}:{dst+1}], v[{x}:{x+1}], v[{w}:{w+1}], v[{tmp}:{tmp+1}] op_sel:[1,1,0] op_sel_hi:[1,0,1] neg_lo:[0,1,0]")
def direct(k, dst, lr, fr, P, t):
    Pl = {1:None, 8:"0x41000000", 256:"0x43800000"}[P]
    if Pl:
        k(f"v_mul_f32 v{t}, {Pl}, v{lr}\nv_mul_f32 v{t+1}, {Pl}, v{fr}")
        k(f"v_exp_f32 v{t}, v{t}\nv_fract_f32 v{t+1}, v{t+1}")
    else:
        k(f"v_exp_f32 v{t}, v{lr}\nv_fract_f32 v{t+1}, v{fr}")
    k(f"v_cos_f32 v{dst}, v{t+1}\nv_sin_f32 v{dst+1}, v{t+1}")
    k(f"v_mul_f32 v{dst}, v{dst}, v{t}\nv_mul_f32 v{dst+1}, v{dst+1}, v{t}")
def rho(r,h): return (r&3)+8*(r>>2)+4*h
def gen_k2():
    k = K("k2_kernel", 256, 512, LDS2, 200)
    k(f"""
    s_cmp_ge_u32 s2, 256
    s_cbranch_scc1 L2_end
    """)
    stamp(k,0,True); stamp(k,1)
    k(f"""
    s_load_dwordx8 s[8:15], s[0:1], 8
    s_load_dwordx4 s[16:19], s[0:1], 40
    s_load_dwordx2 s[20:21], s[0:1], 104
    v_lshrrev_b32 v1, 6, v0
    v_and_b32 v2, 63, v0                     ; lane
    v_and_b32 v3, 255, v0                    ; b
    v_readfirstlane_b32 s3, v1               ; wave
    s_lshl_b32 s22, s2, 2
    s_lshl_b32 s23, s2, 14
    s_lshl_b32 s24, s2, 9
    v_lshlrev_b32 v4, 1, v3
    v_lshlrev_b32 v5, 6, v3                  ; E voffset = b*64
    v_subrev_u32 v6, 64, v5                  ; prev
    s_lshr_b32 s25, s3, 2
    s_lshl_b32 s26, s25, 4
    s_waitcnt lgkmcnt(0)
    s_load_dword s27, s[16:17], s22
    s_load_dword s28, s[18:19], s22
    s_add_u32 s32, s20, s23
    s_addc_u32 s33, s21, 0
    s_mov_b32 s34, 16384
    s_mov_b32 s35, 0x20000
    s_mov_b32 s36, s8
    s_mov_b32 s37, s9
    s_mov_b32 s38, {512*128*2}
    s_mov_b32 s39, 0x20000
    s_mov_b32 s40, s10
    s_mov_b32 s41, s11
    s_mov_b32 s42, {512*128*2}
    s_mov_b32 s43, 0x20000
    s_mov_b32 s44, s12
    s_mov_b32 s45, s13
    s_mov_b32 s46, {512*128*2}
    s_mov_b32 s47, 0x20000
    s_mov_b32 s48, s14
    s_mov_b32 s49, s15
    s_mov_b32 s50, {512*128*2}
    s_mov_b32 s51, 0x20000
    buffer_load_ushort v8, v4, s[36:39], s24 offen
    buffer_load_ushort v9, v4, s[40:43], s24 offen
    buffer_load_ushort v10, v4, s[44:47], s24 offen
    buffer_load_ushort v11, v4, s[48:51], s24 offen
    buffer_load_dwordx4 v[12:15], v6, s[32:35], s26 offen
    buffer_load_dwordx4 v[16:19], v5, s[32:35], s26 offen
    buffer_load_dwordx4 v[20:23], v5, s[32:35], s26 offen offset:32
    """)
    srd_off(k, 52, 20, WS_HT, 512*2048*2)
    k(f"""
    v_mov_b32 v24, 0
    v_mov_b32 v25, 0
    v_mov_b32 v26, 0
    v_mov_b32 v27, 0
    s_mul_i32 s29, s3, {UCC}
    s_add_u32 s29, s29, {UC}
    v_lshlrev_b32 v7, 4, v2
    v_add_u32 v28, s29, v7
    s_and_b32 s29, s3, 3
    s_mul_i32 s29, s29, {KCC}
    s_add_u32 s29, s29, {KC}
    v_add_u32 v29, s29, v7
    s_mov_b64 exec, 0xffffff
    ds_write_b128 v28, v[24:27]
    s_mov_b64 exec, 0x7f
    ds_write_b128 v29, v[24:27]
    s_mov_b64 exec, -1
    s_bfe_u32 s30, s3, 0x10001               ; ch' = (w>>1)&1
    s_mul_i32 s29, s30, {TBL}
    s_mul_i32 s31, s25, {TA}
    s_add_u32 s29, s29, s31
    s_and_b32 s31, s3, 1
    s_lshl_b32 s31, s31, 8
    s_add_u32 s29, s29, s31
    v_lshlrev_b32 v30, 2, v2
    v_add_u32 v30, s29, v30
    s_mul_i32 s29, s25, {UCH}
    s_add_u32 s29, s29, {UC+24*16}
    v_lshlrev_b32 v31, 4, v3
    v_add_u32 v32, s29, v31
    s_lshl_b32 s29, s25, 12
    s_add_u32 s29, s29, {XT}
    v_add_u32 v31, s29, v31
    s_waitcnt lgkmcnt(0)
    s_lshl_b32 s29, s30, 4
    s_lshr_b32 s27, s27, s29
    s_lshl_b32 s27, s27, 16
    s_lshr_b32 s28, s28, s26
    s_lshl_b32 s28, s28, 16                  ; D (f32 bits)
    v_mov_b32 v33, {LOG2E}
    v_mul_f32 v34, s27, v33
    v_exp_f32 v34, v34
    v_cvt_pk_bf16_f32 v34, v34, v34
    v_and_b32 v34, 0xffff0000, v34           ; dt
    s_waitcnt vmcnt(5)
    v_lshlrev_b32 v8, 16, v8
    v_lshlrev_b32 v9, 16, v9
    v_mul_f32 v8, v8, v33
    v_exp_f32 v8, v8
    v_mul_f32 v9, v9, v34                    ; ai*dt
    v_cvt_pk_bf16_f32 v8, v8, v8
    v_and_b32 v8, 0xffff0000, v8
    v_mul_f32 v8, v8, v34                    ; ea*dt
    v_mul_f32 v9, {INV2PI}, v9               ; fr
    v_mul_f32 v8, 0xbfb8aa3b, v8
    s_cmp_lg_u32 s25, 0
    s_cbranch_scc1 L2_aside
    """)
    W=36; X0=38; X1=40; T=42; C=44
    direct(k, W, 8, 9, 8, T)
    k(f"v_mov_b32 v{C}, 0x00003f80\nds_write_b32 v30, v{C}")
    k(f"v_cvt_pk_bf16_f32 v{C+1}, v{W}, v{W+1}\nds_write_b32 v30, v{C+1} offset:{TROW}")
    cur=W
    for j in range(2,32):
        nxt = X0 if cur!=X0 else X1
        cmul(k, nxt, cur, W, T)
        c=C+(j&3)
        k(f"v_cvt_pk_bf16_f32 v{c}, v{nxt}, v{nxt+1}\nds_write_b32 v30, v{c} offset:{TROW*j}")
        cur=nxt
    k("s_branch L2_uprep")
    k("L2_aside:")
    Z1=36; Z8=38; V=40; Z2=42; Z4=44; T=46; E=48; X0=50; X1=52; CC=54; C=56
    k("v_sub_f32 v9, 0, v9")
    direct(k, Z1, 8, 9, 1, T)
    direct(k, Z8, 8, 9, 8, T)
    direct(k, V, 8, 9, 256, T)
    k(f"""
    s_waitcnt vmcnt(3)
    v_add_f32 v34, v34, v34
    v_lshlrev_b32 v10, 16, v10
    v_lshlrev_b32 v11, 16, v11
    v_mul_f32 v{CC}, v10, v34
    v_mul_f32 v{CC+1}, -v11, v34
    """)
    cnt=[0]
    def put(src, rows):
        c=C+(cnt[0]&3); cnt[0]+=1
        k(f"v_cvt_pk_bf16_f32 v{c}, v{src}, v{src+1}")
        for (r,h) in rows: k(f"ds_write_b32 v30, v{c} offset:{TROW*rho(r,h)}")
    put(CC,[(0,0)])
    cmul(k,Z2,Z1,Z1,T)
    cur=CC
    for r in range(1,8):
        nxt = X0 if cur!=X0 else X1
        cmul(k,nxt,cur,Z1,T); put(nxt,[(r,0)]); cur=nxt
    cmul(k,Z4,Z2,Z2,T)
    cmul(k,E,CC,V,T); put(E,[(0,1),(1,1)])
    cur=E
    for rows in ([(2,1)],[(3,1),(4,1),(5,1)],[(6,1)],[(7,1)]):
        nxt = X0 if cur!=X0 else X1
        cmul(k,nxt,cur,Z2,T); put(nxt,rows); cur=nxt
    Es=[E,CC]
    ecur=E
    for h in (0,1):
        en = CC if ecur==E else E
        cmul(k,en,ecur,V,T); put(en,[(8,h)]); ecur=en
        cmul(k,X0,ecur,Z4,T); put(X0,[(9,h)])
        cmul(k,X1,X0,Z4,T); put(X1,[(10,h)])
    for (r,h) in ((11,0),(11,1),(13,0),(13,1)):
        en = CC if ecur==E else E
        cmul(k,en,ecur,V,T); put(en,[(r,h)]); ecur=en
        cmul(k,X0,ecur,Z8,T); put(X0,[(r+1,h)])
    k("L2_uprep:")
    k("s_waitcnt vmcnt(0)")
    for j in range(6): k(f"v_mov_b32 v{36+j}, v{13+j}")
    k(f"""
    ds_write_b128 v32, v[14:17] offset:{UCC}
    ds_write_b128 v32, v[16:19] offset:{3*UCC}
    ds_write_b128 v31, v[20:23]
    ds_write_b128 v32, v[36:39]
    ds_write_b128 v32, v[38:41] offset:{2*UCC}
    """)
    for j in range(4):
        k(f"v_lshlrev_b32 v{44+2*j}, 16, v{16+j}\nv_and_b32 v{45+2*j}, 0xffff0000, v{16+j}")
    for j in range(8): k(f"v_mul_f32 v{44+j}, s28, v{44+j}")
    for j in range(4): k(f"v_cvt_pk_bf16_f32 v{52+j}, v{44+2*j}, v{45+2*j}")
    k(f"ds_write_b128 v31, v[52:55] offset:{T1-XT}")
    k(f"""
    v_and_b32 v4, 31, v2
    v_mul_u32_u24 v4, {TROW}, v4
    v_lshrrev_b32 v5, 5, v2
    v_lshl_add_u32 v4, v5, 4, v4
    s_mul_i32 s29, s30, {TBL}
    v_add_u32 v4, s29, v4
    s_waitcnt lgkmcnt(0)
    s_barrier
    s_cmp_lg_u32 s25, 0
    s_cbranch_scc1 L2_end
    """)
    stamp(k,2)
    if STAMP: k("s_waitcnt lgkmcnt(0)")
    NB=6
    def rd(s):
        b=64+8*(s%NB)
        k(f"ds_read_b128 v[{b}:{b+3}], v4 offset:{TA+32*s}\nds_read_b128 v[{b+4}:{b+7}], v4 offset:{TB+32*s}")
    for s in range(NB-1): rd(s)
    k(f"""
    s_mul_i32 s29, s3, {KCC}
    s_add_u32 s29, s29, {KC+7*16}
    v_add_u32 v5, s29, v7
    v_and_b32 v8, 1, v2
    v_mul_u32_u24 v8, {KCC}, v8
    v_bfe_u32 v9, v2, 1, 3
    v_lshrrev_b32 v10, 4, v2                 ; q
    v_sub_u32 v9, v9, v10
    v_add_u32 v9, 3, v9
    v_lshl_add_u32 v8, v9, 4, v8
    s_mul_i32 s29, s30, {2*KCC}
    s_and_b32 s31, s3, 1                     ; c-half
    s_lshl_b32 s56, s31, 8                   ; 64*4*half
    s_add_u32 s29, s29, s56
    s_add_u32 s29, s29, {KC}
    v_add_u32 v8, s29, v8
    v_and_b32 v9, 3, v2
    v_mul_u32_u24 v11, {UCC}, v9
    v_bfe_u32 v12, v2, 2, 2
    v_lshl_add_u32 v13, v12, 3, v10
    v_lshl_add_u32 v11, v13, 4, v11
    s_mul_i32 s29, s30, {UCH}
    s_sub_u32 s29, s29, s56
    s_add_u32 s29, s29, {UC+16*16}
    v_add_u32 v11, s29, v11
    v_lshlrev_b32 v13, 5, v10
    v_lshl_add_u32 v13, v9, 2, v13
    v_lshl_add_u32 v13, v12, 7, v13
    v_and_b32 v14, 1, v2
    v_cmp_eq_u32 s[58:59], 1, v14
    """)
    D=16
    for s in range(16):
        if s+NB-1<16: rd(s+NB-1)
        outstanding = 2*(min(15,s+NB-1)-s)
        k(f"s_waitcnt lgkmcnt({outstanding})")
        b=64+8*(s%NB)
        k(f"v_mfma_f32_32x32x16_bf16 v[{D}:{D+15}], v[{b}:{b+3}], v[{b+4}:{b+7}], {'0' if s==0 else f'v[{D}:{D+15}]'}")
    e=lambda r: D+r
    O=32
    k(f"v_cndmask_b32 v48, v{e(11)}, v{e(12)}, s[58:59]\nv_cndmask_b32 v49, v{e(13)}, v{e(14)}, s[58:59]")
    k("s_cmp_eq_u32 s31, 0\ns_cbranch_scc1 L2_a0")
    def grp(idx, pairs):
        o=O+4*idx
        for t,(lo,hi) in enumerate(pairs):
            if t>0 and pairs[t-1]==(lo,hi): k(f"v_mov_b32 v{o+t}, v{o+t-1}")
            else: k(f"v_cvt_pk_bf16_f32 v{o+t}, v{lo}, v{hi}")
        k(f"ds_write_b128 v5, v[{o}:{o+3}] offset:{idx*1024}")
    grp(0,[(e(7),e(6)),(e(5),e(4)),(e(3),e(2)),(e(1),e(0))])
    grp(1,[(e(10),e(10)),(e(9),e(9)),(e(9),e(8)),(e(8),e(8))])
    grp(2,[(e(12),e(12)),(e(12),48),(e(11),e(11)),(e(11),e(11))])
    grp(3,[(e(14),e(14)),(e(14),49),(e(13),e(13)),(e(13),e(13))])
    k("s_branch L2_conv\nL2_a0:")
    k("v_mov_b32 v50, 0")
    k(f"v_mov_b32_dpp v50, v{e(7)} wave_shr:1 row_mask:0xf bank_mask:0xf bound_ctrl:1")
    grp(1,[(e(10),e(9)),(e(9),e(9)),(e(8),e(8)),(e(8),e(8))])
    grp(2,[(e(12),e(12)),(48,e(11)),(e(11),e(11)),(e(11),e(11))])
    grp(3,[(e(14),e(14)),(49,e(13)),(e(13),e(13)),(e(13),e(13))])
    grp(0,[(e(6),e(5)),(e(4),e(3)),(e(2),e(1)),(e(0),50)])
    k("L2_conv:")
    AF=[64,128]; BF=[96,160]; ACC=16
    def rdA(buf,g,cl): k(f"ds_read_b128 v[{AF[buf]+4*g}:{AF[buf]+4*g+3}], v8 offset:{512*g+64*cl}")
    def rdB(buf,t,cl): k(f"ds_read_b128 v[{BF[buf]+4*t}:{BF[buf]+4*t+3}], v11 offset:{512*t+(12-4*cl)*16}")
    k("s_waitcnt lgkmcnt(0)")
    for t in range(8): rdB(0,t,0)
    k("s_barrier")
    stamp(k,3)
    if STAMP: k("s_waitcnt lgkmcnt(0)")
    for g in range(8): rdA(0,g,0)
    first=[True]*8
    for cl in range(4):
        buf=cl&1
        pend=[]
        if cl<3:
            for g in range(8): pend += [("A",g),("B",g)]
        seq=[(t,g) for t in range(8) for g in range(t+1)] if cl>0 else [(t,g) for g in range(8) for t in range(g,8)]
        issued=0
        for idx,(t,g) in enumerate(seq):
            if cl==0:
                if t==g: k(f"s_waitcnt lgkmcnt({min(15,7-g+issued)})")
            else:
                if g==0: k(f"s_waitcnt lgkmcnt({min(15,14-2*t+issued)})")
            a=AF[buf]+4*g; b=BF[buf]+4*(t-g); c=ACC+4*t
            k(f"v_mfma_f32_16x16x32_bf16 v[{c}:{c+3}], v[{a}:{a+3}], v[{b}:{b+3}], {'0' if first[t] else f'v[{c}:{c+3}]'}")
            first[t]=False
            start = 8 if cl==0 else 4
            if pend and idx>=start and (idx-start)%1==0 and (idx%2==0 or len(seq)-idx<=len(pend)+2):
                kind,j=pend.pop(0)
                (rdA if kind=="A" else rdB)(buf^1,j,cl+1); issued+=1
        assert not pend
    stamp(k,6)
    k(f"""
    s_lshl_b32 s29, s3, 12
    v_add_u32 v4, s29, v7
    s_xor_b32 s29, s3, 1
    s_lshl_b32 s29, s29, 12
    v_add_u32 v5, s29, v7
    s_lshl_b32 s29, s30, 12
    s_lshl_b32 s56, s31, 11
    s_add_u32 s29, s29, s56
    s_lshl_b32 s57, s2, 13
    s_add_u32 s57, s57, s29
    s_add_u32 s29, s29, {XT}
    v_add_u32 v6, s29, v13
    """)
    for t in range(4):
        k(f"ds_read_b32 v{64+4*t}, v6 offset:{512*t}\nds_read_b32 v{65+4*t}, v6 offset:{512*t+16}")
        k(f"ds_read_b32 v{66+4*t}, v6 offset:{512*t+T1-XT}\nds_read_b32 v{67+4*t}, v6 offset:{512*t+16+T1-XT}")
    k("s_cmp_eq_u32 s31, 0\ns_cbranch_scc1 L2_r0")
    for t in range(4): k(f"ds_write_b128 v4, v[{ACC+4*t}:{ACC+4*t+3}] offset:{1024*t}")
    k("s_waitcnt lgkmcnt(0)")
    for j in range(16): k(f"v_mov_b32 v{ACC+j}, v{ACC+16+j}")
    k("s_branch L2_r1\nL2_r0:")
    for t in range(4): k(f"ds_write_b128 v4, v[{ACC+16+4*t}:{ACC+16+4*t+3}] offset:{1024*t}")
    k("L2_r1:\ns_waitcnt lgkmcnt(0)\ns_barrier")
    for t in range(4): k(f"ds_read_b128 v[{96+4*t}:{99+4*t}], v5 offset:{1024*t}")
    for t in range(4):
        for hh in range(2):
            i=2*t+hh
            k(f"v_lshlrev_b32 v{112+2*i}, 16, v{64+4*t+hh}\nv_and_b32 v{113+2*i}, 0xffff0000, v{64+4*t+hh}")
            k(f"v_lshlrev_b32 v{128+2*i}, 16, v{66+4*t+hh}\nv_and_b32 v{129+2*i}, 0xffff0000, v{66+4*t+hh}")
    for t in range(4):
        k(f"s_waitcnt lgkmcnt({3-t})")
        a=ACC+4*t
        for r in range(4): k(f"v_add_f32 v{a+r}, v{a+r}, v{96+4*t+r}")
        def rnd():
            k(f"v_cvt_pk_bf16_f32 v{a}, v{a}, v{a+1}\nv_cvt_pk_bf16_f32 v{a+2}, v{a+2}, v{a+3}")
        def unp():
            k(f"v_and_b32 v{a+1}, 0xffff0000, v{a}\nv_and_b32 v{a+3}, 0xffff0000, v{a+2}")
            k(f"v_lshlrev_b32 v{a}, 16, v{a}\nv_lshlrev_b32 v{a+2}, 16, v{a+2}")
        rnd(); unp()
        for r in range(4): k(f"v_add_f32 v{a+r}, v{a+r}, v{128+4*t+r}")
        rnd(); unp()
        for r in range(4): k(f"v_add_f32 v{a+r}, v{a+r}, v{112+4*t+r}")
        rnd()
        k(f"buffer_store_dword v{a}, v13, s[52:55], s57 offen offset:{512*t}")
        k(f"buffer_store_dword v{a+2}, v13, s[52:55], s57 offen offset:{512*t+16}")
    stamp(k,4); stamp(k,5,True); stamp_flush(k,2,7,20,3,vt=190)
    k("L2_end:\ns_endpgm")
    return k
```

```python
from common import *
NH=8; NW=6; HS=8192; WSL=14464; UOFF=7296
WB=NH*HS
MISC=WB+NW*WSL
PART=MISC; FS=MISC+4096; AP=MISC+6144
LDS3=MISC+6144+4096
CUM=[2,4,6,8,10,13,15,18,20,23,25,28,30,32,32,32]
def hb(j): return max(j,(CUM[j]-1)>>1)
NOSTAT=int(os.environ.get("K3_NOSTAT","0")); NODMA=int(os.environ.get("K3_NODMA","0")); RAMP=int(os.environ.get("K3_RAMP","1"))
def gen_k3():
    k = K("k3_kernel", 256, 768, LDS3, 168)
    k(f"""
    s_cmp_ge_u32 s2, 256
    s_cbranch_scc1 L3_end
    """)
    stamp(k,0,True); stamp(k,1)
    k(f"""
    s_load_dwordx4 s[12:15], s[0:1], 64
    s_load_dwordx2 s[20:21], s[0:1], 104
    v_lshrrev_b32 v1, 6, v0
    v_and_b32 v2, 63, v0
    v_readfirstlane_b32 s3, v1
    s_and_b32 s22, s2, 1
    s_lshl_b32 s22, s22, 3
    s_bfe_u32 s23, s2, 0x30003
    s_add_u32 s22, s22, s23          ; rb
    s_bfe_u32 s23, s2, 0x20001
    s_lshl_b32 s23, s23, 2
    s_lshr_b32 s24, s2, 6
    s_add_u32 s23, s23, s24          ; fs
    s_and_b32 s25, s3, 3
    s_cmp_lt_u32 s3, 4
    s_cbranch_scc1 L3_comp
    s_cmp_lt_u32 s3, 8
    s_cbranch_scc1 L3_stat
    """)
    k(f"""
    v_lshrrev_b32 v3, 4, v2
    v_and_b32 v4, 15, v2
    v_lshlrev_b32 v5, 2, v3
    v_xor_b32 v4, v4, v5
    v_lshlrev_b32 v4, 4, v4
    v_lshl_add_u32 v4, v3, 12, v4
    s_lshl_b32 s26, s25, 15
    v_add_u32 v4, s26, v4            ; H voffset 0
    v_add_u32 v5, {16384-1024}, v4   ; H voffset 1
    s_lshl_b32 s26, s22, 8
    s_mul_i32 s27, s23, 224          ; W soffset (+ j*114688)
    s_lshl_b32 s28, s25, 11
    s_and_b32 s29, s25, 1
    s_mul_i32 s30, s29, {UOFF}
    s_add_u32 s30, s30, {WB}
    """)
    for i in range(7):
        k(f"""
        v_add_u32 v6, {64*i}, v2
        v_mul_u32_u24 v7, 4682, v6
        v_lshrrev_b32 v7, 16, v7
        v_mul_u32_u24 v16, 14, v7
        v_sub_u32 v6, v6, v16
        v_mul_u32_u24 v7, 3584, v7
        v_lshl_add_u32 v{8+i}, v6, 4, v7
        """)
        if i&3: k(f"v_subrev_u32 v{8+i}, {1024*(i&3)}, v{8+i}")
    k(f"""
    s_waitcnt lgkmcnt(0)
    s_cmp_eq_u32 s29, 0
    s_cselect_b32 s4, s12, s14
    s_cselect_b32 s5, s13, s15
    """)
    srd(k, 4, 512*1792*2)
    srd_off(k, 8, 20, WS_HT, 512*2048*2)
    k("s_cmp_ge_u32 s25, 2\ns_cbranch_scc1 L3_ld1")
    for par in (0,1):
        if par: k("L3_ld1:")
        q=[]
        def issue(kind,j):
            if j>15: return
            if NODMA and j>=int(os.environ.get("K3_NODMA")):
                return
            if kind=="H":
                k(f"s_add_u32 m0, s28, {(j%NH)*HS}\ns_add_u32 s31, s26, {j*131072}")
                k("buffer_load_dwordx4 v4, s[8:11], s31 offen lds\nbuffer_load_dwordx4 v5, s[8:11], s31 offen offset:1024 lds")
                q.extend([("H",j)]*2)
            else:
                if (j&1)!=par: return
                k(f"s_add_u32 m0, s30, {(j%NW)*WSL}\ns_add_u32 s31, s27, {j*114688}")
                for i in range(7):
                    if i==4: k(f"s_add_u32 m0, s30, {(j%NW)*WSL+4096}")
                    k(f"buffer_load_dwordx4 v{8+i}, s[4:7], s31 offen offset:{1024*(i&3)} lds")
                q.extend([("W",j)]*7)
        order="H0 W0 H1 W1 H2 H3 W2 H4 W3 H5 W4 H6 W5 H7".split()
        if RAMP: pre={-1:order[:6], 0:order[6:10], 1:order[10:]}
        else: pre={-1:order}
        for it in pre[-1]: issue(it[0],int(it[1:]))
        for j in range(16):
            need=[idx for idx,(kind,b) in enumerate(q) if (kind=="W" and b<=j) or (kind=="H" and b<=hb(j))]
            n=len(q)-1-max(need)
            k(f"s_waitcnt vmcnt({n})\ns_barrier")
            for it in pre.get(j,[]): issue(it[0],int(it[1:]))
            if j>=2: issue("H",j+NH-2); issue("W",j+NW-2)
        stamp(k,2); stamp_flush(k,3,3,20,3,vt=20)
        k("s_endpgm")
    k(f"""
    L3_stat:
    v_and_b32 v3, 255, v0
    v_lshrrev_b32 v4, 5, v3          ; blk
    v_lshlrev_b32 v4, 4, v4
    v_and_b32 v5, 15, v3
    v_add_u32 v4, v4, v5
    v_bfe_u32 v5, v3, 4, 1
    v_mul_u32_u24 v5, 1792, v5
    v_add_u32 v4, v4, v5
    v_lshlrev_b32 v4, 2, v4
    v_cmp_gt_u32 vcc, 224, v3
    v_mov_b32 v5, 0x7fffff00
    v_cndmask_b32 v4, v5, v4, vcc
    s_mul_i32 s26, s23, 448
    s_waitcnt lgkmcnt(0)
    """)
    srd_off(k, 8, 20, WS_CS, 4*3584*4)
    for p in range(4):
        k(f"buffer_load_dword v{8+p}, v4, s[8:11], s26 offen")
        if p<3: k(f"s_add_u32 s26, s26, {3584*4}")
    k(f"""
    v_lshlrev_b32 v3, 4, v3
    v_lshrrev_b32 v5, 4, v2
    v_lshlrev_b32 v6, 10, v5
    v_and_b32 v7, 15, v2
    v_lshl_add_u32 v6, v7, 4, v6
    s_lshl_b32 s26, s25, 8
    v_add_u32 v6, s26, v6
    s_lshl_b32 s26, s25, 2
    v_xor_b32 v7, s26, v7
    v_lshlrev_b32 v7, 5, v7
    v_and_b32 v12, 1, v5
    v_lshl_add_u32 v7, v12, 4, v7
    v_lshrrev_b32 v12, 1, v5
    v_lshl_add_u32 v7, v12, 9, v7
    s_lshl_b32 s26, s25, 10
    s_add_u32 s26, s26, {PART}
    v_add_u32 v7, s26, v7
    v_and_b32 v13, 31, v2
    s_lshl_b32 s26, s25, 5
    v_add_u32 v13, s26, v13
    v_lshlrev_b32 v14, 4, v13
    v_add_u32 v14, {FS}, v14
    v_lshlrev_b32 v13, 2, v13
    v_lshl_add_u32 v13, v12, 9, v13
    v_add_u32 v13, {PART}, v13
    v_add_u32 v3, {AP}, v3
    s_waitcnt vmcnt(0)
    v_add_f32 v8, v8, v9
    v_add_f32 v10, v10, v11
    v_add_f32 v8, v8, v10
    v_cvt_pk_bf16_f32 v9, v8, v8
    v_and_b32 v9, 0xffff0000, v9     ; hi
    v_sub_f32 v8, v8, v9
    v_cvt_pk_bf16_f32 v10, v8, v8
    v_and_b32 v10, 0xffff0000, v10   ; mid
    v_sub_f32 v8, v8, v10
    v_cvt_pk_bf16_f32 v16, v9, v10
    v_cvt_pk_bf16_f32 v17, v8, 0
    v_mov_b32 v18, 0
    v_mov_b32 v19, 0
    ds_write_b128 v3, v[16:19]
    """)
    S=24; Q=32; RB=[40,44,48]; T=52
    done=0
    for j in range(16):
        if j==0: k("s_waitcnt lgkmcnt(0)")
        k("s_barrier")
        rs=list(range(done,CUM[j])); done=CUM[j]
        if NOSTAT and j>0: rs=[]
        for n,r in enumerate(rs):
            k(f"ds_read_b128 v[{RB[n]}:{RB[n]+3}], v6 offset:{((r>>1)%NH)*HS+(r&1)*4096}")
        for n,r in enumerate(rs):
            k(f"s_waitcnt lgkmcnt({len(rs)-1-n})")
            for d in range(4):
                src=RB[n]+d
                if r==0:
                    k(f"v_lshlrev_b32 v{S+2*d}, 16, v{src}\nv_and_b32 v{S+2*d+1}, 0xffff0000, v{src}")
                    k(f"v_mul_f32 v{Q+2*d}, v{S+2*d}, v{S+2*d}\nv_mul_f32 v{Q+2*d+1}, v{S+2*d+1}, v{S+2*d+1}")
                else:
                    t=T+2*(d&1)+ (1 if False else 0)
                    k(f"v_lshlrev_b32 v{t}, 16, v{src}\nv_and_b32 v{t+1}, 0xffff0000, v{src}")
                    k(f"v_add_f32 v{S+2*d}, v{S+2*d}, v{t}\nv_add_f32 v{S+2*d+1}, v{S+2*d+1}, v{t+1}")
                    k(f"v_fmac_f32 v{Q+2*d}, v{t}, v{t}\nv_fmac_f32 v{Q+2*d+1}, v{t+1}, v{t+1}")
        if j==13:
            for i in range(8): k(f"v_permlane32_swap_b32 v{S+i}, v{Q+i}")
            for i in range(8): k(f"v_add_f32 v{S+i}, v{S+i}, v{Q+i}")
            for i in range(4): k(f"v_permlane16_swap_b32 v{S+i}, v{S+4+i}")
            for i in range(4): k(f"v_add_f32 v{S+i}, v{S+i}, v{S+4+i}")
            k(f"ds_write_b128 v7, v[{S}:{S+3}]\ns_waitcnt lgkmcnt(0)")
        if j==14:
            for p in range(4): k(f"ds_read_b32 v{40+p}, v13 offset:{1024*p}")
            k(f"""
            v_mov_b32 v1, 0x3b000000
            s_waitcnt lgkmcnt(0)
            v_add_f32 v40, v40, v41
            v_add_f32 v42, v42, v43
            v_add_f32 v40, v40, v42
            v_mov_b32 v41, v40
            v_permlane32_swap_b32 v40, v41
            v_mul_f32 v40, v40, v1
            v_mul_f32 v41, v41, v1
            v_fma_f32 v41, -v40, v40, v41
            v_max_f32 v41, 0, v41
            v_cvt_pk_bf16_f32 v41, v41, v41
            v_and_b32 v41, 0xffff0000, v41
            v_add_f32 v41, 0x3727c5ac, v41
            v_cvt_pk_bf16_f32 v41, v41, v41
            v_and_b32 v41, 0xffff0000, v41
            v_sqrt_f32 v41, v41
            v_cvt_pk_bf16_f32 v44, -v40, -v40
            v_cvt_pk_bf16_f32 v41, v41, v41
            v_and_b32 v47, 0xffff0000, v41
            v_rcp_f32 v46, v47
            v_mov_b32 v45, v44
            v_mul_f32 v46, 0xbfb8aa3b, v46
            ds_write_b128 v14, v[44:47]
            s_waitcnt lgkmcnt(0)
            """)
    stamp(k,2); stamp_flush(k,3,3,20,3,vt=60)
    k("s_endpgm")
    NA=4; AW=16; BW=32; BP=40; ZS=44; ACC=56
    k(f"""
    L3_comp:
    s_setprio 1
    v_lshrrev_b32 v3, 5, v2          ; h
    v_bfe_u32 v4, v2, 2, 2           ; r
    v_lshl_add_u32 v5, v3, 3, v4     ; 8h + r
    v_bfe_u32 v6, v2, 4, 1           ; gq&1
    v_and_b32 v7, 3, v2
    v_lshlrev_b32 v7, 3, v7          ; c*8
    v_mul_u32_u24 v8, 224, v5
    v_mul_u32_u24 v9, {UOFF}, v6
    v_add3_u32 v8, v8, v9, v7
    v_add_u32 v8, {WB}, v8
    v_add_u32 v9, {4*WSL}, v8
    v_xor_b32 v10, s25, v4
    v_lshlrev_b32 v10, 6, v10
    v_lshl_add_u32 v10, v5, 8, v10
    v_lshl_add_u32 v10, v6, 5, v10
    v_add_u32 v10, v10, v7           ; vB
    v_and_b32 v11, 31, v2
    v_lshlrev_b32 v12, 4, v11
    s_lshl_b32 s26, s25, 9
    v_add_u32 v13, s26, v12
    v_add_u32 v13, {FS}, v13
    v_add_u32 v12, {AP}, v12
    v_cmp_eq_u32 vcc, 0, v3
    v_mov_b32 v{BP+2}, 0
    v_mov_b32 v{BP+3}, 0
    v_lshlrev_b32 v14, 4, v2
    s_lshl_b32 s26, s22, 2
    s_add_u32 s26, s26, s25
    s_mul_i32 s26, s26, 112
    s_mul_i32 s27, s23, 7
    s_add_u32 s26, s26, s27
    s_lshl_b32 s26, s26, 10
    s_waitcnt lgkmcnt(0)
    """)
    srd_off(k, 8, 20, WS_HG, 2048*1792*2)
    q=[]
    def rdA(t):
        b=AW+4*(t%NA)
        if t>=231: return
        if t>=224:
            k(f"ds_read_b128 v[{b}:{b+3}], v12 offset:{(t-224)*512}"); q.append(("A",t)); return
        s=t//7; fb=t%7; j=s>>1; kk=s&1; sl=j%NW
        va = 8 if sl<4 else 9
        off=(sl%4)*WSL + kk*16*224 + fb*32
        k(f"ds_read_b64_tr_b16 v[{b}:{b+1}], v{va} offset:{off}\nds_read_b64_tr_b16 v[{b+2}:{b+3}], v{va} offset:{off+4*224}")
        q.extend([("A",t)]*2)
    def rdB(s):
        b=BW+4*(s&1)
        if s==32:
            k(f"ds_read_b64 v[{BP}:{BP+1}], v13\nds_read_b64 v[{ZS}:{ZS+1}], v13 offset:8"); q.extend([("B",s)]*2); return
        j=s>>1; off=(j%NH)*HS+(s&1)*4096
        k(f"ds_read_b64_tr_b16 v[{b}:{b+1}], v10 offset:{off}\nds_read_b64_tr_b16 v[{b+2}:{b+3}], v10 offset:{off+1024}")
        q.extend([("B",s)]*2)
    k("s_barrier")
    stamp(k,2)
    if STAMP: k("s_waitcnt lgkmcnt(0)")
    rdB(0)
    for t in range(NA): rdA(t)
    for t in range(231):
        s=t//7; fb=t%7
        need=max(idx for idx,tag in enumerate(q) if tag==("A",t) or tag==("B",s))
        n=len(q)-1-need
        k(f"s_waitcnt lgkmcnt({n})")
        a=AW+4*(t%NA); c=ACC+16*fb
        if s==32:
            if fb==0:
                k(f"v_cndmask_b32 v{BP}, 0, v{BP}, vcc\nv_cndmask_b32 v{BP+1}, 0, v{BP+1}, vcc")
            b=BP
        else: b=BW+4*(s&1)
        k(f"v_mfma_f32_32x32x16_bf16 v[{c}:{c+15}], v[{a}:{a+3}], v[{b}:{b+3}], {'0' if s==0 else f'v[{c}:{c+15}]'}")
        if fb==7-NA and s<32:
            if s&1 and s<31: k("s_barrier")
            rdB(s+1)
        rdA(t+NA)
    stamp(k,3)
    for fb in range(7):
        c=ACC+16*fb; o=AW+4*(fb&3)
        for i in range(4): k(f"v_pk_mul_f32 v[{c+2*i}:{c+2*i+1}], v[{c+2*i}:{c+2*i+1}], v[{ZS}:{ZS+1}] op_sel_hi:[1,0]")
        for i in range(8): k(f"v_exp_f32 v{c+i}, v{c+i}")
        for i in range(4): k(f"v_pk_fma_f32 v[{c+2*i}:{c+2*i+1}], v[{c+2*i}:{c+2*i+1}], v[{ZS}:{ZS+1}], v[{ZS}:{ZS+1}] op_sel:[0,1,1] op_sel_hi:[1,1,1]")
        for i in range(8): k(f"v_rcp_f32 v{c+i}, v{c+i}")
        for i in range(4): k(f"v_pk_mul_f32 v[{c+2*i}:{c+2*i+1}], v[{c+2*i}:{c+2*i+1}], v[{c+8+2*i}:{c+9+2*i}]")
        for i in range(4): k(f"v_cvt_pk_bf16_f32 v{o+i}, v{c+2*i}, v{c+2*i+1}")
        if fb==4: k("s_add_u32 s26, s26, 4096")
        k(f"buffer_store_dwordx4 v[{o}:{o+3}], v14, s[8:11], s26 offen offset:{1024*(fb&3)}")
    stamp(k,4); stamp(k,5,True); stamp_flush(k,3,6,20,3,vt=48)
    k("L3_end:\ns_endpgm")
    return k
```

```python
import sys, os; sys.path.insert(0,'mb')
from asmlib import *
import hazard
FLAGSTR=int(os.environ.get("FLAGSTR","4"))
GCOMB=int(os.environ.get("GCOMB","1"))
DELAY=int(os.environ.get("DELAY","0"))
out=sys.argv[1]
GATHER=int(os.environ.get("GATHER","1")); H2=os.environ.get("H2","flag"); H3=os.environ.get("H3","flag"); GS=int(os.environ.get("GS","64")); W1=int(os.environ.get("W1","0")); W2=int(os.environ.get("W2","0"))
def dly(n,lab):
    if not n: return
    k(f"s_mov_b32 s31, {n}\n{lab}:")
    for j in range(8): k("v_add_u32 v50, v50, v50")
    k(f"s_sub_u32 s31, s31, 1\ns_cmp_lg_u32 s31, 0\ns_cbranch_scc1 {lab}")
G=0x100000; F2=0x200000; F3=0x280000; H=0x400000; HG=0x800000; TS=0x3000000
k = K("p_kernel", 256, 256, 65536, 256)
def ts(i): k(f"s_memrealtime s[{60+2*i}:{61+2*i}]")
k("""
s_cmp_ge_u32 s2, 256
s_cbranch_scc1 L_end
""")
ts(0)
k(f"""
s_load_dwordx2 s[4:5], s[0:1], 104
s_load_dwordx2 s[8:9], s[0:1], 0
v_lshrrev_b32 v1, 6, v0
v_and_b32 v2, 63, v0
v_readfirstlane_b32 s3, v1
v_lshlrev_b32 v3, 4, v2
s_lshl_b32 s22, s2, 13
s_lshl_b32 s23, s3, 11
s_add_u32 s22, s22, s23
s_and_b32 s12, s2, 7
s_lshr_b32 s13, s2, 3
s_lshl_b32 s12, s12, 7
s_lshl_b32 s13, s13, 2
s_add_u32 s12, s12, s13
v_lshlrev_b32 v4, 13, v0
v_add_u32 v5, 4096, v4
v_mov_b32 v6, 0
s_load_dwordx2 s[40:41], s[0:1], 96
s_waitcnt lgkmcnt(0)
s_add_u32 s4, s4, {int(os.environ.get("BASE","0"),0)}
s_addc_u32 s5, s5, 0
s_mov_b32 s42, 256
s_mov_b32 s43, 0x20000
s_mov_b32 s6, 0x8000000
s_mov_b32 s7, 0x20000
s_mov_b32 s10, 0x200000
s_mov_b32 s11, 0x20000
buffer_load_dword v7, v6, s[4:7], 0 offen sc1
buffer_load_dwordx4 v[8:11], v3, s[8:11], s22 offen
buffer_load_dwordx4 v[12:15], v3, s[8:11], s22 offen offset:1024
""")
def gather():
    for j in range(4): k(f"buffer_load_dword v{16+j}, v4, s[8:11], s12 offen offset:{j*1024}")
    for j in range(4): k(f"buffer_load_dword v{20+j}, v5, s[8:11], s12 offen offset:{j*1024}")
if GATHER==1: k("s_barrier"); gather()
k(f"""
s_waitcnt vmcnt({8 if GATHER==1 else 0})
v_readfirstlane_b32 s14, v7
s_mul_i32 s14, s14, 1664525
s_add_u32 s14, s14, 1013904223      ; tag
""")
ts(1)
if GCOMB:
    k(f"""
    v_add_u32 v24, v8, v12
    s_lshl_b32 s15, s3, 4
    v_lshl_add_u32 v26, v2, 3, s15
    v_mov_b32 v25, s14
    s_mov_b64 exec, 3
    ds_write_b64 v26, v[24:25]
    s_mov_b64 exec, -1
    s_waitcnt lgkmcnt(0)
    s_barrier
    s_cmp_lg_u32 s3, 0
    s_cbranch_scc1 L_g1
    v_lshlrev_b32 v26, 4, v2
    s_mov_b64 exec, 15
    ds_read_b128 v[28:31], v26
    s_mul_i32 s15, s2, {GS}
    s_add_u32 s15, s15, {G}
    s_waitcnt lgkmcnt(0)
    buffer_store_dwordx4 v[28:31], v26, s[4:7], s15 offen sc1
    s_mov_b64 exec, -1
    L_g1:
    """)
else:
    k(f"""
    v_add_u32 v24, v8, v12
    v_mov_b32 v25, s14
    v_lshlrev_b32 v26, 3, v2
    s_lshl_b32 s15, s2, 6
    s_lshl_b32 s16, s3, 4
    s_add_u32 s15, s15, s16
    s_add_u32 s15, s15, {G}
    s_mov_b64 exec, 3
    buffer_store_dwordx2 v[24:25], v26, s[4:7], s15 offen sc1
    s_mov_b64 exec, -1
    """)
if GATHER==2: gather()
ts(2)
if GS==64:
    k(f"v_lshlrev_b32 v26, 4, v2\ns_lshl_b32 s15, s3, 12\ns_add_u32 s15, s15, {G}")
    offs=[0,1024,2048,3072]
else:
    k(f"v_and_b32 v26, 3, v2\nv_lshlrev_b32 v26, 4, v26\nv_lshrrev_b32 v27, 2, v2\nv_lshl_add_u32 v26, v27, 7, v26\nv_add_u32 v27, 4096, v26\ns_lshl_b32 s15, s3, 13\ns_add_u32 s15, s15, {G}")
dly(W1,"L_w1d")
k(f"""
s_mov_b32 s17, 0
L_p1:
""")
if GS==64:
    for j in range(4): k(f"buffer_load_dwordx4 v[{32+4*j}:{35+4*j}], v26, s[4:7], s15 offen offset:{1024*j} sc1")
else:
    for j in range(4): k(f"buffer_load_dwordx4 v[{32+4*j}:{35+4*j}], v{26+(j>>1)}, s[4:7], s15 offen offset:{2048*(j&1)} sc1")
k(f"""
s_add_u32 s17, s17, 1
s_waitcnt vmcnt(0)
v_xor_b32 v48, s14, v33
""")
for j in range(1,8): k(f"v_xor_b32 v49, s14, v{33+2*j}\nv_or_b32 v48, v48, v49")
k(f"""
v_cmp_ne_u32 vcc, 0, v48
s_cmp_gt_u32 s17, 3000
s_cbranch_scc1 L_p1x
s_cbranch_vccnz L_p1
L_p1x:
s_barrier
""")
ts(3)
if DELAY:
    k(f"s_mov_b32 s18, {DELAY}\nL_d1:")
    for j in range(8): k("v_add_u32 v50, v50, v50")
    k("s_sub_u32 s18, s18, 1\ns_cmp_lg_u32 s18, 0\ns_cbranch_scc1 L_d1")
k(f"""
v_lshrrev_b32 v26, 3, v0
v_lshlrev_b32 v26, 15, v26
v_and_b32 v27, 7, v0
v_lshl_add_u32 v26, v27, 4, v26
s_lshl_b32 s15, s12, 5
s_add_u32 s15, s15, {H}
s_add_u32 s16, s15, {32*32768}
""")
for j in range(8): k(f"v_mov_b32 v{32+j}, s14")
ts(4)
k(f"""
buffer_store_dwordx4 v[32:35], v26, s[4:7], s15 offen sc1
buffer_store_dwordx4 v[36:39], v26, s[4:7], s16 offen sc1
""")
if H2=="flag": k("s_waitcnt vmcnt(0)\ns_barrier")
ts(5)
if H2=="data":
    k(f"""
    s_lshr_b32 s15, s2, 2
    s_lshl_b32 s15, s15, 15
    s_and_b32 s16, s2, 3
    s_lshl_b32 s16, s16, 4
    s_add_u32 s15, s15, s16
    s_add_u32 s15, s15, {H}
    s_add_u32 s16, s15, 16384
    v_lshlrev_b32 v26, 6, v0
    s_mov_b32 s18, 0
    """)
    dly(W2,"L_w2e")
    k(f"""
    L_p2d:
    buffer_load_dwordx4 v[32:35], v26, s[4:7], s15 offen sc1
    buffer_load_dwordx4 v[36:39], v26, s[4:7], s16 offen sc1
    s_add_u32 s18, s18, 1
    s_waitcnt vmcnt(0)
    v_xor_b32 v48, s14, v32
    v_xor_b32 v49, s14, v36
    v_or_b32 v48, v48, v49
    v_cmp_ne_u32 vcc, 0, v48
    s_cmp_gt_u32 s18, 3000
    s_cbranch_scc1 L_w2
    s_cbranch_vccnz L_p2d
    s_branch L_w2
    """)
k(f"""
s_cmp_lg_u32 s3, 0
s_cbranch_scc1 L_w2
s_mul_i32 s15, s2, {FLAGSTR}
s_add_u32 s15, s15, {F2}
v_mov_b32 v25, s14
s_mov_b64 exec, 1
buffer_store_dword v25, v6, s[4:7], s15 offen sc1
s_mov_b64 exec, -1
s_mov_b32 s18, 0
s_mov_b32 s15, {F2}
v_mul_u32_u24 v26, {4*FLAGSTR if FLAGSTR==4 else FLAGSTR}, v2
""")
dly(W2,"L_w2d")
k("L_p2:")
if FLAGSTR==4:
    k("buffer_load_dwordx4 v[32:35], v26, s[4:7], s15 offen sc1")
else:
    k(f"s_mov_b32 s15, {F2}")
    for j in range(4):
        k(f"buffer_load_dword v{32+j}, v26, s[4:7], s15 offen sc1\ns_add_u32 s15, s15, {64*FLAGSTR}")
k(f"""
s_add_u32 s18, s18, 1
s_waitcnt vmcnt(0)
v_xor_b32 v48, s14, v32
""")
for j in range(1,4): k(f"v_xor_b32 v49, s14, v{32+j}\nv_or_b32 v48, v48, v49")
k(f"""
v_cmp_ne_u32 vcc, 0, v48
s_cmp_gt_u32 s18, 3000
s_cbranch_scc1 L_w2
s_cbranch_vccnz L_p2
L_w2:
s_barrier
""")
ts(6)
k(f"""
s_and_b32 s22, s2, 1
s_lshl_b32 s22, s22, 3
s_bfe_u32 s23, s2, 0x30003
s_add_u32 s22, s22, s23          ; rb
s_bfe_u32 s23, s2, 0x20001
s_lshl_b32 s23, s23, 2
s_lshr_b32 s24, s2, 6
s_add_u32 s23, s23, s24          ; fs
s_lshl_b32 s24, s22, 2
s_add_u32 s24, s24, s3           ; lb32
s_lshl_b32 s25, s24, 15
s_add_u32 s25, s25, {H}
""")
for j in range(32):
    k(f"buffer_load_dwordx4 v[{64+4*j}:{67+4*j}], v3, s[4:7], s25 offen offset:{(j&3)*1024} sc1")
    if j&3==3: k("s_add_u32 s25, s25, 4096")
k("s_waitcnt vmcnt(31)"); ts(7)
k("s_waitcnt vmcnt(0)"); ts(8)
k("v_mov_b32 v48, 0")
for j in range(32): k(f"v_xor_b32 v49, s14, v{64+4*j}\nv_or_b32 v48, v48, v49")
k("v_cmp_ne_u32 vcc, 0, v48\ns_bcnt1_i32_b64 s20, vcc")
for j in range(4): k(f"v_mov_b32 v{64+j}, s14")
D3=int(os.environ.get("D3","20"))
k(f"""
s_mul_i32 s25, s24, 112
s_mul_i32 s26, s23, 7
s_add_u32 s25, s25, s26
s_lshl_b32 s25, s25, 10
s_add_u32 s25, s25, {HG}
s_lshl_b32 s27, s24, 4
s_add_u32 s27, s27, s23
s_mul_i32 s27, s27, {FLAGSTR}
s_add_u32 s27, s27, {F3}
s_add_u32 s28, s27, 0x20000
v_mov_b32 v25, s14
""")
def delay(n,lab):
    k(f"s_mov_b32 s19, {n}\n{lab}:")
    for j in range(8): k("v_add_u32 v50, v50, v50")
    k(f"s_sub_u32 s19, s19, 1\ns_cmp_lg_u32 s19, 0\ns_cbranch_scc1 {lab}")
for j in range(7):
    delay(D3,f"L_d3{j}")
    if j==4: k("s_add_u32 s25, s25, 4096")
    if j==6:
        k("s_waitcnt vmcnt(0)\ns_mov_b64 exec, 1\nbuffer_store_dword v25, v6, s[4:7], s27 offen sc1\ns_mov_b64 exec, -1")
        ts(9)
    k(f"buffer_store_dwordx4 v[64:67], v3, s[4:7], s25 offen offset:{(j&3)*1024} sc1")
if H3=="flag":
    pass
k(f"""
s_and_b32 s22, s2, 7
s_lshl_b32 s22, s22, 2
s_bfe_u32 s23, s2, 0x20003
s_add_u32 s22, s22, s23          ; tl
s_lshl_b32 s25, s22, 5
s_lshl_b32 s26, s3, 2
s_add_u32 s25, s25, s26
s_mul_i32 s25, s25, {FLAGSTR}
s_add_u32 s25, s25, {F3}
v_and_b32 v26, 3, v2
v_bfe_u32 v27, v2, 2, 1
v_lshl_add_u32 v26, v27, 4, v26
v_mul_u32_u24 v26, {FLAGSTR}, v26
s_mov_b32 s19, 0
""")
if H3=="flag":
    k("s_waitcnt vmcnt(0)\ns_mov_b64 exec, 1\nbuffer_store_dword v25, v6, s[4:7], s28 offen sc1\ns_mov_b64 exec, -1")
k(f"""
L_p3:
buffer_load_dword v32, v26, s[4:7], s25 offen sc1
s_add_u32 s19, s19, 1
s_waitcnt vmcnt(0)
v_cmp_ne_u32 vcc, s14, v32
s_cmp_gt_u32 s19, 3000
s_cbranch_scc1 L_p3x
s_cbranch_vccnz L_p3
L_p3x:
""")
ts(10)
k(f"""
s_mul_i32 s29, s22, 224
s_mul_i32 s26, s3, 28
s_add_u32 s29, s29, s26
s_lshl_b32 s29, s29, 10
s_add_u32 s29, s29, {HG}
v_add_u32 v27, {112*1024}, v3
""")
n=0
for fb in range(6):
    for f in range(4):
        r=32+8*n; n+=1
        k(f"s_add_u32 s30, s29, {(f*7+fb)*1024}")
        k(f"buffer_load_dwordx4 v[{r}:{r+3}], v3, s[4:7], s30 offen sc1")
        k(f"buffer_load_dwordx4 v[{r+4}:{r+7}], v27, s[4:7], s30 offen sc1")
k("s_mov_b32 s21, 0")
def last():
    for f in range(4):
        r=224+8*f
        k(f"s_add_u32 s30, s29, {(f*7+6)*1024}")
        k(f"buffer_load_dwordx4 v[{r}:{r+3}], v3, s[4:7], s30 offen sc1")
        k(f"buffer_load_dwordx4 v[{r+4}:{r+7}], v27, s[4:7], s30 offen sc1")
if H3=="flag":
    k(f"""
    s_add_u32 s25, s25, 0x20000
    L_p4:
    buffer_load_dword v28, v26, s[4:7], s25 offen sc1
    s_add_u32 s21, s21, 1
    s_waitcnt vmcnt(0)
    v_cmp_ne_u32 vcc, s14, v28
    s_cmp_gt_u32 s21, 3000
    s_cbranch_scc1 L_p4x
    s_cbranch_vccnz L_p4
    L_p4x:
    """)
    ts(11); last(); ts(12); k("s_waitcnt vmcnt(0)"); ts(13)
else:
    k("L_p4:"); last()
    k("s_add_u32 s21, s21, 1\ns_waitcnt vmcnt(8)\ns_cmp_eq_u32 s21, 1\ns_cbranch_scc0 L_p5"); ts(11); k("L_p5:\ns_waitcnt vmcnt(0)\nv_mov_b32 v28, 0")
    for f in range(8): k(f"v_xor_b32 v29, s14, v{224+4*f}\nv_or_b32 v28, v28, v29")
    k("""
    v_cmp_ne_u32 vcc, 0, v28
    s_cmp_gt_u32 s21, 3000
    s_cbranch_scc1 L_p4x
    s_cbranch_vccnz L_p4
    L_p4x:
    """)
    ts(12); ts(13)
k(f"""
s_or_b32 s25, s2, s3
s_cmp_lg_u32 s25, 0
s_cbranch_scc1 L_ne
v_mov_b32 v25, s14
s_mov_b64 exec, 1
buffer_store_dword v25, v6, s[4:7], 0 offen sc1
s_mov_b64 exec, -1
L_ne:
s_waitcnt lgkmcnt(0)
s_lshl_b32 s25, s2, 9
s_lshl_b32 s26, s3, 7
s_add_u32 s25, s25, s26
s_add_u32 s25, s25, {TS}
s_mov_b64 exec, 1
""")
for i in range(14): k(f"v_mov_b32 v25, s{60+2*i}\nbuffer_store_dword v25, v6, s[4:7], s25 offen offset:{4*i}")
for i,s in enumerate((17,18,19,20,21)): k(f"v_mov_b32 v25, s{s}\nbuffer_store_dword v25, v6, s[4:7], s25 offen offset:{4*(14+i)}")
k("s_cmp_lg_u32 s2, 77\ns_cbranch_scc1 L_end\ns_cmp_lg_u32 s3, 0\ns_cbranch_scc1 L_end")
for i in range(14): k(f"s_sub_u32 s25, s{60+2*i}, s60\nv_mov_b32 v25, s25\nbuffer_store_dword v25, v6, s[40:43], 0 offen offset:{4*i}")
k("L_end:\ns_endpgm")
k.lines = hazard.fix(k.lines, False)
if os.environ.get("WITH"):
    sys.path.insert(0,'gen')
    from k1 import gen_k1
    from k2 import gen_k2
    from k3 import gen_k3
    from k4 import gen_k4
    ks=[gen_k1(),gen_k2(),gen_k3(),gen_k4()]
    for x in ks: x.lines=hazard.fix(x.lines,False)
    ks = ks+[k] if os.environ["WITH"]=="last" else ([k]+ks if os.environ["WITH"]=="first" else ks)
    emit(out, ks)
else: emit(out, [k])
```

```python
import sys, os
sys.path.insert(0,'gen')
from common import *
from k2 import cmul, direct, rho, LOG2E, INV2PI
E_=lambda n,d: int(os.environ.get(n,str(d)),0)
WS_WT=0x1000000
WS_F1=0x1400000; WS_F2=0x1410000; WS_F3=0x1420000; WS_TAG=0x1430000
WSL=14464; UOFF=7296; NW=6; WB=0
TB=0; TA=33792; TBL=16896; TROW=528
UC=72320; UCC=4640; UCH=4*UCC
KC=109440; KCC=4224
XT=126336; T1=XT+8192; RED=142720
LNB=XT; ROWS=2112; WDS=143360
NH=8; HS=8192; HB=86784
MISC=HB+NH*HS; PART=MISC; FS=MISC+4096; AP=MISC+6144
G2M=0; G2H=65536; G2R=131072
LDS=163840
CUM=[2,4,6,8,10,13,15,18,20,23,25,28,30,32,32,32]
def hb(j): return max(j,(CUM[j]-1)>>1)
NM=10; NHS=18
MA=176; HA=112
NPRE=E_("NPRE",8)
SL1=E_("SL1",0); SL2=E_("SL2",8); SL3=E_("SL3",8); SLP=E_("SLP",2)
LIMIT=4000
def ts(k,i,drain=True):
    if not STAMP: return
    k(f"s_memrealtime s[{80+2*i}:{81+2*i}]")
    if drain: k("s_waitcnt lgkmcnt(0)")
def poll(k, lab, voff, n, soff, t, first):
    if first: k(f"s_sleep {first}")
    k(f"s_mov_b32 s31, 0\n{lab}:")
    for j in range(n):
        if j: k(f"s_add_u32 s30, s{soff}, {4096*j}")
        k(f"buffer_load_dword v{t+j}, v{voff}, s[4:7], s{soff if j==0 else 30} offen sc1")
    k("s_add_u32 s31, s31, 1\ns_waitcnt vmcnt(0)")
    for j in range(n): k(f"v_xor_b32 v{t+j}, s60, v{t+j}")
    for j in range(1,n): k(f"v_or_b32 v{t}, v{t}, v{t+j}")
    k(f"""
    v_cmp_ne_u32 vcc, 0, v{t}
    s_cmp_gt_u32 s31, {LIMIT}
    s_cbranch_scc1 {lab}x
    s_cbranch_vccz {lab}x
    s_sleep {SLP}
    s_branch {lab}
    {lab}x:
    """)
def flag(k, soff, t):
    k(f"""
    v_mov_b32 v{t}, s60
    v_mov_b32 v{t+1}, 0
    s_mov_b64 exec, 1
    buffer_store_dword v{t}, v{t+1}, s[4:7], s{soff} offen sc1
    s_mov_b64 exec, -1
    """)
EB=56
def eloads(k):
    k(f"""
    buffer_load_dwordx4 v[{EB}:{EB+3}], v71, s[32:35], s26 offen sc1
    buffer_load_dwordx4 v[{EB+4}:{EB+7}], v70, s[32:35], s26 offen sc1
    buffer_load_dwordx4 v[{EB+8}:{EB+11}], v70, s[32:35], s26 offen offset:32 sc1
    """)
def uprep(k, nafter):
    k(f"s_waitcnt vmcnt({nafter+1})")
    for j in range(6): k(f"v_mov_b32 v{36+j}, v{EB+1+j}")
    k(f"""
    ds_write_b128 v68, v[{EB+2}:{EB+5}] offset:{UCC}
    ds_write_b128 v68, v[{EB+4}:{EB+7}] offset:{3*UCC}
    ds_write_b128 v68, v[36:39]
    ds_write_b128 v68, v[38:41] offset:{2*UCC}
    """)
    for j in range(4):
        k(f"v_lshlrev_b32 v{44+2*j}, 16, v{EB+4+j}\nv_and_b32 v{45+2*j}, 0xffff0000, v{EB+4+j}")
    for j in range(8): k(f"v_mul_f32 v{44+j}, s28, v{44+j}")
    for j in range(4): k(f"v_cvt_pk_bf16_f32 v{52+j}, v{44+2*j}, v{45+2*j}")
    k(f"""
    ds_write_b128 v69, v[52:55] offset:{T1-XT}
    s_waitcnt vmcnt({nafter})
    ds_write_b128 v69, v[{EB+8}:{EB+11}]
    s_waitcnt lgkmcnt(0)
    s_barrier
    """)
def kparams(k):
    k(f"""
    s_lshl_b32 s29, s66, 4
    s_lshr_b32 s27, s27, s29
    s_lshl_b32 s27, s27, 16
    s_lshr_b32 s28, s28, s26
    s_lshl_b32 s28, s28, 16
    v_mov_b32 v33, {LOG2E}
    v_mul_f32 v34, s27, v33
    v_exp_f32 v34, v34
    v_lshlrev_b32 v8, 16, v8
    v_lshlrev_b32 v9, 16, v9
    v_cvt_pk_bf16_f32 v34, v34, v34
    v_and_b32 v34, 0xffff0000, v34
    v_mul_f32 v8, v8, v33
    v_exp_f32 v8, v8
    v_mul_f32 v9, v9, v34
    v_cvt_pk_bf16_f32 v8, v8, v8
    v_and_b32 v8, 0xffff0000, v8
    v_mul_f32 v8, v8, v34
    v_mul_f32 v9, {INV2PI}, v9
    v_mul_f32 v8, 0xbfb8aa3b, v8
    """)
def common_addr(k):
    k(f"""
    v_mov_b32 v24, 0
    v_mov_b32 v25, 0
    v_mov_b32 v26, 0
    v_mov_b32 v27, 0
    s_mul_i32 s29, s3, {UCC}
    s_add_u32 s29, s29, {UC}
    v_add_u32 v28, s29, v7
    s_mul_i32 s29, s65, {KCC}
    s_add_u32 s29, s29, {KC}
    v_add_u32 v29, s29, v7
    s_mov_b64 exec, 0xffffff
    ds_write_b128 v28, v[24:27]
    s_mov_b64 exec, 0x7f
    ds_write_b128 v29, v[24:27]
    s_mov_b64 exec, -1
    s_mul_i32 s29, s66, {TBL}
    s_mul_i32 s31, s25, {TA}
    s_add_u32 s29, s29, s31
    s_and_b32 s31, s3, 1
    s_lshl_b32 s31, s31, 8
    s_add_u32 s29, s29, s31
    v_lshlrev_b32 v30, 2, v2
    v_add_u32 v30, s29, v30
    s_mul_i32 s29, s25, {UCH}
    s_add_u32 s29, s29, {UC+24*16}
    v_and_b32 v3, 255, v0
    v_lshlrev_b32 v69, 4, v3
    v_add_u32 v68, s29, v69
    s_lshl_b32 s29, s25, 12
    s_add_u32 s29, s29, {XT}
    v_add_u32 v69, s29, v69
    v_lshlrev_b32 v70, 6, v3
    v_subrev_u32 v71, 64, v70
    s_lshl_b32 s23, s2, 14
    s_add_u32 s32, s20, s23
    s_addc_u32 s33, s21, 0
    s_mov_b32 s34, 16384
    s_mov_b32 s35, 0x20000
    s_and_b32 s61, s2, 1
    s_lshl_b32 s61, s61, 3
    s_bfe_u32 s23, s2, 0x30003
    s_add_u32 s61, s61, s23          ; rb
    s_bfe_u32 s62, s2, 0x20001
    s_lshl_b32 s62, s62, 2
    s_lshr_b32 s23, s2, 6
    s_add_u32 s62, s62, s23          ; fs
    s_and_b32 s63, s2, 7
    s_lshl_b32 s63, s63, 2
    s_bfe_u32 s23, s2, 0x20003
    s_add_u32 s63, s63, s23          ; tl
    s_lshr_b32 s64, s2, 5            ; td
    s_mul_i32 s67, s64, 112
    s_mul_i32 s23, s65, 28
    s_mul_i32 s29, s25, {NM}
    s_add_u32 s23, s23, s29
    s_add_u32 s67, s67, s23
    s_lshl_b32 s67, s67, 11
    s_add_u32 s67, s67, {WS_WT}
    s_mul_i32 s68, s63, 224
    s_add_u32 s68, s68, s23
    s_lshl_b32 s68, s68, 10
    s_add_u32 s68, s68, {WS_HG}
    """)
def wtload(k, base, i):
    if i and i%4==0: k("s_add_u32 s67, s67, 4096")
    k(f"buffer_load_dwordx4 v[{base+4*i}:{base+4*i+3}], v7, s[4:7], s67 offen offset:{1024*(i&3)} sc1")

def gen_m():
    k = K("sequential_preLN__ssm_conv_s4d__glu_gated_glu__prompt_kernel", 256, 512, LDS, 256)
    k("L_begin:\ns_cmp_ge_u32 s2, 256\ns_cbranch_scc1 L_end")
    ts(k,0,False)
    k(f"""
    s_load_dwordx16 s[36:51], s[0:1], 0
    s_load_dwordx8 s[12:19], s[0:1], 64
    s_load_dwordx2 s[20:21], s[0:1], 104
    v_lshrrev_b32 v1, 6, v0
    v_and_b32 v2, 63, v0
    v_lshlrev_b32 v7, 4, v2
    v_readfirstlane_b32 s3, v1
    v_and_b32 v3, 255, v0
    s_lshl_b32 s24, s2, 9
    v_lshl_add_u32 v4, v3, 1, s24
    v_mov_b32 v5, 0
    s_lshl_b32 s22, s2, 2
    s_and_b32 s65, s3, 3
    s_lshr_b32 s25, s3, 2
    s_lshl_b32 s26, s25, 4
    s_bfe_u32 s66, s3, 0x10001
    s_mov_b32 s6, {WS_SIZE:#x}
    s_mov_b32 s7, 0x20000
    s_mov_b32 s23, {WS_TAG:#x}
    s_cmp_ge_u32 s3, 4
    s_cbranch_scc1 L_help
    """)
    gen_main(k)
    gen_help(k)
    k("L_end:\ns_endpgm\nL_stop:")
    return k

def gen_main(k):
    k(f"""
    s_lshl_b32 s29, s2, 13
    s_lshl_b32 s30, s3, 11
    s_add_u32 s29, s29, s30
    s_mov_b32 s10, {2048*512*2:#x}
    s_mov_b32 s11, 0x20000
    s_waitcnt lgkmcnt(0)
    s_mov_b32 s8, s36
    s_mov_b32 s9, s37
    s_mov_b32 s4, s20
    s_mov_b32 s5, s21
    buffer_load_dwordx4 v[12:15], v7, s[8:11], s29 offen
    buffer_load_dwordx4 v[16:19], v7, s[8:11], s29 offen offset:1024
    global_load_ushort v8, v4, s[38:39]
    global_load_ushort v9, v4, s[40:41]
    buffer_load_dword v10, v5, s[4:7], s23 offen sc1
    s_load_dword s27, s[46:47], s22
    s_load_dword s28, s[48:49], s22
    """)
    common_addr(k)
    X=12; F=36; O=52
    k(f"""
    v_mov_b32 v1, 0x3b000000
    s_mul_i32 s24, s3, {2*ROWS}
    s_add_u32 s24, s24, {LNB}
    v_lshlrev_b32 v4, 5, v2
    v_add_u32 v4, s24, v4
    v_bfe_u32 v5, v2, 2, 2
    v_mul_u32_u24 v5, {ROWS}, v5
    v_lshrrev_b32 v6, 4, v2
    v_lshl_add_u32 v5, v6, 5, v5
    v_and_b32 v6, 3, v2
    v_lshl_add_u32 v5, v6, 3, v5
    s_lshl_b32 s24, s3, 9
    s_add_u32 s24, s24, {LNB}
    v_add_u32 v5, s24, v5
    v_lshrrev_b32 v11, 2, v2
    v_lshlrev_b32 v11, 14, v11
    v_lshl_add_u32 v11, v6, 4, v11
    s_lshl_b32 s24, s3, 20
    s_lshl_b32 s29, s2, 6
    s_add_u32 s24, s24, s29
    """)
    for i in range(2):
        k(f"s_waitcnt vmcnt({4-i})")
        if i==0: ts(k,1,False)
        for j in range(4):
            k(f"v_lshlrev_b32 v{F+8*i+2*j}, 16, v{X+4*i+j}\nv_and_b32 v{F+1+8*i+2*j}, 0xffff0000, v{X+4*i+j}")
        f=F+8*i; S,Q=20+2*i,21+2*i
        k(f"v_add_f32 v{S}, v{f}, v{f+1}\nv_mul_f32 v{Q}, v{f}, v{f}\nv_fmac_f32 v{Q}, v{f+1}, v{f+1}")
        for j in range(2,8): k(f"v_add_f32 v{S}, v{S}, v{f+j}\nv_fmac_f32 v{Q}, v{f+j}, v{f+j}")
    for dpp in ("row_shr:1","row_shr:2","row_shr:4","row_shr:8"):
        for r in range(20,24): k(f"v_add_f32_dpp v{r}, v{r}, v{r} {dpp} row_mask:0xf bank_mask:0xf bound_ctrl:1")
    for dpp in ("row_bcast:15 row_mask:0xa","row_bcast:31 row_mask:0xc"):
        for r in range(20,24): k(f"v_add_f32_dpp v{r}, v{r}, v{r} {dpp} bank_mask:0xf")
    for r in range(4): k(f"v_readlane_b32 s{52+r}, v{20+r}, 63")
    for i in range(2):
        M,V,T=24+3*i,25+3*i,26+3*i
        k(f"""
        v_mul_f32 v{M}, s{52+2*i}, v1
        v_mul_f32 v{V}, s{53+2*i}, v1
        v_fma_f32 v{V}, -v{M}, v{M}, v{V}
        v_max_f32 v{V}, 0, v{V}
        v_cvt_pk_bf16_f32 v{T}, v{M}, v{V}
        v_lshlrev_b32 v{M}, 16, v{T}
        v_and_b32 v{V}, 0xffff0000, v{T}
        v_add_f32 v{V}, 0x3727c5ac, v{V}
        v_cvt_pk_bf16_f32 v{V}, v{V}, v{V}
        v_and_b32 v{V}, 0xffff0000, v{V}
        v_sqrt_f32 v{V}, v{V}
        v_cvt_pk_bf16_f32 v{V}, v{V}, v{V}
        v_and_b32 v{V}, 0xffff0000, v{V}
        v_rcp_f32 v{V}, v{V}
        """)
    for i in range(2):
        M,V=24+3*i,25+3*i; f=F+8*i; o=O+8*i
        for j in range(8): k(f"v_sub_f32 v{f+j}, v{f+j}, v{M}")
        for j in range(4): k(f"v_cvt_pk_bf16_f32 v{o+2*j}, v{f+2*j}, v{f+2*j+1}")
        for j in range(4): k(f"v_lshlrev_b32 v{f+2*j}, 16, v{o+2*j}\nv_and_b32 v{f+2*j+1}, 0xffff0000, v{o+2*j}")
        for j in range(8): k(f"v_mul_f32 v{f+j}, v{f+j}, v{V}")
        for j in range(4): k(f"v_cvt_pk_bf16_f32 v{o+2*j}, v{f+2*j}, v{f+2*j+1}\nv_mov_b32 v{o+2*j+1}, v{X+4*i+j}")
        k(f"ds_write_b128 v4, v[{o}:{o+3}] offset:{i*ROWS}\nds_write_b128 v4, v[{o+4}:{o+7}] offset:{i*ROWS+16}")
    k("s_waitcnt lgkmcnt(0)\ns_barrier        ; B1")
    for it in range(4):
        k(f"ds_read_b64_tr_b16 v[{12+4*it}:{13+4*it}], v5 offset:{it*128}")
        k(f"ds_read_b64_tr_b16 v[{14+4*it}:{15+4*it}], v5 offset:{it*128+4*ROWS}")
    for it in range(4):
        k(f"s_waitcnt lgkmcnt({6-2*it})")
        k(f"buffer_store_dwordx4 v[{12+4*it}:{15+4*it}], v11, s[4:7], s24 offen sc1")
        if it<3: k(f"s_add_u32 s24, s24, {16*16384}")
    ts(k,2,False)
    k("s_waitcnt vmcnt(4)\nv_readfirstlane_b32 s60, v10")
    kparams(k)
    k("s_mul_i32 s60, s60, 1664525\ns_add_u32 s60, s60, 1013904223")
    W=36; X0=38; X1=40; T=42; C=44
    direct(k, W, 8, 9, 8, T)
    k(f"v_mov_b32 v{C}, 0x00003f80\nds_write_b32 v30, v{C}")
    k(f"v_cvt_pk_bf16_f32 v{C+1}, v{W}, v{W+1}\nds_write_b32 v30, v{C+1} offset:{TROW}")
    cur=W
    for j in range(2,32):
        nxt = X0 if cur!=X0 else X1
        cmul(k, nxt, cur, W, T)
        c=C+(j&3)
        k(f"v_cvt_pk_bf16_f32 v{c}, v{nxt}, v{nxt+1}\nds_write_b32 v30, v{c} offset:{TROW*j}")
        cur=nxt
    k(f"""
    v_and_b32 v4, 31, v2
    v_mul_u32_u24 v4, {TROW}, v4
    v_lshrrev_b32 v5, 5, v2
    v_lshl_add_u32 v4, v5, 4, v4
    s_mul_i32 s29, s66, {TBL}
    v_add_u32 v4, s29, v4
    s_waitcnt vmcnt(0) lgkmcnt(0)
    s_barrier        ; B2
    """)
    ts(k,3)
    NB=6; KR=112
    def rd(s):
        b=KR+8*(s%NB)
        k(f"ds_read_b128 v[{b}:{b+3}], v4 offset:{TA+32*s}\nds_read_b128 v[{b+4}:{b+7}], v4 offset:{TB+32*s}")
    for s in range(NB-1): rd(s)
    k(f"""
    s_mul_i32 s29, s3, {KCC}
    s_add_u32 s29, s29, {KC+7*16}
    v_add_u32 v5, s29, v7
    v_and_b32 v8, 1, v2
    v_mul_u32_u24 v8, {KCC}, v8
    v_bfe_u32 v9, v2, 1, 3
    v_lshrrev_b32 v10, 4, v2
    v_sub_u32 v9, v9, v10
    v_add_u32 v9, 3, v9
    v_lshl_add_u32 v8, v9, 4, v8
    s_mul_i32 s29, s66, {2*KCC}
    s_and_b32 s69, s3, 1                     ; c-half
    s_lshl_b32 s56, s69, 8
    s_add_u32 s29, s29, s56
    s_add_u32 s29, s29, {KC}
    v_add_u32 v8, s29, v8
    v_and_b32 v9, 3, v2
    v_mul_u32_u24 v11, {UCC}, v9
    v_bfe_u32 v12, v2, 2, 2
    v_lshl_add_u32 v13, v12, 3, v10
    v_lshl_add_u32 v11, v13, 4, v11
    s_mul_i32 s29, s66, {UCH}
    s_sub_u32 s29, s29, s56
    s_add_u32 s29, s29, {UC+16*16}
    v_add_u32 v11, s29, v11
    v_lshlrev_b32 v13, 5, v10
    v_lshl_add_u32 v13, v9, 2, v13
    v_lshl_add_u32 v13, v12, 7, v13
    v_and_b32 v14, 1, v2
    v_cmp_eq_u32 s[58:59], 1, v14
    """)
    D=16
    for s in range(16):
        if s+NB-1<16: rd(s+NB-1)
        k(f"s_waitcnt lgkmcnt({2*(min(15,s+NB-1)-s)})")
        b=KR+8*(s%NB)
        k(f"v_mfma_f32_32x32x16_bf16 v[{D}:{D+15}], v[{b}:{b+3}], v[{b+4}:{b+7}], {'0' if s==0 else f'v[{D}:{D+15}]'}")
    e=lambda r: D+r
    O=32
    k(f"v_cndmask_b32 v48, v{e(11)}, v{e(12)}, s[58:59]\nv_cndmask_b32 v49, v{e(13)}, v{e(14)}, s[58:59]")
    k("s_cmp_eq_u32 s69, 0\ns_cbranch_scc1 L2_a0")
    def grp(idx, pairs):
        o=O+4*idx
        for t,(lo,hi) in enumerate(pairs):
            if t>0 and pairs[t-1]==(lo,hi): k(f"v_mov_b32 v{o+t}, v{o+t-1}")
            else: k(f"v_cvt_pk_bf16_f32 v{o+t}, v{lo}, v{hi}")
        k(f"ds_write_b128 v5, v[{o}:{o+3}] offset:{idx*1024}")
    grp(0,[(e(7),e(6)),(e(5),e(4)),(e(3),e(2)),(e(1),e(0))])
    grp(1,[(e(10),e(10)),(e(9),e(9)),(e(9),e(8)),(e(8),e(8))])
    grp(2,[(e(12),e(12)),(e(12),48),(e(11),e(11)),(e(11),e(11))])
    grp(3,[(e(14),e(14)),(e(14),49),(e(13),e(13)),(e(13),e(13))])
    k("s_branch L2_conv\nL2_a0:")
    k("v_mov_b32 v50, 0")
    k(f"v_mov_b32_dpp v50, v{e(7)} wave_shr:1 row_mask:0xf bank_mask:0xf bound_ctrl:1")
    grp(1,[(e(10),e(9)),(e(9),e(9)),(e(8),e(8)),(e(8),e(8))])
    grp(2,[(e(12),e(12)),(48,e(11)),(e(11),e(11)),(e(11),e(11))])
    grp(3,[(e(14),e(14)),(49,e(13)),(e(13),e(13)),(e(13),e(13))])
    grp(0,[(e(6),e(5)),(e(4),e(3)),(e(2),e(1)),(e(0),50)])
    k(f"""
    L2_conv:
    v_lshlrev_b32 v3, 6, v2
    s_mov_b32 s29, {WS_F1:#x}
    s_cmp_lg_u32 s3, 0
    s_cbranch_scc1 L_p1x
    """)
    poll(k,"L_p1",3,4,29,52,SL1)
    k("s_waitcnt lgkmcnt(0)\ns_barrier        ; B3")
    ts(k,4)
    eloads(k)
    for i in range(2*NM): wtload(k, MA, i)
    AF=[48,112]; BF=[80,144]; ACC=16
    def rdA(buf,g,cl): k(f"ds_read_b128 v[{AF[buf]+4*g}:{AF[buf]+4*g+3}], v8 offset:{512*g+64*cl}")
    def rdB(buf,t,cl): k(f"ds_read_b128 v[{BF[buf]+4*t}:{BF[buf]+4*t+3}], v11 offset:{512*t+(12-4*cl)*16}")
    for g in range(8): rdA(1,g,0)
    uprep(k, 2*NM)
    ts(k,5)
    k("s_setprio 1")
    for t in range(8): rdB(1,t,0)
    first=[True]*8
    for cl in range(4):
        buf=(cl&1)^1
        pend=[]
        if cl<3:
            for g in range(8): pend += [("A",g),("B",g)]
        seq=[(t,g) for t in range(8) for g in range(t+1)]
        issued=0
        for idx,(t,g) in enumerate(seq):
            if g==0:
                if cl==0: k(f"s_waitcnt lgkmcnt({min(15,7-t+issued)})")
                else: k(f"s_waitcnt lgkmcnt({min(15,14-2*t+issued)})")
            a=AF[buf]+4*g; b=BF[buf]+4*(t-g); c=ACC+4*t
            k(f"v_mfma_f32_16x16x32_bf16 v[{c}:{c+3}], v[{a}:{a+3}], v[{b}:{b+3}], {'0' if first[t] else f'v[{c}:{c+3}]'}")
            first[t]=False
            start = 4
            if pend and idx>=start and (idx%2==0 or len(seq)-idx<=len(pend)+2):
                kind,j=pend.pop(0)
                (rdA if kind=="A" else rdB)(buf^1,j,cl+1); issued+=1
        assert not pend
    k(f"""
    s_lshl_b32 s29, s3, 12
    s_add_u32 s29, s29, {RED}
    v_add_u32 v4, s29, v7
    s_xor_b32 s29, s3, 1
    s_lshl_b32 s29, s29, 12
    s_add_u32 s29, s29, {RED}
    v_add_u32 v5, s29, v7
    s_lshl_b32 s29, s3, 11
    s_lshl_b32 s57, s2, 13
    s_add_u32 s57, s57, s29
    s_add_u32 s57, s57, {WS_HT}
    s_add_u32 s29, s29, {XT}
    v_add_u32 v6, s29, v13
    v_add_u32 v9, s29, v7
    """)
    XR=112
    for t in range(4):
        k(f"ds_read_b32 v{XR+4*t}, v6 offset:{512*t}\nds_read_b32 v{XR+1+4*t}, v6 offset:{512*t+16}")
        k(f"ds_read_b32 v{XR+2+4*t}, v6 offset:{512*t+T1-XT}\nds_read_b32 v{XR+3+4*t}, v6 offset:{512*t+16+T1-XT}")
    k("s_cmp_eq_u32 s69, 0\ns_cbranch_scc1 L2_r0")
    for t in range(4): k(f"ds_write_b128 v4, v[{ACC+4*t}:{ACC+4*t+3}] offset:{1024*t}")
    k("s_waitcnt lgkmcnt(0)")
    for j in range(16): k(f"v_mov_b32 v{ACC+j}, v{ACC+16+j}")
    k("s_branch L2_r1\nL2_r0:")
    for t in range(4): k(f"ds_write_b128 v4, v[{ACC+16+4*t}:{ACC+16+4*t+3}] offset:{1024*t}")
    k("L2_r1:\ns_waitcnt lgkmcnt(0)\ns_barrier        ; B5")
    for t in range(4): k(f"ds_read_b128 v[{48+4*t}:{51+4*t}], v5 offset:{1024*t}")
    for t in range(4):
        for hh in range(2):
            i=2*t+hh
            k(f"v_lshlrev_b32 v{64+2*i}, 16, v{XR+4*t+hh}\nv_and_b32 v{65+2*i}, 0xffff0000, v{XR+4*t+hh}")
            k(f"v_lshlrev_b32 v{80+2*i}, 16, v{XR+2+4*t+hh}\nv_and_b32 v{81+2*i}, 0xffff0000, v{XR+2+4*t+hh}")
    for t in range(4):
        k(f"s_waitcnt lgkmcnt({3-t+2*t})")
        a=ACC+4*t
        for r in range(4): k(f"v_add_f32 v{a+r}, v{a+r}, v{48+4*t+r}")
        def rnd(): k(f"v_cvt_pk_bf16_f32 v{a}, v{a}, v{a+1}\nv_cvt_pk_bf16_f32 v{a+2}, v{a+2}, v{a+3}")
        def unp():
            k(f"v_and_b32 v{a+1}, 0xffff0000, v{a}\nv_and_b32 v{a+3}, 0xffff0000, v{a+2}")
            k(f"v_lshlrev_b32 v{a}, 16, v{a}\nv_lshlrev_b32 v{a+2}, 16, v{a+2}")
        rnd(); unp()
        for r in range(4): k(f"v_add_f32 v{a+r}, v{a+r}, v{80+4*t+r}")
        rnd(); unp()
        for r in range(4): k(f"v_add_f32 v{a+r}, v{a+r}, v{64+4*t+r}")
        rnd()
        k(f"ds_write_b32 v6, v{a} offset:{512*t}\nds_write_b32 v6, v{a+2} offset:{512*t+16}")
    k(f"""
    s_waitcnt lgkmcnt(0)
    ds_read_b128 v[48:51], v9
    ds_read_b128 v[52:55], v9 offset:1024
    s_waitcnt lgkmcnt(1)
    buffer_store_dwordx4 v[48:51], v7, s[4:7], s57 offen sc1
    s_waitcnt lgkmcnt(0)
    buffer_store_dwordx4 v[52:55], v7, s[4:7], s57 offen offset:1024 sc1
    """)
    ts(k,6,False)
    NA=4; AW=16; BW=32; BP=40; ZS=44; ACC=56
    k(f"""
    v_lshrrev_b32 v3, 5, v2
    v_bfe_u32 v4, v2, 2, 2
    v_lshl_add_u32 v5, v3, 3, v4
    v_bfe_u32 v6, v2, 4, 1
    v_and_b32 v15, 3, v2
    v_lshlrev_b32 v15, 3, v15
    v_mul_u32_u24 v8, 224, v5
    v_mul_u32_u24 v9, {UOFF}, v6
    v_add3_u32 v8, v8, v9, v15
    v_add_u32 v9, {4*WSL}, v8
    v_xor_b32 v10, s3, v4
    v_lshlrev_b32 v10, 6, v10
    v_lshl_add_u32 v10, v5, 8, v10
    v_lshl_add_u32 v10, v6, 5, v10
    v_add_u32 v10, v10, v15
    v_add_u32 v10, {HB}, v10
    v_and_b32 v11, 31, v2
    v_lshlrev_b32 v12, 4, v11
    s_lshl_b32 s29, s3, 9
    s_add_u32 s29, s29, {FS}
    v_add_u32 v13, s29, v12
    v_add_u32 v12, {AP}, v12
    v_cmp_eq_u32 s[56:57], 0, v3
    v_mov_b32 v{BP+2}, 0
    v_mov_b32 v{BP+3}, 0
    s_lshl_b32 s70, s61, 2
    s_add_u32 s70, s70, s3
    s_mul_i32 s70, s70, 112
    s_mul_i32 s29, s62, 7
    s_add_u32 s70, s70, s29
    s_lshl_b32 s70, s70, 10
    s_add_u32 s70, s70, {WS_HG}
    v_lshlrev_b32 v3, 6, v2
    s_lshl_b32 s29, s2, 6
    s_add_u32 s29, s29, {WS_F2}
    s_waitcnt vmcnt(0)
    s_barrier        ; B6
    s_cmp_lg_u32 s3, 0
    s_cbranch_scc1 L_p2x
    """)
    flag(k,29,48)
    k(f"s_mov_b32 s29, {WS_F2:#x}")
    poll(k,"L_p2",3,4,29,48,SL2)
    k("s_barrier        ; B7")
    ts(k,7)
    q=[]
    def rdA1(t):
        b=AW+4*(t%NA)
        if t>=231: return
        if t>=224:
            k(f"ds_read_b128 v[{b}:{b+3}], v12 offset:{(t-224)*512}"); q.append(("A",t)); return
        s=t//7; fb=t%7; j=s>>1; kk=s&1; sl=j%NW
        va = 8 if sl<4 else 9
        off=(sl%4)*WSL + kk*16*224 + fb*32
        k(f"ds_read_b64_tr_b16 v[{b}:{b+1}], v{va} offset:{off}\nds_read_b64_tr_b16 v[{b+2}:{b+3}], v{va} offset:{off+4*224}")
        q.extend([("A",t)]*2)
    def rdB1(s):
        b=BW+4*(s&1)
        if s==32:
            k(f"ds_read_b64 v[{BP}:{BP+1}], v13\nds_read_b64 v[{ZS}:{ZS+1}], v13 offset:8"); q.extend([("B",s)]*2); return
        j=s>>1; off=(j%NH)*HS+(s&1)*4096
        k(f"ds_read_b64_tr_b16 v[{b}:{b+1}], v10 offset:{off}\nds_read_b64_tr_b16 v[{b+2}:{b+3}], v10 offset:{off+1024}")
        q.extend([("B",s)]*2)
    k("s_barrier        ; G0")
    ts(k,8)
    rdB1(0)
    for t in range(NA): rdA1(t)
    for t in range(231):
        s=t//7; fb=t%7
        need=max(idx for idx,tag in enumerate(q) if tag==("A",t) or tag==("B",s))
        k(f"s_waitcnt lgkmcnt({len(q)-1-need})")
        a=AW+4*(t%NA); c=ACC+16*fb
        if s==32:
            if fb==0: k(f"v_cndmask_b32 v{BP}, 0, v{BP}, s[56:57]\nv_cndmask_b32 v{BP+1}, 0, v{BP+1}, s[56:57]")
            b=BP
        else: b=BW+4*(s&1)
        k(f"v_mfma_f32_32x32x16_bf16 v[{c}:{c+15}], v[{a}:{a+3}], v[{b}:{b+3}], {'0' if s==0 else f'v[{c}:{c+15}]'}")
        if fb==7-NA and s<32:
            if s&1 and s<31: k("s_barrier")
            rdB1(s+1)
        rdA1(t+NA)
    ts(k,10,False)
    for fb in range(7):
        c=ACC+16*fb; o=AW+4*(fb&3)
        for i in range(4): k(f"v_pk_mul_f32 v[{c+2*i}:{c+2*i+1}], v[{c+2*i}:{c+2*i+1}], v[{ZS}:{ZS+1}] op_sel_hi:[1,0]")
        for i in range(8): k(f"v_exp_f32 v{c+i}, v{c+i}")
        for i in range(4): k(f"v_pk_fma_f32 v[{c+2*i}:{c+2*i+1}], v[{c+2*i}:{c+2*i+1}], v[{ZS}:{ZS+1}], v[{ZS}:{ZS+1}] op_sel:[0,1,1] op_sel_hi:[1,1,1]")
        for i in range(8): k(f"v_rcp_f32 v{c+i}, v{c+i}")
        for i in range(4): k(f"v_pk_mul_f32 v[{c+2*i}:{c+2*i+1}], v[{c+2*i}:{c+2*i+1}], v[{c+8+2*i}:{c+9+2*i}]")
        for i in range(4): k(f"v_cvt_pk_bf16_f32 v{o+i}, v{c+2*i}, v{c+2*i+1}")
        if fb==4: k("s_add_u32 s70, s70, 4096")
        k(f"buffer_store_dwordx4 v[{o}:{o+3}], v7, s[4:7], s70 offen offset:{1024*(fb&3)} sc1")
    k(f"""
    s_setprio 0
    s_lshl_b32 s29, s61, 4
    s_add_u32 s29, s29, s62
    s_lshl_b32 s29, s29, 6
    s_add_u32 s29, s29, {WS_F3}
    v_add_u32 v6, {112*1024}, v7
    s_lshl_b32 s23, s3, 14
    v_add_u32 v5, s23, v7
    v_and_b32 v3, 15, v2
    v_lshlrev_b32 v3, 6, v3
    s_waitcnt vmcnt(0)
    s_barrier        ; B8
    s_cmp_lg_u32 s3, 0
    s_cbranch_scc1 L_p3x
    """)
    flag(k,29,48)
    k(f"s_lshr_b32 s29, s63, 1\ns_lshl_b32 s29, s29, 10\ns_add_u32 s29, s29, {WS_F3}")
    poll(k,"L_p3",3,1,29,48,SL3)
    k("s_barrier        ; B9")
    ts(k,9,False)
    A2=48
    slots=[8+8*i for i in range(5)]+[112+8*i for i in range(5)]
    for s in range(NM):
        if s and s%4==0: k("s_add_u32 s68, s68, 4096")
        b=slots[s]
        k(f"buffer_load_dwordx4 v[{b}:{b+3}], v7, s[4:7], s68 offen offset:{1024*(s&3)} sc1")
        k(f"buffer_load_dwordx4 v[{b+4}:{b+7}], v6, s[4:7], s68 offen offset:{1024*(s&3)} sc1")
    for s in range(NM):
        for lb in range(2):
            k(f"s_waitcnt vmcnt({2*(NM-1-s)+1-lb})")
            for db in range(2):
                c=A2+16*(db+2*lb); a=MA+8*s+4*db; b=slots[s]+4*lb
                k(f"v_mfma_f32_32x32x16_bf16 v[{c}:{c+15}], v[{a}:{a+3}], v[{b}:{b+3}], {'0' if s==0 else f'v[{c}:{c+15}]'}")
    for j in range(16):
        k(f"ds_write_b128 v5, v[{A2+4*j}:{A2+4*j+3}] offset:{G2M+j*1024}")
    k(f"""
    s_waitcnt lgkmcnt(0)
    s_barrier        ; B10
    s_or_b32 s23, s2, s3
    s_cmp_lg_u32 s23, 0
    s_cbranch_scc1 L_mend
    s_mov_b32 s29, {WS_TAG:#x}
    """)
    flag(k,29,48)
    k("L_mend:")
    stamp_flush(k,0,11,20,3,vt=8)
    k("s_endpgm")

def gen_help(k):
    VH=100; VW=102
    CS=72; WJ=88
    k(f"""
    L_help:
    v_lshrrev_b32 v12, 3, v2
    v_and_b32 v13, 7, v2
    v_lshlrev_b32 v14, 4, v13
    v_lshl_add_u32 v14, v12, 10, v14
    v_add_u32 v15, {8192-1024}, v14
    s_lshr_b32 s29, s2, 1                    ; kf
    s_and_b32 s30, s2, 1
    s_lshl_b32 s30, s30, 2
    s_add_u32 s30, s30, s65
    s_lshl_b32 s31, s29, 14
    s_lshl_b32 s52, s30, 7
    s_add_u32 s31, s31, s52
    s_lshl_b32 s52, s65, 11
    s_add_u32 s52, s52, {WDS}
    s_mov_b32 m0, s52
    s_mul_i32 s53, s30, 112
    s_add_u32 s53, s53, s29
    s_lshl_b32 s53, s53, 11
    s_add_u32 s53, s53, {WS_WT}
    s_mov_b32 s10, {1792*512*2:#x}
    s_mov_b32 s11, 0x20000
    s_waitcnt lgkmcnt(0)
    s_mov_b32 s8, s16
    s_mov_b32 s9, s17
    s_mov_b32 s4, s20
    s_mov_b32 s5, s21
    s_cmp_ge_u32 s2, 224
    s_cbranch_scc1 L_h0
    buffer_load_dwordx4 v14, s[8:11], s31 offen lds
    buffer_load_dwordx4 v15, s[8:11], s31 offen offset:1024 lds
    L_h0:
    global_load_ushort v8, v4, s[38:39]
    global_load_ushort v9, v4, s[40:41]
    global_load_ushort v10, v4, s[42:43]
    global_load_ushort v11, v4, s[44:45]
    buffer_load_dword v16, v5, s[4:7], s23 offen sc1
    s_load_dword s27, s[46:47], s22
    s_load_dword s28, s[48:49], s22
    s_getpc_b64 s[54:55]
    L_pc:
    s_add_u32 s54, s54, L_begin-L_pc
    s_addc_u32 s55, s55, -1
    s_lshr_b32 s29, s2, 3
    s_lshl_b32 s29, s29, 2
    s_add_u32 s29, s29, s65
    s_lshl_b32 s29, s29, 9
    v_and_b32 v17, 7, v2
    v_lshl_add_u32 v17, v17, 6, s29
    v_min_u32 v17, L_stop-L_begin-4, v17
    global_load_dword v17, v17, s[54:55]
    """)
    common_addr(k)
    k(f"""
    v_lshrrev_b32 v18, 5, v2
    v_bfe_u32 v19, v2, 2, 2
    v_lshl_add_u32 v18, v18, 2, v19
    v_lshlrev_b32 v18, 7, v18
    v_and_b32 v19, 1, v2
    v_lshl_add_u32 v18, v19, 5, v18
    v_bfe_u32 v19, v2, 4, 1
    v_lshl_add_u32 v18, v19, 4, v18
    v_bfe_u32 v19, v2, 1, 1
    v_lshl_add_u32 v18, v19, 3, v18
    v_add_u32 v18, s52, v18
    s_barrier        ; B1
    s_cmp_ge_u32 s2, 224
    s_cbranch_scc1 L_h1
    s_waitcnt vmcnt(6)
    """)
    for db in range(2):
        k(f"ds_read_b64_tr_b16 v[{WJ+4*db}:{WJ+4*db+1}], v18 offset:{64*db}\nds_read_b64_tr_b16 v[{WJ+4*db+2}:{WJ+4*db+3}], v18 offset:{64*db+1024}")
    k(f"""
    s_waitcnt lgkmcnt(0)
    buffer_store_dwordx4 v[{WJ}:{WJ+3}], v7, s[4:7], s53 offen sc1
    buffer_store_dwordx4 v[{WJ+4}:{WJ+7}], v7, s[4:7], s53 offen offset:1024 sc1
    s_waitcnt vmcnt(3)
    s_branch L_h2
    L_h1:
    s_waitcnt vmcnt(1) lgkmcnt(0)
    L_h2:
    v_readfirstlane_b32 s60, v16
    """)
    ts(k,1,False)
    kparams(k)
    k("s_mul_i32 s60, s60, 1664525\ns_add_u32 s60, s60, 1013904223")
    Z1=36; Z8=38; V=40; Z2=42; Z4=44; T=46; E=48; X0=50; X1=52; CC=54; C=56
    k("v_sub_f32 v9, 0, v9")
    direct(k, Z1, 8, 9, 1, T)
    direct(k, Z8, 8, 9, 8, T)
    direct(k, V, 8, 9, 256, T)
    k(f"""
    v_add_f32 v34, v34, v34
    v_lshlrev_b32 v10, 16, v10
    v_lshlrev_b32 v11, 16, v11
    v_mul_f32 v{CC}, v10, v34
    v_mul_f32 v{CC+1}, -v11, v34
    """)
    cnt=[0]
    def put(src, rows):
        c=C+(cnt[0]&3); cnt[0]+=1
        k(f"v_cvt_pk_bf16_f32 v{c}, v{src}, v{src+1}")
        for (r,h) in rows: k(f"ds_write_b32 v30, v{c} offset:{TROW*rho(r,h)}")
    put(CC,[(0,0)])
    cmul(k,Z2,Z1,Z1,T)
    cur=CC
    for r in range(1,8):
        nxt = X0 if cur!=X0 else X1
        cmul(k,nxt,cur,Z1,T); put(nxt,[(r,0)]); cur=nxt
    cmul(k,Z4,Z2,Z2,T)
    cmul(k,E,CC,V,T); put(E,[(0,1),(1,1)])
    cur=E
    for rows in ([(2,1)],[(3,1),(4,1),(5,1)],[(6,1)],[(7,1)]):
        nxt = X0 if cur!=X0 else X1
        cmul(k,nxt,cur,Z2,T); put(nxt,rows); cur=nxt
    ecur=E
    for h in (0,1):
        en = CC if ecur==E else E
        cmul(k,en,ecur,V,T); put(en,[(8,h)]); ecur=en
        cmul(k,X0,ecur,Z4,T); put(X0,[(9,h)])
        cmul(k,X1,X0,Z4,T); put(X1,[(10,h)])
    for (r,h) in ((11,0),(11,1),(13,0),(13,1)):
        en = CC if ecur==E else E
        cmul(k,en,ecur,V,T); put(en,[(r,h)]); ecur=en
        cmul(k,X0,ecur,Z8,T); put(X0,[(r+1,h)])
    k(f"""
    s_lshr_b32 s52, s2, 3
    s_min_u32 s53, s52, 27
    s_and_b32 s29, s2, 1
    s_mul_i32 s29, s29, 28
    s_add_u32 s29, s29, s53                  ; t
    s_mul_i32 s30, s29, 4682
    s_lshr_b32 s30, s30, 16                  ; kchunk
    s_mul_i32 s31, s30, 14
    s_sub_u32 s29, s29, s31
    s_cmp_ge_u32 s29, 7
    s_cselect_b32 s8, s14, s12
    s_cselect_b32 s9, s15, s13
    s_cselect_b32 s31, 7, 0
    s_cselect_b32 s53, {1792*4}, 0
    s_sub_u32 s29, s29, s31
    s_bfe_u32 s31, s2, 0x20001
    s_mul_i32 s31, s31, 7
    s_add_u32 s29, s29, s31                  ; cb
    s_lshl_b32 s30, s30, 2
    s_add_u32 s30, s30, s65
    s_mul_i32 s31, s30, {32*3584}
    s_lshl_b32 s54, s29, 7
    s_add_u32 s31, s31, s54                  ; W soffset
    s_mul_i32 s30, s30, {3584*4}
    s_lshl_b32 s29, s29, 8
    s_add_u32 s30, s30, s29
    s_add_u32 s53, s53, s30
    s_add_u32 s53, s53, {WS_CS}
    v_mul_u32_u24 v12, 3584, v12
    v_lshl_add_u32 v12, v13, 4, v12
    v_lshrrev_b32 v14, 4, v2
    v_lshlrev_b32 v14, 3, v14
    v_lshl_add_u32 v13, v13, 5, v14
    s_lshl_b32 s29, s2, 6
    s_add_u32 s29, s29, {WS_F1}
    s_waitcnt vmcnt(0) lgkmcnt(0)
    s_barrier        ; B2
    s_cmp_lg_u32 s3, 4
    s_cbranch_scc1 L_h3
    """)
    flag(k,29,20)
    k("L_h3:")
    ts(k,2,False)
    for i in range(4):
        k(f"buffer_load_dwordx4 v[{CS+4*i}:{CS+4*i+3}], v12, s[8:11], s31 offen")
        if i<3: k(f"s_add_u32 s31, s31, {8*3584}")
    k(f"""
    v_lshrrev_b32 v3, 4, v2
    v_and_b32 v4, 15, v2
    v_lshlrev_b32 v5, 2, v3
    v_xor_b32 v4, v4, v5
    v_lshlrev_b32 v4, 4, v4
    v_lshl_add_u32 v4, v3, 12, v4
    s_lshl_b32 s29, s65, 15
    v_add_u32 v{VH}, s29, v4
    v_add_u32 v{VH+1}, {16384-1024}, v{VH}
    s_lshl_b32 s70, s61, 8
    s_add_u32 s70, s70, {WS_HT}              ; H soffset
    s_mul_i32 s71, s62, 224
    s_mul_i32 s29, s66, 114688
    s_add_u32 s71, s71, s29
    s_lshl_b32 s72, s65, 11
    s_add_u32 s72, s72, {HB}                 ; H lds
    s_and_b32 s29, s65, 1
    s_mul_i32 s73, s29, {UOFF}
    s_mul_i32 s30, s66, {WSL}
    s_add_u32 s73, s73, s30
    s_add_u32 s73, s73, {WB}                 ; W lds
    s_cmp_eq_u32 s29, 0
    s_cselect_b32 s36, s12, s14
    s_cselect_b32 s37, s13, s15
    s_mov_b32 s38, {512*1792*2:#x}
    s_mov_b32 s39, 0x20000
    """)
    for i in range(7):
        k(f"""
        v_add_u32 v6, {64*i}, v2
        v_mul_u32_u24 v5, 4682, v6
        v_lshrrev_b32 v5, 16, v5
        v_mul_u32_u24 v4, 14, v5
        v_sub_u32 v6, v6, v4
        v_mul_u32_u24 v5, 3584, v5
        v_lshl_add_u32 v{VW+i}, v6, 4, v5
        """)
        if i&3: k(f"v_subrev_u32 v{VW+i}, {1024*(i&3)}, v{VW+i}")
    q=[]
    def issueH(j):
        if j>15: return
        k(f"s_add_u32 m0, s72, {(j%NH)*HS}\ns_add_u32 s31, s70, {j*131072}")
        k(f"buffer_load_dwordx4 v{VH}, s[4:7], s31 offen sc1 lds\nbuffer_load_dwordx4 v{VH+1}, s[4:7], s31 offen offset:1024 sc1 lds")
        q.extend([("H",j)]*2)
    def issueW(j):
        if j>15: return
        k(f"s_add_u32 m0, s73, {(j%NW)*WSL}\ns_add_u32 s31, s71, {j*114688}")
        for i in range(7):
            if i==4: k(f"s_add_u32 m0, s73, {(j%NW)*WSL+4096}")
            k(f"buffer_load_dwordx4 v{VW+i}, s[36:39], s31 offen offset:{1024*(i&3)} lds")
        q.extend([("W",j)]*7)
    wt=[0]
    def issueT(n):
        for _ in range(n):
            if wt[0]<2*NHS:
                wtload(k, HA, wt[0]); q.append(("T",wt[0])); wt[0]+=1
    k("s_barrier        ; B3")
    ts(k,4,False)
    eloads(k)
    issueW(0); issueW(2); issueT(NPRE)
    uprep(k, len(q))
    ts(k,5,False)
    for i in range(4):
        for j in range(4):
            if i==0: k(f"v_lshlrev_b32 v{24+2*j}, 16, v{CS+j}\nv_and_b32 v{25+2*j}, 0xffff0000, v{CS+j}")
            else:
                k(f"v_lshlrev_b32 v32, 16, v{CS+4*i+j}\nv_and_b32 v33, 0xffff0000, v{CS+4*i+j}")
                k(f"v_add_f32 v{24+2*j}, v{24+2*j}, v32\nv_add_f32 v{25+2*j}, v{25+2*j}, v33")
    for i in range(4): k(f"v_permlane32_swap_b32 v{24+i}, v{28+i}")
    for i in range(4): k(f"v_add_f32 v{24+i}, v{24+i}, v{28+i}")
    for i in range(2): k(f"v_permlane16_swap_b32 v{24+i}, v{26+i}")
    for i in range(2): k(f"v_add_f32 v{24+i}, v{24+i}, v{26+i}")
    for i in range(2): k(f"v_add_f32_dpp v{24+i}, v{24+i}, v{24+i} row_ror:8 row_mask:0xf bank_mask:0xf")
    k(f"""
    s_cmp_ge_u32 s52, 28
    s_cbranch_scc1 L_h4
    s_mov_b32 exec_lo, 0x00ff00ff
    s_mov_b32 exec_hi, 0x00ff00ff
    buffer_store_dwordx2 v[24:25], v13, s[4:7], s53 offen sc1
    s_mov_b64 exec, -1
    L_h4:
    v_and_b32 v3, 255, v0
    v_lshrrev_b32 v4, 5, v3
    v_lshlrev_b32 v4, 4, v4
    v_and_b32 v5, 15, v3
    v_add_u32 v4, v4, v5
    v_bfe_u32 v5, v3, 4, 1
    v_mul_u32_u24 v5, 1792, v5
    v_add_u32 v4, v4, v5
    v_lshlrev_b32 v4, 2, v4
    v_cmp_gt_u32 vcc, 224, v3
    v_mov_b32 v5, 0x7fffff00
    v_cndmask_b32 v4, v5, v4, vcc
    s_mul_i32 s53, s62, 448
    s_add_u32 s53, s53, {WS_CS}
    v_lshlrev_b32 v3, 4, v3
    v_add_u32 v3, {AP}, v3
    v_lshrrev_b32 v5, 4, v2
    v_lshlrev_b32 v6, 10, v5
    v_and_b32 v15, 15, v2
    v_lshl_add_u32 v6, v15, 4, v6
    s_lshl_b32 s29, s65, 8
    s_add_u32 s29, s29, {HB}
    v_add_u32 v6, s29, v6
    s_lshl_b32 s29, s65, 2
    v_xor_b32 v15, s29, v15
    v_lshlrev_b32 v15, 5, v15
    v_and_b32 v12, 1, v5
    v_lshl_add_u32 v15, v12, 4, v15
    v_lshrrev_b32 v12, 1, v5
    v_lshl_add_u32 v15, v12, 9, v15
    s_lshl_b32 s29, s65, 10
    s_add_u32 s29, s29, {PART}
    v_add_u32 v15, s29, v15
    v_and_b32 v13, 31, v2
    s_lshl_b32 s29, s65, 5
    v_add_u32 v13, s29, v13
    v_lshlrev_b32 v14, 4, v13
    v_add_u32 v14, {FS}, v14
    v_lshlrev_b32 v13, 2, v13
    v_lshl_add_u32 v13, v12, 9, v13
    v_add_u32 v13, {PART}, v13
    s_barrier        ; B5
    s_waitcnt vmcnt(0)
    s_barrier        ; B6
    s_barrier        ; B7
    """)
    ts(k,7,False)
    q.clear()
    for j in range(4): issueH(j)
    issueW(4)
    for j in range(4,8): issueH(j)
    for p in range(16):
        k(f"buffer_load_dword v{CS+p}, v4, s[4:7], s53 offen sc1"); q.append(("C",p))
        if p<15: k(f"s_add_u32 s53, s53, {3584*4}")
    S=24; Q=32; RB=[40,44,48]; T=52
    done=0
    rest=2*NHS-NPRE
    JC=6
    for j in range(16):
        need=[idx for idx,(kind,b) in enumerate(q) if (kind=="W" and b<=j) or (kind=="H" and b<=hb(j)) or (kind=="C" and j>=JC)]
        k(f"s_waitcnt vmcnt({min(63,len(q)-1-max(need))})\ns_barrier")
        if j>=2: issueH(j+NH-2)
        if j>=3 and j&1: issueW(j+3)
        if j>=1: issueT((rest*j)//13-(rest*(j-1))//13)
        rs=list(range(done,CUM[j])); done=CUM[j]
        for n,r in enumerate(rs):
            k(f"ds_read_b128 v[{RB[n]}:{RB[n]+3}], v6 offset:{((r>>1)%NH)*HS+(r&1)*4096}")
        if j==JC:
            for st in (8,4,2,1):
                for p in range(st): k(f"v_add_f32 v{CS+p}, v{CS+p}, v{CS+p+st}")
            k(f"""
            v_cvt_pk_bf16_f32 v9, v{CS}, v{CS}
            v_and_b32 v9, 0xffff0000, v9
            v_sub_f32 v8, v{CS}, v9
            v_cvt_pk_bf16_f32 v10, v8, v8
            v_and_b32 v10, 0xffff0000, v10
            v_sub_f32 v8, v8, v10
            v_cvt_pk_bf16_f32 v16, v9, v10
            v_cvt_pk_bf16_f32 v17, v8, 0
            v_mov_b32 v18, 0
            v_mov_b32 v19, 0
            """)
        for n,r in enumerate(rs):
            k(f"s_waitcnt lgkmcnt({len(rs)-1-n})")
            for d in range(4):
                src=RB[n]+d
                if r==0:
                    k(f"v_lshlrev_b32 v{S+2*d}, 16, v{src}\nv_and_b32 v{S+2*d+1}, 0xffff0000, v{src}")
                    k(f"v_mul_f32 v{Q+2*d}, v{S+2*d}, v{S+2*d}\nv_mul_f32 v{Q+2*d+1}, v{S+2*d+1}, v{S+2*d+1}")
                else:
                    t=T+2*(d&1)
                    k(f"v_lshlrev_b32 v{t}, 16, v{src}\nv_and_b32 v{t+1}, 0xffff0000, v{src}")
                    k(f"v_add_f32 v{S+2*d}, v{S+2*d}, v{t}\nv_add_f32 v{S+2*d+1}, v{S+2*d+1}, v{t+1}")
                    k(f"v_fmac_f32 v{Q+2*d}, v{t}, v{t}\nv_fmac_f32 v{Q+2*d+1}, v{t+1}, v{t+1}")
        if j==JC: k("ds_write_b128 v3, v[16:19]\ns_waitcnt lgkmcnt(0)")
        if j==13:
            for i in range(8): k(f"v_permlane32_swap_b32 v{S+i}, v{Q+i}")
            for i in range(8): k(f"v_add_f32 v{S+i}, v{S+i}, v{Q+i}")
            for i in range(4): k(f"v_permlane16_swap_b32 v{S+i}, v{S+4+i}")
            for i in range(4): k(f"v_add_f32 v{S+i}, v{S+i}, v{S+4+i}")
            k(f"ds_write_b128 v15, v[{S}:{S+3}]\ns_waitcnt lgkmcnt(0)")
        if j==14:
            for p in range(4): k(f"ds_read_b32 v{40+p}, v13 offset:{1024*p}")
            k(f"""
            v_mov_b32 v1, 0x3b000000
            s_waitcnt lgkmcnt(0)
            v_add_f32 v40, v40, v41
            v_add_f32 v42, v42, v43
            v_add_f32 v40, v40, v42
            v_mov_b32 v41, v40
            v_permlane32_swap_b32 v40, v41
            v_mul_f32 v40, v40, v1
            v_mul_f32 v41, v41, v1
            v_fma_f32 v41, -v40, v40, v41
            v_max_f32 v41, 0, v41
            v_cvt_pk_bf16_f32 v41, v41, v41
            v_and_b32 v41, 0xffff0000, v41
            v_add_f32 v41, 0x3727c5ac, v41
            v_cvt_pk_bf16_f32 v41, v41, v41
            v_and_b32 v41, 0xffff0000, v41
            v_sqrt_f32 v41, v41
            v_cvt_pk_bf16_f32 v44, -v40, -v40
            v_cvt_pk_bf16_f32 v41, v41, v41
            v_and_b32 v47, 0xffff0000, v41
            v_rcp_f32 v46, v47
            v_mov_b32 v45, v44
            v_mul_f32 v46, 0xbfb8aa3b, v46
            ds_write_b128 v14, v[44:47]
            s_waitcnt lgkmcnt(0)
            """)
    assert wt[0]==2*NHS
    ts(k,8,False)
    k(f"""
    v_add_u32 v6, {112*1024}, v7
    v_lshrrev_b32 v3, 2, v2
    v_lshlrev_b32 v3, 12, v3
    v_and_b32 v4, 3, v2
    v_lshl_add_u32 v3, v4, 4, v3
    v_add_u32 v4, {65536-1024}, v3
    s_and_b32 s29, s65, 1
    s_lshl_b32 s30, s64, 1
    s_add_u32 s29, s29, s30          ; d block32
    s_lshl_b32 s30, s63, 1
    s_add_u32 s30, s30, s66          ; l block32
    s_lshl_b32 s52, s29, 17
    s_lshl_b32 s53, s30, 6
    s_add_u32 s52, s52, s53
    s_add_u32 s52, s52, {WS_HT}      ; h soffset
    s_lshl_b32 s74, s30, 15
    s_lshl_b32 s53, s29, 6
    s_add_u32 s74, s74, s53
    s_lshl_b32 s53, s65, 11
    s_add_u32 s53, s53, {G2R}
    s_mov_b32 s8, s18
    s_mov_b32 s9, s19
    s_mov_b32 s10, {2048*512*2:#x}
    s_barrier        ; B8
    {'s_memrealtime s[92:93]' if STAMP else ''}
    s_mov_b32 m0, s53
    s_nop 0
    buffer_load_dwordx4 v3, s[4:7], s52 offen sc1 lds
    buffer_load_dwordx4 v4, s[4:7], s52 offen offset:1024 sc1 lds
    v_lshrrev_b32 v3, 5, v2
    v_bfe_u32 v4, v2, 2, 2
    v_lshl_add_u32 v4, v3, 4, v4
    v_lshlrev_b32 v4, 6, v4
    v_bfe_u32 v5, v2, 4, 1
    v_lshl_add_u32 v4, v5, 5, v4
    v_and_b32 v5, 3, v2
    v_lshl_add_u32 v4, v5, 3, v4
    v_add_u32 v4, s53, v4
    v_and_b32 v5, 31, v2
    v_lshlrev_b32 v5, 10, v5
    v_lshl_add_u32 v5, v3, 5, v5
    s_lshl_b32 s29, s65, 14
    s_add_u32 s29, s29, {G2H}
    v_add_u32 v3, s29, v7
    s_lshl_b32 s29, s65, 12
    v_add_u32 v1, s29, v7
    s_barrier        ; B9
    """)
    ts(k,9,False)
    A2=48
    free=[8+8*i for i in range(5)]
    slot={}; q=[]
    nxt=[0]
    def ldB():
        s=nxt[0]
        if s>=NHS or not free: return False
        if s and s%4==0: k("s_add_u32 s68, s68, 4096")
        b=free.pop(0); slot[s]=b
        k(f"buffer_load_dwordx4 v[{b}:{b+3}], v7, s[4:7], s68 offen offset:{1024*(s&3)} sc1")
        k(f"buffer_load_dwordx4 v[{b+4}:{b+7}], v6, s[4:7], s68 offen offset:{1024*(s&3)} sc1")
        q.extend([(s,0),(s,1)]); nxt[0]+=1
        return True
    while ldB(): pass
    for s in range(NHS):
        for lb in range(2):
            k(f"s_waitcnt vmcnt({len(q)-1-q.index((s,lb))})")
            for db in range(2):
                c=A2+16*(db+2*lb); a=HA+8*s+4*db; b=slot[s]+4*lb
                k(f"v_mfma_f32_32x32x16_bf16 v[{c}:{c+15}], v[{a}:{a+3}], v[{b}:{b+3}], {'0' if s==0 else f'v[{c}:{c+15}]'}")
        if s>=1:
            free.append(slot[s-1]); free.append(HA+8*(s-1))
        ldB(); ldB()
    for w in range(4):
        if w<3: k(f"s_cmp_lg_u32 s65, {w}\ns_cbranch_scc1 L4_w{w}")
        for qd in range(4):
            if qd==w: continue
            for j in range(4):
                k(f"ds_write_b128 v3, v[{A2+16*qd+4*j}:{A2+16*qd+4*j+3}] offset:{qd*4096+j*1024}")
        if w:
            for j in range(16): k(f"v_mov_b32 v{A2+j}, v{A2+16*w+j}")
        if w<3: k(f"s_branch L4_red\nL4_w{w}:")
    k("L4_red:")
    HT=8; HF=16; P=112
    for j in range(4): k(f"ds_read_b64_tr_b16 v[{HT+2*j}:{HT+1+2*j}], v4 offset:{j*256}")
    k("s_waitcnt lgkmcnt(0)\ns_barrier        ; B10")
    for p in range(4):
        for j in range(4): k(f"ds_read_b128 v[{P+16*p+4*j}:{P+3+16*p+4*j}], v1 offset:{G2M+p*16384+j*1024}")
    for j in range(8):
        k(f"v_and_b32 v{HF+1+2*j}, 0xffff0000, v{HT+j}\nv_lshlrev_b32 v{HF+2*j}, 16, v{HT+j}")
    def addp(p):
        for j in range(8): k(f"v_pk_add_f32 v[{A2+2*j}:{A2+2*j+1}], v[{A2+2*j}:{A2+2*j+1}], v[{P+16*p+2*j}:{P+1+16*p+2*j}]")
    for p in range(1,4):
        k(f"s_add_u32 s29, s65, {p}\ns_and_b32 s29, s29, 3\ns_lshl_b32 s29, s29, 14\ns_add_u32 s29, s29, {G2H}\nv_add_u32 v3, s29, v1")
        k(f"s_waitcnt lgkmcnt(12)");
        for j in range(4): k(f"ds_read_b128 v[{P+16*(p+3)+4*j}:{P+3+16*(p+3)+4*j}], v3 offset:{j*1024}")
        addp(p-1)
    for p in range(3,7):
        k(f"s_waitcnt lgkmcnt({4*(6-p)})"); addp(p)
    for j in range(8): k(f"v_cvt_pk_bf16_f32 v{64+j}, v{A2+2*j}, v{A2+2*j+1}")
    for j in range(8): k(f"v_lshlrev_b32 v{A2+2*j}, 16, v{64+j}\nv_and_b32 v{A2+2*j+1}, 0xffff0000, v{64+j}")
    for j in range(8): k(f"v_pk_add_f32 v[{A2+2*j}:{A2+2*j+1}], v[{A2+2*j}:{A2+2*j+1}], v[{HF+2*j}:{HF+1+2*j}]")
    for j in range(8): k(f"v_cvt_pk_bf16_f32 v{64+j}, v{A2+2*j}, v{A2+2*j+1}")
    for jj in range(2):
        k(f"buffer_store_dwordx4 v[{64+4*jj}:{67+4*jj}], v5, s[8:11], s74 offen offset:{16*jj}")
    ts(k,3,False)
    stamp_flush(k,0,11,20,3,vt=8)

if __name__=="__main__":
    out = sys.argv[1] if len(sys.argv)>1 else "m.s"
    finish(out, [gen_m()])
```

```python
import sys, os
sys.path.insert(0,'gen')
from common import *
from k2 import cmul, direct, rho, LOG2E, INV2PI
E_=lambda n,d: int(os.environ.get(n,str(d)),0)
WS_WT=0x1000000
WS_F1=0x1400000; WS_F2=0x1410000; WS_F3=0x1420000; WS_TAG=0x1430000
WSL=14464; UOFF=7296; NW=6; WB=0
TB=0; TA=33792; TBL=16896; TROW=528
UC=72320; UCC=4640; UCH=4*UCC
KC=109440; KCC=4224
XT=126336; T1=XT+8192; RED=142720
LNB=XT; ROWS=2112; WDS=143360
NH=8; HS=8192; HB=86784
MISC=HB+NH*HS; PART=MISC; FS=MISC+4096; AP=MISC+6144
G2M=0; G2H=65536; G2R=131072
LDS=163840
CUM=[2,4,6,8,10,13,15,18,20,23,25,28,30,32,32,32]
def hb(j): return max(j,(CUM[j]-1)>>1)
NM=10; NHS=18
MA=176; HA=112
NPRE=E_("NPRE",8)
SL1=E_("SL1",0); SL2=E_("SL2",8); SL3=E_("SL3",8); SLP=E_("SLP",2)
LIMIT=4000
TSI='s_memtime' if E_('CY',0) else 's_memrealtime'
def ts(k,i,drain=True):
    if not STAMP: return
    k(f"{TSI} s[{80+2*i}:{81+2*i}]")
    if drain: k("s_waitcnt lgkmcnt(0)")
def flush(k, idxs, base, wave):
    if STAMP!=2:
        stamp_flush(k,0,11,20,3,vt=8)
        if STAMP and wave==0: k("s_sub_u32 s29, s74, s72\nv_mov_b32 v8, s29\nbuffer_store_dword v8, v9, s[76:79], 0 offen offset:44")
        return
    DW=E_("DBGWG",0)
    k(f"s_cmp_lg_u32 s2, {DW}\ns_cbranch_scc1 L_df{wave}\ns_cmp_lg_u32 s3, {wave}\ns_cbranch_scc1 L_df{wave}")
    k("s_load_dwordx2 s[76:77], s[0:1], 96\ns_mov_b32 s78, 256\ns_mov_b32 s79, 0x20000\nv_mov_b32 v9, 0\ns_waitcnt lgkmcnt(0)")
    for n,i in enumerate(idxs):
        k(f"s_sub_u32 s29, s{80+2*i}, s80\nv_mov_b32 v8, s29\nbuffer_store_dword v8, v9, s[76:79], 0 offen offset:{4*(base+n)}")
    k(f"L_df{wave}:")
def poll(k, lab, voff, n, soff, t, first):
    if first: k(f"s_sleep {first}")
    k(f"s_mov_b32 s31, 0\n{lab}:")
    for j in range(n):
        if j: k(f"s_add_u32 s30, s{soff}, {4096*j}")
        k(f"buffer_load_dword v{t+j}, v{voff}, s[4:7], s{soff if j==0 else 30} offen sc1")
    k("s_add_u32 s31, s31, 1\ns_waitcnt vmcnt(0)")
    for j in range(n): k(f"v_xor_b32 v{t+j}, s60, v{t+j}")
    for j in range(1,n): k(f"v_or_b32 v{t}, v{t}, v{t+j}")
    k(f"""
    v_cmp_ne_u32 vcc, 0, v{t}
    s_cmp_gt_u32 s31, {LIMIT}
    s_cbranch_scc1 {lab}x
    s_cbranch_vccz {lab}x
    s_sleep {SLP}
    s_branch {lab}
    {lab}x:
    """)
def flag(k, soff, t):
    k(f"""
    v_mov_b32 v{t}, s60
    v_mov_b32 v{t+1}, 0
    s_mov_b64 exec, 1
    buffer_store_dword v{t}, v{t+1}, s[4:7], s{soff} offen sc1
    s_mov_b64 exec, -1
    """)
EB=56
def eloads(k):
    k(f"""
    buffer_load_dwordx4 v[{EB}:{EB+3}], v71, s[32:35], s26 offen sc1
    buffer_load_dwordx4 v[{EB+4}:{EB+7}], v70, s[32:35], s26 offen sc1
    buffer_load_dwordx4 v[{EB+8}:{EB+11}], v70, s[32:35], s26 offen offset:32 sc1
    """)
def uprep(k, nafter):
    k(f"s_waitcnt vmcnt({nafter+1})")
    for j in range(6): k(f"v_mov_b32 v{36+j}, v{EB+1+j}")
    k(f"""
    ds_write_b128 v68, v[{EB+2}:{EB+5}] offset:{UCC}
    ds_write_b128 v68, v[{EB+4}:{EB+7}] offset:{3*UCC}
    ds_write_b128 v68, v[36:39]
    ds_write_b128 v68, v[38:41] offset:{2*UCC}
    """)
    for j in range(4):
        k(f"v_lshlrev_b32 v{44+2*j}, 16, v{EB+4+j}\nv_and_b32 v{45+2*j}, 0xffff0000, v{EB+4+j}")
    for j in range(8): k(f"v_mul_f32 v{44+j}, s28, v{44+j}")
    for j in range(4): k(f"v_cvt_pk_bf16_f32 v{52+j}, v{44+2*j}, v{45+2*j}")
    k(f"""
    ds_write_b128 v69, v[52:55] offset:{T1-XT}
    s_waitcnt vmcnt({nafter})
    ds_write_b128 v69, v[{EB+8}:{EB+11}]
    s_waitcnt lgkmcnt(0)
    s_barrier
    """)
def kparams(k):
    k(f"""
    s_lshl_b32 s29, s66, 4
    s_lshr_b32 s27, s27, s29
    s_lshl_b32 s27, s27, 16
    s_lshr_b32 s28, s28, s26
    s_lshl_b32 s28, s28, 16
    v_mov_b32 v33, {LOG2E}
    v_mul_f32 v34, s27, v33
    v_exp_f32 v34, v34
    v_lshlrev_b32 v8, 16, v8
    v_lshlrev_b32 v9, 16, v9
    v_cvt_pk_bf16_f32 v34, v34, v34
    v_and_b32 v34, 0xffff0000, v34
    v_mul_f32 v8, v8, v33
    v_exp_f32 v8, v8
    v_mul_f32 v9, v9, v34
    v_cvt_pk_bf16_f32 v8, v8, v8
    v_and_b32 v8, 0xffff0000, v8
    v_mul_f32 v8, v8, v34
    v_mul_f32 v9, {INV2PI}, v9
    v_mul_f32 v8, 0xbfb8aa3b, v8
    """)
def common_addr(k):
    k(f"""
    v_mov_b32 v24, 0
    v_mov_b32 v25, 0
    v_mov_b32 v26, 0
    v_mov_b32 v27, 0
    s_mul_i32 s29, s3, {UCC}
    s_add_u32 s29, s29, {UC}
    v_add_u32 v28, s29, v7
    s_mul_i32 s29, s65, {KCC}
    s_add_u32 s29, s29, {KC}
    v_add_u32 v29, s29, v7
    s_mov_b64 exec, 0xffffff
    ds_write_b128 v28, v[24:27]
    s_mov_b64 exec, 0x7f
    ds_write_b128 v29, v[24:27]
    s_mov_b64 exec, -1
    s_mul_i32 s29, s66, {TBL}
    s_mul_i32 s31, s25, {TA}
    s_add_u32 s29, s29, s31
    s_and_b32 s31, s3, 1
    s_lshl_b32 s31, s31, 8
    s_add_u32 s29, s29, s31
    v_lshlrev_b32 v30, 2, v2
    v_add_u32 v30, s29, v30
    s_mul_i32 s29, s25, {UCH}
    s_add_u32 s29, s29, {UC+24*16}
    v_and_b32 v3, 255, v0
    v_lshlrev_b32 v69, 4, v3
    v_add_u32 v68, s29, v69
    s_lshl_b32 s29, s25, 12
    s_add_u32 s29, s29, {XT}
    v_add_u32 v69, s29, v69
    v_lshlrev_b32 v70, 6, v3
    v_subrev_u32 v71, 64, v70
    s_lshl_b32 s23, s2, 14
    s_add_u32 s32, s20, s23
    s_addc_u32 s33, s21, 0
    s_mov_b32 s34, 16384
    s_mov_b32 s35, 0x20000
    s_and_b32 s61, s2, 1
    s_lshl_b32 s61, s61, 3
    s_bfe_u32 s23, s2, 0x30003
    s_add_u32 s61, s61, s23          ; rb
    s_bfe_u32 s62, s2, 0x20001
    s_lshl_b32 s62, s62, 2
    s_lshr_b32 s23, s2, 6
    s_add_u32 s62, s62, s23          ; fs
    s_and_b32 s63, s2, 7
    s_lshl_b32 s63, s63, 2
    s_bfe_u32 s23, s2, 0x20003
    s_add_u32 s63, s63, s23          ; tl
    s_lshr_b32 s64, s2, 5            ; td
    s_mul_i32 s67, s64, 112
    s_mul_i32 s23, s65, 28
    s_mul_i32 s29, s25, {NM}
    s_add_u32 s23, s23, s29
    s_add_u32 s67, s67, s23
    s_lshl_b32 s67, s67, 11
    s_add_u32 s67, s67, {WS_WT}
    s_mul_i32 s68, s63, 224
    s_add_u32 s68, s68, s23
    s_lshl_b32 s68, s68, 10
    s_add_u32 s68, s68, {WS_HG}
    """)
def wtload(k, base, i):
    if i and i%4==0: k("s_add_u32 s67, s67, 4096")
    k(f"buffer_load_dwordx4 v[{base+4*i}:{base+4*i+3}], v7, s[4:7], s67 offen offset:{1024*(i&3)} sc1")

def gen_m():
    k = K("sequential_preLN__ssm_conv_s4d__glu_gated_glu__prompt_kernel", 256, 512, LDS, 256)
    k("L_begin:\ns_cmp_ge_u32 s2, 256\ns_cbranch_scc1 L_end")
    ts(k,0,False)
    k(f"""
    s_load_dwordx16 s[36:51], s[0:1], 0
    s_load_dwordx8 s[12:19], s[0:1], 64
    s_load_dwordx2 s[20:21], s[0:1], 104
    v_lshrrev_b32 v1, 6, v0
    v_and_b32 v2, 63, v0
    v_lshlrev_b32 v7, 4, v2
    v_readfirstlane_b32 s3, v1
    v_and_b32 v3, 255, v0
    s_lshl_b32 s24, s2, 9
    v_lshl_add_u32 v4, v3, 1, s24
    v_mov_b32 v5, 0
    s_lshl_b32 s22, s2, 2
    s_and_b32 s65, s3, 3
    s_lshr_b32 s25, s3, 2
    s_lshl_b32 s26, s25, 4
    s_bfe_u32 s66, s3, 0x10001
    s_mov_b32 s6, {WS_SIZE:#x}
    s_mov_b32 s7, 0x20000
    s_mov_b32 s23, {WS_TAG:#x}
    s_cmp_ge_u32 s3, 4
    s_cbranch_scc1 L_help
    """)
    gen_main(k)
    gen_help(k)
    k("L_end:\ns_endpgm\nL_stop:")
    return k

def gen_main(k):
    k(f"""
    s_lshl_b32 s29, s2, 13
    s_lshl_b32 s30, s3, 11
    s_add_u32 s29, s29, s30
    s_mov_b32 s10, {2048*512*2:#x}
    s_mov_b32 s11, 0x20000
    s_waitcnt lgkmcnt(0)
    s_mov_b32 s8, s36
    s_mov_b32 s9, s37
    s_mov_b32 s4, s20
    s_mov_b32 s5, s21
    buffer_load_dwordx4 v[12:15], v7, s[8:11], s29 offen
    buffer_load_dwordx4 v[16:19], v7, s[8:11], s29 offen offset:1024
    global_load_ushort v8, v4, s[38:39]
    global_load_ushort v9, v4, s[40:41]
    buffer_load_dword v10, v5, s[4:7], s23 offen sc1
    s_load_dword s27, s[46:47], s22
    s_load_dword s28, s[48:49], s22
    """)
    common_addr(k)
    X=12; F=36; O=52
    k(f"""
    v_mov_b32 v1, 0x3b000000
    s_mul_i32 s24, s3, {2*ROWS}
    s_add_u32 s24, s24, {LNB}
    v_lshlrev_b32 v4, 5, v2
    v_add_u32 v4, s24, v4
    v_bfe_u32 v5, v2, 2, 2
    v_mul_u32_u24 v5, {ROWS}, v5
    v_lshrrev_b32 v6, 4, v2
    v_lshl_add_u32 v5, v6, 5, v5
    v_and_b32 v6, 3, v2
    v_lshl_add_u32 v5, v6, 3, v5
    s_lshl_b32 s24, s3, 9
    s_add_u32 s24, s24, {LNB}
    v_add_u32 v5, s24, v5
    v_lshrrev_b32 v11, 2, v2
    v_lshlrev_b32 v11, 14, v11
    v_lshl_add_u32 v11, v6, 4, v11
    s_lshl_b32 s24, s3, 20
    s_lshl_b32 s29, s2, 6
    s_add_u32 s24, s24, s29
    """)
    for i in range(2):
        k(f"s_waitcnt vmcnt({4-i})")
        if i==0: ts(k,1,False)
        for j in range(4):
            k(f"v_lshlrev_b32 v{F+8*i+2*j}, 16, v{X+4*i+j}\nv_and_b32 v{F+1+8*i+2*j}, 0xffff0000, v{X+4*i+j}")
        f=F+8*i; S,Q=20+2*i,21+2*i
        k(f"v_add_f32 v{S}, v{f}, v{f+1}\nv_mul_f32 v{Q}, v{f}, v{f}\nv_fmac_f32 v{Q}, v{f+1}, v{f+1}")
        for j in range(2,8): k(f"v_add_f32 v{S}, v{S}, v{f+j}\nv_fmac_f32 v{Q}, v{f+j}, v{f+j}")
    for dpp in ("row_shr:1","row_shr:2","row_shr:4","row_shr:8"):
        for r in range(20,24): k(f"v_add_f32_dpp v{r}, v{r}, v{r} {dpp} row_mask:0xf bank_mask:0xf bound_ctrl:1")
    for dpp in ("row_bcast:15 row_mask:0xa","row_bcast:31 row_mask:0xc"):
        for r in range(20,24): k(f"v_add_f32_dpp v{r}, v{r}, v{r} {dpp} bank_mask:0xf")
    for r in range(4): k(f"v_readlane_b32 s{52+r}, v{20+r}, 63")
    for i in range(2):
        M,V,T=24+3*i,25+3*i,26+3*i
        k(f"""
        v_mul_f32 v{M}, s{52+2*i}, v1
        v_mul_f32 v{V}, s{53+2*i}, v1
        v_fma_f32 v{V}, -v{M}, v{M}, v{V}
        v_max_f32 v{V}, 0, v{V}
        v_cvt_pk_bf16_f32 v{T}, v{M}, v{V}
        v_lshlrev_b32 v{M}, 16, v{T}
        v_and_b32 v{V}, 0xffff0000, v{T}
        v_add_f32 v{V}, 0x3727c5ac, v{V}
        v_cvt_pk_bf16_f32 v{V}, v{V}, v{V}
        v_and_b32 v{V}, 0xffff0000, v{V}
        v_sqrt_f32 v{V}, v{V}
        v_cvt_pk_bf16_f32 v{V}, v{V}, v{V}
        v_and_b32 v{V}, 0xffff0000, v{V}
        v_rcp_f32 v{V}, v{V}
        """)
    for i in range(2):
        M,V=24+3*i,25+3*i; f=F+8*i; o=O+8*i
        for j in range(8): k(f"v_sub_f32 v{f+j}, v{f+j}, v{M}")
        for j in range(4): k(f"v_cvt_pk_bf16_f32 v{o+2*j}, v{f+2*j}, v{f+2*j+1}")
        for j in range(4): k(f"v_lshlrev_b32 v{f+2*j}, 16, v{o+2*j}\nv_and_b32 v{f+2*j+1}, 0xffff0000, v{o+2*j}")
        for j in range(8): k(f"v_mul_f32 v{f+j}, v{f+j}, v{V}")
        for j in range(4): k(f"v_cvt_pk_bf16_f32 v{o+2*j}, v{f+2*j}, v{f+2*j+1}\nv_mov_b32 v{o+2*j+1}, v{X+4*i+j}")
        k(f"ds_write_b128 v4, v[{o}:{o+3}] offset:{i*ROWS}\nds_write_b128 v4, v[{o+4}:{o+7}] offset:{i*ROWS+16}")
    k("s_waitcnt lgkmcnt(0)\ns_barrier        ; B1")
    for it in range(4):
        k(f"ds_read_b64_tr_b16 v[{12+4*it}:{13+4*it}], v5 offset:{it*128}")
        k(f"ds_read_b64_tr_b16 v[{14+4*it}:{15+4*it}], v5 offset:{it*128+4*ROWS}")
    for it in range(4):
        k(f"s_waitcnt lgkmcnt({6-2*it})")
        k(f"buffer_store_dwordx4 v[{12+4*it}:{15+4*it}], v11, s[4:7], s24 offen sc1")
        if it<3: k(f"s_add_u32 s24, s24, {16*16384}")
    ts(k,2,False)
    k("s_waitcnt vmcnt(4)\nv_readfirstlane_b32 s60, v10")
    kparams(k)
    k("s_mul_i32 s60, s60, 1664525\ns_add_u32 s60, s60, 1013904223")
    W=36; X0=38; X1=40; T=42; C=44
    direct(k, W, 8, 9, 8, T)
    k(f"v_mov_b32 v{C}, 0x00003f80\nds_write_b32 v30, v{C}")
    k(f"v_cvt_pk_bf16_f32 v{C+1}, v{W}, v{W+1}\nds_write_b32 v30, v{C+1} offset:{TROW}")
    cur=W
    for j in range(2,32):
        nxt = X0 if cur!=X0 else X1
        cmul(k, nxt, cur, W, T)
        c=C+(j&3)
        k(f"v_cvt_pk_bf16_f32 v{c}, v{nxt}, v{nxt+1}\nds_write_b32 v30, v{c} offset:{TROW*j}")
        cur=nxt
    k(f"""
    v_and_b32 v4, 31, v2
    v_mul_u32_u24 v4, {TROW}, v4
    v_lshrrev_b32 v5, 5, v2
    v_lshl_add_u32 v4, v5, 4, v4
    s_mul_i32 s29, s66, {TBL}
    v_add_u32 v4, s29, v4
    s_waitcnt vmcnt(0) lgkmcnt(0)
    s_barrier        ; B2
    """)
    ts(k,3)
    NB=6; KR=112
    def rd(s):
        b=KR+8*(s%NB)
        k(f"ds_read_b128 v[{b}:{b+3}], v4 offset:{TA+32*s}\nds_read_b128 v[{b+4}:{b+7}], v4 offset:{TB+32*s}")
    for s in range(NB-1): rd(s)
    k(f"""
    s_mul_i32 s29, s3, {KCC}
    s_add_u32 s29, s29, {KC+7*16}
    v_add_u32 v5, s29, v7
    v_and_b32 v8, 1, v2
    v_mul_u32_u24 v8, {KCC}, v8
    v_bfe_u32 v9, v2, 1, 3
    v_lshrrev_b32 v10, 4, v2
    v_sub_u32 v9, v9, v10
    v_add_u32 v9, 3, v9
    v_lshl_add_u32 v8, v9, 4, v8
    s_mul_i32 s29, s66, {2*KCC}
    s_and_b32 s69, s3, 1                     ; c-half
    s_lshl_b32 s56, s69, 8
    s_add_u32 s29, s29, s56
    s_add_u32 s29, s29, {KC}
    v_add_u32 v8, s29, v8
    v_and_b32 v9, 3, v2
    v_mul_u32_u24 v11, {UCC}, v9
    v_bfe_u32 v12, v2, 2, 2
    v_lshl_add_u32 v13, v12, 3, v10
    v_lshl_add_u32 v11, v13, 4, v11
    s_mul_i32 s29, s66, {UCH}
    s_sub_u32 s29, s29, s56
    s_add_u32 s29, s29, {UC+16*16}
    v_add_u32 v11, s29, v11
    v_lshlrev_b32 v13, 5, v10
    v_lshl_add_u32 v13, v9, 2, v13
    v_lshl_add_u32 v13, v12, 7, v13
    v_and_b32 v14, 1, v2
    v_cmp_eq_u32 s[58:59], 1, v14
    """)
    D=16
    for s in range(16):
        if s+NB-1<16: rd(s+NB-1)
        k(f"s_waitcnt lgkmcnt({2*(min(15,s+NB-1)-s)})")
        b=KR+8*(s%NB)
        k(f"v_mfma_f32_32x32x16_bf16 v[{D}:{D+15}], v[{b}:{b+3}], v[{b+4}:{b+7}], {'0' if s==0 else f'v[{D}:{D+15}]'}")
    e=lambda r: D+r
    O=32
    k(f"v_cndmask_b32 v48, v{e(11)}, v{e(12)}, s[58:59]\nv_cndmask_b32 v49, v{e(13)}, v{e(14)}, s[58:59]")
    k("s_cmp_eq_u32 s69, 0\ns_cbranch_scc1 L2_a0")
    def grp(idx, pairs):
        o=O+4*idx
        for t,(lo,hi) in enumerate(pairs):
            if t>0 and pairs[t-1]==(lo,hi): k(f"v_mov_b32 v{o+t}, v{o+t-1}")
            else: k(f"v_cvt_pk_bf16_f32 v{o+t}, v{lo}, v{hi}")
        k(f"ds_write_b128 v5, v[{o}:{o+3}] offset:{idx*1024}")
    grp(0,[(e(7),e(6)),(e(5),e(4)),(e(3),e(2)),(e(1),e(0))])
    grp(1,[(e(10),e(10)),(e(9),e(9)),(e(9),e(8)),(e(8),e(8))])
    grp(2,[(e(12),e(12)),(e(12),48),(e(11),e(11)),(e(11),e(11))])
    grp(3,[(e(14),e(14)),(e(14),49),(e(13),e(13)),(e(13),e(13))])
    k("s_branch L2_conv\nL2_a0:")
    k("v_mov_b32 v50, 0")
    k(f"v_mov_b32_dpp v50, v{e(7)} wave_shr:1 row_mask:0xf bank_mask:0xf bound_ctrl:1")
    grp(1,[(e(10),e(9)),(e(9),e(9)),(e(8),e(8)),(e(8),e(8))])
    grp(2,[(e(12),e(12)),(48,e(11)),(e(11),e(11)),(e(11),e(11))])
    grp(3,[(e(14),e(14)),(49,e(13)),(e(13),e(13)),(e(13),e(13))])
    grp(0,[(e(6),e(5)),(e(4),e(3)),(e(2),e(1)),(e(0),50)])
    k(f"""
    L2_conv:
    v_lshlrev_b32 v3, 6, v2
    s_mov_b32 s29, {WS_F1:#x}
    s_cmp_lg_u32 s3, 0
    s_cbranch_scc1 L_p1x
    """)
    poll(k,"L_p1",3,4,29,52,SL1)
    k("s_waitcnt lgkmcnt(0)\ns_barrier        ; B3")
    ts(k,4)
    eloads(k)
    for i in range(2*NM): wtload(k, MA, i)
    AF=[48,112]; BF=[80,144]; ACC=16
    def rdA(buf,g,cl): k(f"ds_read_b128 v[{AF[buf]+4*g}:{AF[buf]+4*g+3}], v8 offset:{512*g+64*cl}")
    def rdB(buf,t,cl): k(f"ds_read_b128 v[{BF[buf]+4*t}:{BF[buf]+4*t+3}], v11 offset:{512*t+(12-4*cl)*16}")
    for g in range(8): rdA(1,g,0)
    uprep(k, 2*NM)
    ts(k,5)
    k("s_setprio 1")
    for t in range(8): rdB(1,t,0)
    first=[True]*8
    for cl in range(4):
        buf=(cl&1)^1
        pend=[]
        if cl<3:
            for g in range(8): pend += [("A",g),("B",g)]
        seq=[(t,g) for t in range(8) for g in range(t+1)]
        issued=0
        for idx,(t,g) in enumerate(seq):
            if g==0:
                if cl==0: k(f"s_waitcnt lgkmcnt({min(15,7-t+issued)})")
                else: k(f"s_waitcnt lgkmcnt({min(15,14-2*t+issued)})")
            a=AF[buf]+4*g; b=BF[buf]+4*(t-g); c=ACC+4*t
            k(f"v_mfma_f32_16x16x32_bf16 v[{c}:{c+3}], v[{a}:{a+3}], v[{b}:{b+3}], {'0' if first[t] else f'v[{c}:{c+3}]'}")
            first[t]=False
            start = 4
            if pend and idx>=start and (idx%2==0 or len(seq)-idx<=len(pend)+2):
                kind,j=pend.pop(0)
                (rdA if kind=="A" else rdB)(buf^1,j,cl+1); issued+=1
        assert not pend
    k(f"""
    s_lshl_b32 s29, s3, 12
    s_add_u32 s29, s29, {RED}
    v_add_u32 v4, s29, v7
    s_xor_b32 s29, s3, 1
    s_lshl_b32 s29, s29, 12
    s_add_u32 s29, s29, {RED}
    v_add_u32 v5, s29, v7
    s_lshl_b32 s29, s3, 11
    s_lshl_b32 s57, s2, 13
    s_add_u32 s57, s57, s29
    s_add_u32 s57, s57, {WS_HT}
    s_add_u32 s29, s29, {XT}
    v_add_u32 v6, s29, v13
    v_add_u32 v9, s29, v7
    """)
    XR=112
    for t in range(4):
        k(f"ds_read_b32 v{XR+4*t}, v6 offset:{512*t}\nds_read_b32 v{XR+1+4*t}, v6 offset:{512*t+16}")
        k(f"ds_read_b32 v{XR+2+4*t}, v6 offset:{512*t+T1-XT}\nds_read_b32 v{XR+3+4*t}, v6 offset:{512*t+16+T1-XT}")
    k("s_cmp_eq_u32 s69, 0\ns_cbranch_scc1 L2_r0")
    for t in range(4): k(f"ds_write_b128 v4, v[{ACC+4*t}:{ACC+4*t+3}] offset:{1024*t}")
    k("s_waitcnt lgkmcnt(0)")
    for j in range(16): k(f"v_mov_b32 v{ACC+j}, v{ACC+16+j}")
    k("s_branch L2_r1\nL2_r0:")
    for t in range(4): k(f"ds_write_b128 v4, v[{ACC+16+4*t}:{ACC+16+4*t+3}] offset:{1024*t}")
    k("L2_r1:\ns_waitcnt lgkmcnt(0)\ns_barrier        ; B5")
    for t in range(4): k(f"ds_read_b128 v[{48+4*t}:{51+4*t}], v5 offset:{1024*t}")
    for t in range(4):
        for hh in range(2):
            i=2*t+hh
            k(f"v_lshlrev_b32 v{64+2*i}, 16, v{XR+4*t+hh}\nv_and_b32 v{65+2*i}, 0xffff0000, v{XR+4*t+hh}")
            k(f"v_lshlrev_b32 v{80+2*i}, 16, v{XR+2+4*t+hh}\nv_and_b32 v{81+2*i}, 0xffff0000, v{XR+2+4*t+hh}")
    for t in range(4):
        k(f"s_waitcnt lgkmcnt({3-t+2*t})")
        a=ACC+4*t
        for r in range(4): k(f"v_add_f32 v{a+r}, v{a+r}, v{48+4*t+r}")
        def rnd(): k(f"v_cvt_pk_bf16_f32 v{a}, v{a}, v{a+1}\nv_cvt_pk_bf16_f32 v{a+2}, v{a+2}, v{a+3}")
        def unp():
            k(f"v_and_b32 v{a+1}, 0xffff0000, v{a}\nv_and_b32 v{a+3}, 0xffff0000, v{a+2}")
            k(f"v_lshlrev_b32 v{a}, 16, v{a}\nv_lshlrev_b32 v{a+2}, 16, v{a+2}")
        rnd(); unp()
        for r in range(4): k(f"v_add_f32 v{a+r}, v{a+r}, v{80+4*t+r}")
        rnd(); unp()
        for r in range(4): k(f"v_add_f32 v{a+r}, v{a+r}, v{64+4*t+r}")
        rnd()
        k(f"ds_write_b32 v6, v{a} offset:{512*t}\nds_write_b32 v6, v{a+2} offset:{512*t+16}")
    k(f"""
    s_waitcnt lgkmcnt(0)
    ds_read_b128 v[48:51], v9
    ds_read_b128 v[52:55], v9 offset:1024
    s_waitcnt lgkmcnt(1)
    buffer_store_dwordx4 v[48:51], v7, s[4:7], s57 offen sc1
    s_waitcnt lgkmcnt(0)
    buffer_store_dwordx4 v[52:55], v7, s[4:7], s57 offen offset:1024 sc1
    """)
    ts(k,6,False)
    NA=4; AW=16; BW=32; BP=40; ZS=44; ACC=56
    k(f"""
    v_lshrrev_b32 v3, 5, v2
    v_bfe_u32 v4, v2, 2, 2
    v_lshl_add_u32 v5, v3, 3, v4
    v_bfe_u32 v6, v2, 4, 1
    v_and_b32 v15, 3, v2
    v_lshlrev_b32 v15, 3, v15
    v_mul_u32_u24 v8, 224, v5
    v_mul_u32_u24 v9, {UOFF}, v6
    v_add3_u32 v8, v8, v9, v15
    v_add_u32 v9, {4*WSL}, v8
    v_xor_b32 v10, s3, v4
    v_lshlrev_b32 v10, 6, v10
    v_lshl_add_u32 v10, v5, 8, v10
    v_lshl_add_u32 v10, v6, 5, v10
    v_add_u32 v10, v10, v15
    v_add_u32 v10, {HB}, v10
    v_and_b32 v11, 31, v2
    v_lshlrev_b32 v12, 4, v11
    s_lshl_b32 s29, s3, 9
    s_add_u32 s29, s29, {FS}
    v_add_u32 v13, s29, v12
    v_add_u32 v12, {AP}, v12
    v_cmp_eq_u32 s[56:57], 0, v3
    v_mov_b32 v{BP+2}, 0
    v_mov_b32 v{BP+3}, 0
    s_lshl_b32 s70, s61, 2
    s_add_u32 s70, s70, s3
    s_mul_i32 s70, s70, 112
    s_mul_i32 s29, s62, 7
    s_add_u32 s70, s70, s29
    s_lshl_b32 s70, s70, 10
    s_add_u32 s70, s70, {WS_HG}
    v_lshlrev_b32 v3, 6, v2
    s_lshl_b32 s29, s2, 6
    s_add_u32 s29, s29, {WS_F2}
    s_waitcnt vmcnt(0)
    s_barrier        ; B6
    s_cmp_lg_u32 s3, 0
    s_cbranch_scc1 L_p2x
    """)
    flag(k,29,48)
    k(f"s_mov_b32 s29, {WS_F2:#x}")
    poll(k,"L_p2",3,4,29,48,SL2)
    k("s_barrier        ; B7")
    ts(k,7)
    q=[]
    def rdA1(t):
        b=AW+4*(t%NA)
        if t>=231: return
        if t>=224:
            k(f"ds_read_b128 v[{b}:{b+3}], v12 offset:{(t-224)*512}"); q.append(("A",t)); return
        s=t//7; fb=t%7; j=s>>1; kk=s&1; sl=j%NW
        va = 8 if sl<4 else 9
        off=(sl%4)*WSL + kk*16*224 + fb*32
        k(f"ds_read_b64_tr_b16 v[{b}:{b+1}], v{va} offset:{off}\nds_read_b64_tr_b16 v[{b+2}:{b+3}], v{va} offset:{off+4*224}")
        q.extend([("A",t)]*2)
    def rdB1(s):
        b=BW+4*(s&1)
        if s==32:
            k(f"ds_read_b64 v[{BP}:{BP+1}], v13\nds_read_b64 v[{ZS}:{ZS+1}], v13 offset:8"); q.extend([("B",s)]*2); return
        j=s>>1; off=(j%NH)*HS+(s&1)*4096
        k(f"ds_read_b64_tr_b16 v[{b}:{b+1}], v10 offset:{off}\nds_read_b64_tr_b16 v[{b+2}:{b+3}], v10 offset:{off+1024}")
        q.extend([("B",s)]*2)
    k("s_barrier        ; G0")
    if STAMP: k("s_memtime s[72:73]")
    ts(k,8)
    rdB1(0)
    for t in range(NA): rdA1(t)
    for t in range(231):
        s=t//7; fb=t%7
        need=max(idx for idx,tag in enumerate(q) if tag==("A",t) or tag==("B",s))
        k(f"s_waitcnt lgkmcnt({len(q)-1-need})")
        a=AW+4*(t%NA); c=ACC+16*fb
        if s==32:
            if fb==0: k(f"v_cndmask_b32 v{BP}, 0, v{BP}, s[56:57]\nv_cndmask_b32 v{BP+1}, 0, v{BP+1}, s[56:57]")
            b=BP
        else: b=BW+4*(s&1)
        k(f"v_mfma_f32_32x32x16_bf16 v[{c}:{c+15}], v[{a}:{a+3}], v[{b}:{b+3}], {'0' if s==0 else f'v[{c}:{c+15}]'}")
        if fb==7-NA and s<32:
            if s&1 and s<31: k("s_barrier")
            rdB1(s+1)
        rdA1(t+NA)
    ts(k,10,False)
    if STAMP: k("s_memtime s[74:75]")
    for fb in range(7):
        c=ACC+16*fb; o=AW+4*(fb&3)
        for i in range(4): k(f"v_pk_mul_f32 v[{c+2*i}:{c+2*i+1}], v[{c+2*i}:{c+2*i+1}], v[{ZS}:{ZS+1}] op_sel_hi:[1,0]")
        for i in range(8): k(f"v_exp_f32 v{c+i}, v{c+i}")
        for i in range(4): k(f"v_pk_fma_f32 v[{c+2*i}:{c+2*i+1}], v[{c+2*i}:{c+2*i+1}], v[{ZS}:{ZS+1}], v[{ZS}:{ZS+1}] op_sel:[0,1,1] op_sel_hi:[1,1,1]")
        for i in range(8): k(f"v_rcp_f32 v{c+i}, v{c+i}")
        for i in range(4): k(f"v_pk_mul_f32 v[{c+2*i}:{c+2*i+1}], v[{c+2*i}:{c+2*i+1}], v[{c+8+2*i}:{c+9+2*i}]")
        for i in range(4): k(f"v_cvt_pk_bf16_f32 v{o+i}, v{c+2*i}, v{c+2*i+1}")
        if fb==4: k("s_add_u32 s70, s70, 4096")
        k(f"buffer_store_dwordx4 v[{o}:{o+3}], v7, s[4:7], s70 offen offset:{1024*(fb&3)} sc1")
    k(f"""
    s_setprio 0
    s_lshl_b32 s29, s61, 4
    s_add_u32 s29, s29, s62
    s_lshl_b32 s29, s29, 6
    s_add_u32 s29, s29, {WS_F3}
    v_add_u32 v6, {112*1024}, v7
    s_lshl_b32 s23, s3, 14
    v_add_u32 v5, s23, v7
    v_and_b32 v3, 15, v2
    v_lshlrev_b32 v3, 6, v3
    s_waitcnt vmcnt(0)
    s_barrier        ; B8
    s_cmp_lg_u32 s3, 0
    s_cbranch_scc1 L_p3x
    """)
    flag(k,29,48)
    k(f"s_lshr_b32 s29, s63, 1\ns_lshl_b32 s29, s29, 10\ns_add_u32 s29, s29, {WS_F3}")
    poll(k,"L_p3",3,1,29,48,SL3)
    k("s_barrier        ; B9")
    ts(k,9,False)
    A2=48
    slots=[8+8*i for i in range(5)]+[112+8*i for i in range(5)]
    for s in range(NM):
        if s and s%4==0: k("s_add_u32 s68, s68, 4096")
        b=slots[s]
        k(f"buffer_load_dwordx4 v[{b}:{b+3}], v7, s[4:7], s68 offen offset:{1024*(s&3)} sc1")
        k(f"buffer_load_dwordx4 v[{b+4}:{b+7}], v6, s[4:7], s68 offen offset:{1024*(s&3)} sc1")
    for s in range(NM):
        for lb in range(2):
            k(f"s_waitcnt vmcnt({2*(NM-1-s)+1-lb})")
            for db in range(2):
                c=A2+16*(db+2*lb); a=MA+8*s+4*db; b=slots[s]+4*lb
                k(f"v_mfma_f32_32x32x16_bf16 v[{c}:{c+15}], v[{a}:{a+3}], v[{b}:{b+3}], {'0' if s==0 else f'v[{c}:{c+15}]'}")
    for j in range(16):
        k(f"ds_write_b128 v5, v[{A2+4*j}:{A2+4*j+3}] offset:{G2M+j*1024}")
    k(f"""
    s_waitcnt lgkmcnt(0)
    s_barrier        ; B10
    s_or_b32 s23, s2, s3
    s_cmp_lg_u32 s23, 0
    s_cbranch_scc1 L_mend
    s_mov_b32 s29, {WS_TAG:#x}
    """)
    flag(k,29,48)
    k("L_mend:")
    flush(k,[1,2,3,4,5,6,7,8,10,9],0,0)
    k("s_endpgm")

def gen_help(k):
    VH=100; VW=102
    CS=72; WJ=88
    k(f"""
    L_help:
    v_lshrrev_b32 v12, 3, v2
    v_and_b32 v13, 7, v2
    v_lshlrev_b32 v14, 4, v13
    v_lshl_add_u32 v14, v12, 10, v14
    v_add_u32 v15, {8192-1024}, v14
    s_lshr_b32 s29, s2, 1                    ; kf
    s_and_b32 s30, s2, 1
    s_lshl_b32 s30, s30, 2
    s_add_u32 s30, s30, s65
    s_lshl_b32 s31, s29, 14
    s_lshl_b32 s52, s30, 7
    s_add_u32 s31, s31, s52
    s_lshl_b32 s52, s65, 11
    s_add_u32 s52, s52, {WDS}
    s_mov_b32 m0, s52
    s_mul_i32 s53, s30, 112
    s_add_u32 s53, s53, s29
    s_lshl_b32 s53, s53, 11
    s_add_u32 s53, s53, {WS_WT}
    s_mov_b32 s10, {1792*512*2:#x}
    s_mov_b32 s11, 0x20000
    s_waitcnt lgkmcnt(0)
    s_mov_b32 s8, s16
    s_mov_b32 s9, s17
    s_mov_b32 s4, s20
    s_mov_b32 s5, s21
    s_cmp_ge_u32 s2, 224
    s_cbranch_scc1 L_h0
    buffer_load_dwordx4 v14, s[8:11], s31 offen lds
    buffer_load_dwordx4 v15, s[8:11], s31 offen offset:1024 lds
    L_h0:
    global_load_ushort v8, v4, s[38:39]
    global_load_ushort v9, v4, s[40:41]
    global_load_ushort v10, v4, s[42:43]
    global_load_ushort v11, v4, s[44:45]
    buffer_load_dword v16, v5, s[4:7], s23 offen sc1
    s_load_dword s27, s[46:47], s22
    s_load_dword s28, s[48:49], s22
    s_getpc_b64 s[54:55]
    L_pc:
    s_add_u32 s54, s54, L_begin-L_pc
    s_addc_u32 s55, s55, -1
    s_lshr_b32 s29, s2, 3
    s_lshl_b32 s29, s29, 2
    s_add_u32 s29, s29, s65
    s_lshl_b32 s29, s29, 9
    v_and_b32 v17, 7, v2
    v_lshl_add_u32 v17, v17, 6, s29
    v_min_u32 v17, L_stop-L_begin-4, v17
    global_load_dword v17, v17, s[54:55]
    """)
    common_addr(k)
    k(f"""
    v_lshrrev_b32 v18, 5, v2
    v_bfe_u32 v19, v2, 2, 2
    v_lshl_add_u32 v18, v18, 2, v19
    v_lshlrev_b32 v18, 7, v18
    v_and_b32 v19, 1, v2
    v_lshl_add_u32 v18, v19, 5, v18
    v_bfe_u32 v19, v2, 4, 1
    v_lshl_add_u32 v18, v19, 4, v18
    v_bfe_u32 v19, v2, 1, 1
    v_lshl_add_u32 v18, v19, 3, v18
    v_add_u32 v18, s52, v18
    s_barrier        ; B1
    s_cmp_ge_u32 s2, 224
    s_cbranch_scc1 L_h1
    s_waitcnt vmcnt(6)
    """)
    for db in range(2):
        k(f"ds_read_b64_tr_b16 v[{WJ+4*db}:{WJ+4*db+1}], v18 offset:{64*db}\nds_read_b64_tr_b16 v[{WJ+4*db+2}:{WJ+4*db+3}], v18 offset:{64*db+1024}")
    k(f"""
    s_waitcnt lgkmcnt(0)
    buffer_store_dwordx4 v[{WJ}:{WJ+3}], v7, s[4:7], s53 offen sc1
    buffer_store_dwordx4 v[{WJ+4}:{WJ+7}], v7, s[4:7], s53 offen offset:1024 sc1
    s_waitcnt vmcnt(3)
    s_branch L_h2
    L_h1:
    s_waitcnt vmcnt(1) lgkmcnt(0)
    L_h2:
    v_readfirstlane_b32 s60, v16
    """)
    ts(k,1,False)
    kparams(k)
    k("s_mul_i32 s60, s60, 1664525\ns_add_u32 s60, s60, 1013904223")
    Z1=36; Z8=38; V=40; Z2=42; Z4=44; T=46; E=48; X0=50; X1=52; CC=54; C=56
    k("v_sub_f32 v9, 0, v9")
    direct(k, Z1, 8, 9, 1, T)
    direct(k, Z8, 8, 9, 8, T)
    direct(k, V, 8, 9, 256, T)
    k(f"""
    v_add_f32 v34, v34, v34
    v_lshlrev_b32 v10, 16, v10
    v_lshlrev_b32 v11, 16, v11
    v_mul_f32 v{CC}, v10, v34
    v_mul_f32 v{CC+1}, -v11, v34
    """)
    cnt=[0]
    def put(src, rows):
        c=C+(cnt[0]&3); cnt[0]+=1
        k(f"v_cvt_pk_bf16_f32 v{c}, v{src}, v{src+1}")
        for (r,h) in rows: k(f"ds_write_b32 v30, v{c} offset:{TROW*rho(r,h)}")
    put(CC,[(0,0)])
    cmul(k,Z2,Z1,Z1,T)
    cur=CC
    for r in range(1,8):
        nxt = X0 if cur!=X0 else X1
        cmul(k,nxt,cur,Z1,T); put(nxt,[(r,0)]); cur=nxt
    cmul(k,Z4,Z2,Z2,T)
    cmul(k,E,CC,V,T); put(E,[(0,1),(1,1)])
    cur=E
    for rows in ([(2,1)],[(3,1),(4,1),(5,1)],[(6,1)],[(7,1)]):
        nxt = X0 if cur!=X0 else X1
        cmul(k,nxt,cur,Z2,T); put(nxt,rows); cur=nxt
    ecur=E
    for h in (0,1):
        en = CC if ecur==E else E
        cmul(k,en,ecur,V,T); put(en,[(8,h)]); ecur=en
        cmul(k,X0,ecur,Z4,T); put(X0,[(9,h)])
        cmul(k,X1,X0,Z4,T); put(X1,[(10,h)])
    for (r,h) in ((11,0),(11,1),(13,0),(13,1)):
        en = CC if ecur==E else E
        cmul(k,en,ecur,V,T); put(en,[(r,h)]); ecur=en
        cmul(k,X0,ecur,Z8,T); put(X0,[(r+1,h)])
    k(f"""
    s_lshr_b32 s52, s2, 3
    s_min_u32 s53, s52, 27
    s_and_b32 s29, s2, 1
    s_mul_i32 s29, s29, 28
    s_add_u32 s29, s29, s53                  ; t
    s_mul_i32 s30, s29, 4682
    s_lshr_b32 s30, s30, 16                  ; kchunk
    s_mul_i32 s31, s30, 14
    s_sub_u32 s29, s29, s31
    s_cmp_ge_u32 s29, 7
    s_cselect_b32 s8, s14, s12
    s_cselect_b32 s9, s15, s13
    s_cselect_b32 s31, 7, 0
    s_cselect_b32 s53, {1792*4}, 0
    s_sub_u32 s29, s29, s31
    s_bfe_u32 s31, s2, 0x20001
    s_mul_i32 s31, s31, 7
    s_add_u32 s29, s29, s31                  ; cb
    s_lshl_b32 s30, s30, 2
    s_add_u32 s30, s30, s65
    s_mul_i32 s31, s30, {32*3584}
    s_lshl_b32 s54, s29, 7
    s_add_u32 s31, s31, s54                  ; W soffset
    s_mul_i32 s30, s30, {3584*4}
    s_lshl_b32 s29, s29, 8
    s_add_u32 s30, s30, s29
    s_add_u32 s53, s53, s30
    s_add_u32 s53, s53, {WS_CS}
    v_mul_u32_u24 v12, 3584, v12
    v_lshl_add_u32 v12, v13, 4, v12
    v_lshrrev_b32 v14, 4, v2
    v_lshlrev_b32 v14, 3, v14
    v_lshl_add_u32 v13, v13, 5, v14
    s_lshl_b32 s29, s2, 6
    s_add_u32 s29, s29, {WS_F1}
    s_waitcnt vmcnt(0) lgkmcnt(0)
    s_barrier        ; B2
    s_cmp_lg_u32 s3, 4
    s_cbranch_scc1 L_h3
    """)
    flag(k,29,20)
    k("L_h3:")
    ts(k,2,False)
    for i in range(4):
        k(f"buffer_load_dwordx4 v[{CS+4*i}:{CS+4*i+3}], v12, s[8:11], s31 offen")
        if i<3: k(f"s_add_u32 s31, s31, {8*3584}")
    k(f"""
    v_lshrrev_b32 v3, 4, v2
    v_and_b32 v4, 15, v2
    v_lshlrev_b32 v5, 2, v3
    v_xor_b32 v4, v4, v5
    v_lshlrev_b32 v4, 4, v4
    v_lshl_add_u32 v4, v3, 12, v4
    s_lshl_b32 s29, s65, 15
    v_add_u32 v{VH}, s29, v4
    v_add_u32 v{VH+1}, {16384-1024}, v{VH}
    s_lshl_b32 s70, s61, 8
    s_add_u32 s70, s70, {WS_HT}              ; H soffset
    s_mul_i32 s71, s62, 224
    s_mul_i32 s29, s66, 114688
    s_add_u32 s71, s71, s29
    s_lshl_b32 s72, s65, 11
    s_add_u32 s72, s72, {HB}                 ; H lds
    s_and_b32 s29, s65, 1
    s_mul_i32 s73, s29, {UOFF}
    s_mul_i32 s30, s66, {WSL}
    s_add_u32 s73, s73, s30
    s_add_u32 s73, s73, {WB}                 ; W lds
    s_cmp_eq_u32 s29, 0
    s_cselect_b32 s36, s12, s14
    s_cselect_b32 s37, s13, s15
    s_mov_b32 s38, {512*1792*2:#x}
    s_mov_b32 s39, 0x20000
    """)
    for i in range(7):
        k(f"""
        v_add_u32 v6, {64*i}, v2
        v_mul_u32_u24 v5, 4682, v6
        v_lshrrev_b32 v5, 16, v5
        v_mul_u32_u24 v4, 14, v5
        v_sub_u32 v6, v6, v4
        v_mul_u32_u24 v5, 3584, v5
        v_lshl_add_u32 v{VW+i}, v6, 4, v5
        """)
        if i&3: k(f"v_subrev_u32 v{VW+i}, {1024*(i&3)}, v{VW+i}")
    q=[]
    def issueH(j):
        if j>15: return
        k(f"s_add_u32 m0, s72, {(j%NH)*HS}\ns_add_u32 s31, s70, {j*131072}")
        k(f"buffer_load_dwordx4 v{VH}, s[4:7], s31 offen sc1 lds\nbuffer_load_dwordx4 v{VH+1}, s[4:7], s31 offen offset:1024 sc1 lds")
        q.extend([("H",j)]*2)
    def issueW(j):
        if j>15: return
        k(f"s_add_u32 m0, s73, {(j%NW)*WSL}\ns_add_u32 s31, s71, {j*114688}")
        for i in range(7):
            if i==4: k(f"s_add_u32 m0, s73, {(j%NW)*WSL+4096}")
            k(f"buffer_load_dwordx4 v{VW+i}, s[36:39], s31 offen offset:{1024*(i&3)} lds")
        q.extend([("W",j)]*7)
    wt=[0]
    def issueT(n):
        for _ in range(n):
            if wt[0]<2*NHS:
                wtload(k, HA, wt[0]); q.append(("T",wt[0])); wt[0]+=1
    k("s_barrier        ; B3")
    ts(k,4,False)
    eloads(k)
    issueW(0); issueW(2); issueT(NPRE)
    uprep(k, len(q))
    ts(k,5,False)
    for i in range(4):
        for j in range(4):
            if i==0: k(f"v_lshlrev_b32 v{24+2*j}, 16, v{CS+j}\nv_and_b32 v{25+2*j}, 0xffff0000, v{CS+j}")
            else:
                k(f"v_lshlrev_b32 v32, 16, v{CS+4*i+j}\nv_and_b32 v33, 0xffff0000, v{CS+4*i+j}")
                k(f"v_add_f32 v{24+2*j}, v{24+2*j}, v32\nv_add_f32 v{25+2*j}, v{25+2*j}, v33")
    for i in range(4): k(f"v_permlane32_swap_b32 v{24+i}, v{28+i}")
    for i in range(4): k(f"v_add_f32 v{24+i}, v{24+i}, v{28+i}")
    for i in range(2): k(f"v_permlane16_swap_b32 v{24+i}, v{26+i}")
    for i in range(2): k(f"v_add_f32 v{24+i}, v{24+i}, v{26+i}")
    for i in range(2): k(f"v_add_f32_dpp v{24+i}, v{24+i}, v{24+i} row_ror:8 row_mask:0xf bank_mask:0xf")
    k(f"""
    s_cmp_ge_u32 s52, 28
    s_cbranch_scc1 L_h4
    s_mov_b32 exec_lo, 0x00ff00ff
    s_mov_b32 exec_hi, 0x00ff00ff
    buffer_store_dwordx2 v[24:25], v13, s[4:7], s53 offen sc1
    s_mov_b64 exec, -1
    L_h4:
    v_and_b32 v3, 255, v0
    v_lshrrev_b32 v4, 5, v3
    v_lshlrev_b32 v4, 4, v4
    v_and_b32 v5, 15, v3
    v_add_u32 v4, v4, v5
    v_bfe_u32 v5, v3, 4, 1
    v_mul_u32_u24 v5, 1792, v5
    v_add_u32 v4, v4, v5
    v_lshlrev_b32 v4, 2, v4
    v_cmp_gt_u32 vcc, 224, v3
    v_mov_b32 v5, 0x7fffff00
    v_cndmask_b32 v4, v5, v4, vcc
    s_mul_i32 s53, s62, 448
    s_add_u32 s53, s53, {WS_CS}
    v_lshlrev_b32 v3, 4, v3
    v_add_u32 v3, {AP}, v3
    v_lshrrev_b32 v5, 4, v2
    v_lshlrev_b32 v6, 10, v5
    v_and_b32 v15, 15, v2
    v_lshl_add_u32 v6, v15, 4, v6
    s_lshl_b32 s29, s65, 8
    s_add_u32 s29, s29, {HB}
    v_add_u32 v6, s29, v6
    s_lshl_b32 s29, s65, 2
    v_xor_b32 v15, s29, v15
    v_lshlrev_b32 v15, 5, v15
    v_and_b32 v12, 1, v5
    v_lshl_add_u32 v15, v12, 4, v15
    v_lshrrev_b32 v12, 1, v5
    v_lshl_add_u32 v15, v12, 9, v15
    s_lshl_b32 s29, s65, 10
    s_add_u32 s29, s29, {PART}
    v_add_u32 v15, s29, v15
    v_and_b32 v13, 31, v2
    s_lshl_b32 s29, s65, 5
    v_add_u32 v13, s29, v13
    v_lshlrev_b32 v14, 4, v13
    v_add_u32 v14, {FS}, v14
    v_lshlrev_b32 v13, 2, v13
    v_lshl_add_u32 v13, v12, 9, v13
    v_add_u32 v13, {PART}, v13
    s_barrier        ; B5
    s_waitcnt vmcnt(0)
    s_barrier        ; B6
    s_barrier        ; B7
    """)
    ts(k,7,False)
    q.clear()
    for j in range(4): issueH(j)
    issueW(4)
    for j in range(4,8): issueH(j)
    for p in range(16):
        k(f"buffer_load_dword v{CS+p}, v4, s[4:7], s53 offen sc1"); q.append(("C",p))
        if p<15: k(f"s_add_u32 s53, s53, {3584*4}")
    S=24; Q=32; RB=[40,44,48]; T=52
    done=0
    rest=2*NHS-NPRE
    JC=6
    for j in range(16):
        need=[idx for idx,(kind,b) in enumerate(q) if (kind=="W" and b<=j) or (kind=="H" and b<=hb(j)) or (kind=="C" and j>=JC)]
        k(f"s_waitcnt vmcnt({min(63,len(q)-1-max(need))})\ns_barrier")
        if j>=2: issueH(j+NH-2)
        if j>=3 and j&1: issueW(j+3)
        if j>=1: issueT((rest*j)//13-(rest*(j-1))//13)
        rs=list(range(done,CUM[j])); done=CUM[j]
        for n,r in enumerate(rs):
            k(f"ds_read_b128 v[{RB[n]}:{RB[n]+3}], v6 offset:{((r>>1)%NH)*HS+(r&1)*4096}")
        if j==JC:
            for st in (8,4,2,1):
                for p in range(st): k(f"v_add_f32 v{CS+p}, v{CS+p}, v{CS+p+st}")
            k(f"""
            v_cvt_pk_bf16_f32 v9, v{CS}, v{CS}
            v_and_b32 v9, 0xffff0000, v9
            v_sub_f32 v8, v{CS}, v9
            v_cvt_pk_bf16_f32 v10, v8, v8
            v_and_b32 v10, 0xffff0000, v10
            v_sub_f32 v8, v8, v10
            v_cvt_pk_bf16_f32 v16, v9, v10
            v_cvt_pk_bf16_f32 v17, v8, 0
            v_mov_b32 v18, 0
            v_mov_b32 v19, 0
            """)
        for n,r in enumerate(rs):
            k(f"s_waitcnt lgkmcnt({len(rs)-1-n})")
            for d in range(4):
                src=RB[n]+d
                if r==0:
                    k(f"v_lshlrev_b32 v{S+2*d}, 16, v{src}\nv_and_b32 v{S+2*d+1}, 0xffff0000, v{src}")
                    k(f"v_mul_f32 v{Q+2*d}, v{S+2*d}, v{S+2*d}\nv_mul_f32 v{Q+2*d+1}, v{S+2*d+1}, v{S+2*d+1}")
                else:
                    t=T+2*(d&1)
                    k(f"v_lshlrev_b32 v{t}, 16, v{src}\nv_and_b32 v{t+1}, 0xffff0000, v{src}")
                    k(f"v_add_f32 v{S+2*d}, v{S+2*d}, v{t}\nv_add_f32 v{S+2*d+1}, v{S+2*d+1}, v{t+1}")
                    k(f"v_fmac_f32 v{Q+2*d}, v{t}, v{t}\nv_fmac_f32 v{Q+2*d+1}, v{t+1}, v{t+1}")
        if j==JC: k("ds_write_b128 v3, v[16:19]\ns_waitcnt lgkmcnt(0)")
        if j==13:
            for i in range(8): k(f"v_permlane32_swap_b32 v{S+i}, v{Q+i}")
            for i in range(8): k(f"v_add_f32 v{S+i}, v{S+i}, v{Q+i}")
            for i in range(4): k(f"v_permlane16_swap_b32 v{S+i}, v{S+4+i}")
            for i in range(4): k(f"v_add_f32 v{S+i}, v{S+i}, v{S+4+i}")
            k(f"ds_write_b128 v15, v[{S}:{S+3}]\ns_waitcnt lgkmcnt(0)")
        if j==14:
            for p in range(4): k(f"ds_read_b32 v{40+p}, v13 offset:{1024*p}")
            k(f"""
            v_mov_b32 v1, 0x3b000000
            s_waitcnt lgkmcnt(0)
            v_add_f32 v40, v40, v41
            v_add_f32 v42, v42, v43
            v_add_f32 v40, v40, v42
            v_mov_b32 v41, v40
            v_permlane32_swap_b32 v40, v41
            v_mul_f32 v40, v40, v1
            v_mul_f32 v41, v41, v1
            v_fma_f32 v41, -v40, v40, v41
            v_max_f32 v41, 0, v41
            v_cvt_pk_bf16_f32 v41, v41, v41
            v_and_b32 v41, 0xffff0000, v41
            v_add_f32 v41, 0x3727c5ac, v41
            v_cvt_pk_bf16_f32 v41, v41, v41
            v_and_b32 v41, 0xffff0000, v41
            v_sqrt_f32 v41, v41
            v_cvt_pk_bf16_f32 v44, -v40, -v40
            v_cvt_pk_bf16_f32 v41, v41, v41
            v_and_b32 v47, 0xffff0000, v41
            v_rcp_f32 v46, v47
            v_mov_b32 v45, v44
            v_mul_f32 v46, 0xbfb8aa3b, v46
            ds_write_b128 v14, v[44:47]
            s_waitcnt lgkmcnt(0)
            """)
    assert wt[0]==2*NHS
    ts(k,8,False)
    k(f"""
    v_add_u32 v6, {112*1024}, v7
    v_lshrrev_b32 v3, 2, v2
    v_lshlrev_b32 v3, 12, v3
    v_and_b32 v4, 3, v2
    v_lshl_add_u32 v3, v4, 4, v3
    v_add_u32 v4, {65536-1024}, v3
    s_and_b32 s29, s65, 1
    s_lshl_b32 s30, s64, 1
    s_add_u32 s29, s29, s30          ; d block32
    s_lshl_b32 s30, s63, 1
    s_add_u32 s30, s30, s66          ; l block32
    s_lshl_b32 s52, s29, 17
    s_lshl_b32 s53, s30, 6
    s_add_u32 s52, s52, s53
    s_add_u32 s52, s52, {WS_HT}      ; h soffset
    s_lshl_b32 s74, s30, 15
    s_lshl_b32 s53, s29, 6
    s_add_u32 s74, s74, s53
    s_lshl_b32 s53, s65, 11
    s_add_u32 s53, s53, {G2R}
    s_mov_b32 s8, s18
    s_mov_b32 s9, s19
    s_mov_b32 s10, {2048*512*2:#x}
    s_barrier        ; B8
    {TSI+' s[92:93]' if STAMP else ''}
    s_mov_b32 m0, s53
    s_nop 0
    buffer_load_dwordx4 v3, s[4:7], s52 offen sc1 lds
    buffer_load_dwordx4 v4, s[4:7], s52 offen offset:1024 sc1 lds
    v_lshrrev_b32 v3, 5, v2
    v_bfe_u32 v4, v2, 2, 2
    v_lshl_add_u32 v4, v3, 4, v4
    v_lshlrev_b32 v4, 6, v4
    v_bfe_u32 v5, v2, 4, 1
    v_lshl_add_u32 v4, v5, 5, v4
    v_and_b32 v5, 3, v2
    v_lshl_add_u32 v4, v5, 3, v4
    v_add_u32 v4, s53, v4
    v_and_b32 v5, 31, v2
    v_lshlrev_b32 v5, 10, v5
    v_lshl_add_u32 v5, v3, 5, v5
    s_lshl_b32 s29, s65, 14
    s_add_u32 s29, s29, {G2H}
    v_add_u32 v3, s29, v7
    s_lshl_b32 s29, s65, 12
    v_add_u32 v1, s29, v7
    s_barrier        ; B9
    """)
    ts(k,9,False)
    A2=48
    free=[8+8*i for i in range(5)]
    slot={}; q=[]
    nxt=[0]
    def ldB():
        s=nxt[0]
        if s>=NHS or not free: return False
        if s and s%4==0: k("s_add_u32 s68, s68, 4096")
        b=free.pop(0); slot[s]=b
        k(f"buffer_load_dwordx4 v[{b}:{b+3}], v7, s[4:7], s68 offen offset:{1024*(s&3)} sc1")
        k(f"buffer_load_dwordx4 v[{b+4}:{b+7}], v6, s[4:7], s68 offen offset:{1024*(s&3)} sc1")
        q.extend([(s,0),(s,1)]); nxt[0]+=1
        return True
    while ldB(): pass
    for s in range(NHS):
        for lb in range(2):
            k(f"s_waitcnt vmcnt({len(q)-1-q.index((s,lb))})")
            for db in range(2):
                c=A2+16*(db+2*lb); a=HA+8*s+4*db; b=slot[s]+4*lb
                k(f"v_mfma_f32_32x32x16_bf16 v[{c}:{c+15}], v[{a}:{a+3}], v[{b}:{b+3}], {'0' if s==0 else f'v[{c}:{c+15}]'}")
        if s>=1:
            free.append(slot[s-1]); free.append(HA+8*(s-1))
        ldB(); ldB()
    for w in range(4):
        if w<3: k(f"s_cmp_lg_u32 s65, {w}\ns_cbranch_scc1 L4_w{w}")
        for qd in range(4):
            if qd==w: continue
            for j in range(4):
                k(f"ds_write_b128 v3, v[{A2+16*qd+4*j}:{A2+16*qd+4*j+3}] offset:{qd*4096+j*1024}")
        if w:
            for j in range(16): k(f"v_mov_b32 v{A2+j}, v{A2+16*w+j}")
        if w<3: k(f"s_branch L4_red\nL4_w{w}:")
    k("L4_red:")
    HT=8; HF=16; P=112
    for j in range(4): k(f"ds_read_b64_tr_b16 v[{HT+2*j}:{HT+1+2*j}], v4 offset:{j*256}")
    k("s_waitcnt lgkmcnt(0)\ns_barrier        ; B10")
    for p in range(4):
        for j in range(4): k(f"ds_read_b128 v[{P+16*p+4*j}:{P+3+16*p+4*j}], v1 offset:{G2M+p*16384+j*1024}")
    for j in range(8):
        k(f"v_and_b32 v{HF+1+2*j}, 0xffff0000, v{HT+j}\nv_lshlrev_b32 v{HF+2*j}, 16, v{HT+j}")
    def addp(p):
        for j in range(8): k(f"v_pk_add_f32 v[{A2+2*j}:{A2+2*j+1}], v[{A2+2*j}:{A2+2*j+1}], v[{P+16*p+2*j}:{P+1+16*p+2*j}]")
    for p in range(1,4):
        k(f"s_add_u32 s29, s65, {p}\ns_and_b32 s29, s29, 3\ns_lshl_b32 s29, s29, 14\ns_add_u32 s29, s29, {G2H}\nv_add_u32 v3, s29, v1")
        k(f"s_waitcnt lgkmcnt(12)");
        for j in range(4): k(f"ds_read_b128 v[{P+16*(p+3)+4*j}:{P+3+16*(p+3)+4*j}], v3 offset:{j*1024}")
        addp(p-1)
    for p in range(3,7):
        k(f"s_waitcnt lgkmcnt({4*(6-p)})"); addp(p)
    for j in range(8): k(f"v_cvt_pk_bf16_f32 v{64+j}, v{A2+2*j}, v{A2+2*j+1}")
    for j in range(8): k(f"v_lshlrev_b32 v{A2+2*j}, 16, v{64+j}\nv_and_b32 v{A2+2*j+1}, 0xffff0000, v{64+j}")
    for j in range(8): k(f"v_pk_add_f32 v[{A2+2*j}:{A2+2*j+1}], v[{A2+2*j}:{A2+2*j+1}], v[{HF+2*j}:{HF+1+2*j}]")
    for j in range(8): k(f"v_cvt_pk_bf16_f32 v{64+j}, v{A2+2*j}, v{A2+2*j+1}")
    for jj in range(2):
        k(f"buffer_store_dwordx4 v[{64+4*jj}:{67+4*jj}], v5, s[8:11], s74 offen offset:{16*jj}")
    ts(k,3,False)
    flush(k,[1,8,6,3],10,4)

if __name__=="__main__":
    out = sys.argv[1] if len(sys.argv)>1 else "m.s"
    finish(out, [gen_m()])
```

```python
import sys, os
sys.path.insert(0,'gen')
from common import *
from k2 import cmul, direct, rho, LOG2E, INV2PI
E_=lambda n,d: int(os.environ.get(n,str(d)),0)
WS_WT=0x1000000
WS_F1=0x1400000; WS_F2=0x1410000; WS_F3=0x1420000; WS_TAG=0x1430000
WSL=14464; UOFF=7296; NW=6; WB=0
TB=0; TA=33792; TBL=16896; TROW=528
UC=72320; UCC=4640; UCH=4*UCC
KC=109440; KCC=4224
XT=126336; T1=XT+8192; RED=142720
LNB=XT; ROWS=2112; WDS=143360
NH=8; HS=8192; HB=86784
MISC=HB+NH*HS; PART=MISC; FS=MISC+4096; AP=MISC+6144
G2M=0; G2H=65536; G2R=131072
LDS=163840
CUM=[2,4,6,8,10,13,15,18,20,23,25,28,30,32,32,32]
def hb(j): return max(j,(CUM[j]-1)>>1)
NM=10; NHS=18
MA=176; HA=112
NPRE=E_("NPRE",8)
SL1=E_("SL1",0); SL2=E_("SL2",8); SL3=E_("SL3",8); SLP=E_("SLP",2)
LIMIT=4000
TSI='s_memtime' if E_('CY',0) else 's_memrealtime'
def ts(k,i,drain=True):
    if not STAMP: return
    k(f"{TSI} s[{80+2*i}:{81+2*i}]")
    if drain: k("s_waitcnt lgkmcnt(0)")
def flush(k, idxs, base, wave):
    if STAMP==3:
        DI=E_("DI",0); DWV=E_("DWV",0); DW=E_("DBGWG",-1)
        if DWV!=wave: return
        if DW>=0: k(f"s_cmp_lg_u32 s2, {DW}\ns_cbranch_scc1 L_df{wave}")
        k(f"""s_cmp_lg_u32 s3, {wave}
        s_cbranch_scc1 L_df{wave}
        s_waitcnt lgkmcnt(0)
        s_add_u32 s29, s{80+2*DI}, 6000
        s_mov_b32 s23, 0
        L_dl{wave}:
        s_memrealtime s[30:31]
        s_add_u32 s23, s23, 1
        s_waitcnt lgkmcnt(0)
        s_sub_u32 s30, s30, s29
        s_cmp_gt_u32 s23, 200000
        s_cbranch_scc1 L_df{wave}
        s_cmp_lt_i32 s30, 0
        s_cbranch_scc1 L_dl{wave}
        L_df{wave}:""")
        return
    if STAMP!=2:
        stamp_flush(k,0,11,20,3,vt=8)
        if STAMP and wave==0: k("s_sub_u32 s29, s74, s72\nv_mov_b32 v8, s29\nbuffer_store_dword v8, v9, s[76:79], 0 offen offset:44")
        return
    DW=E_("DBGWG",0)
    k(f"s_cmp_lg_u32 s2, {DW}\ns_cbranch_scc1 L_df{wave}\ns_cmp_lg_u32 s3, {wave}\ns_cbranch_scc1 L_df{wave}")
    k("s_load_dwordx2 s[76:77], s[0:1], 96\ns_mov_b32 s78, 256\ns_mov_b32 s79, 0x20000\nv_mov_b32 v9, 0\ns_waitcnt lgkmcnt(0)")
    for n,i in enumerate(idxs):
        k(f"s_sub_u32 s29, s{80+2*i}, s80\nv_mov_b32 v8, s29\nbuffer_store_dword v8, v9, s[76:79], 0 offen offset:{4*(base+n)}")
    k(f"L_df{wave}:")
def poll(k, lab, voff, n, soff, t, first):
    if first: k(f"s_sleep {first}")
    k(f"s_mov_b32 s31, 0\n{lab}:")
    for j in range(n):
        if j: k(f"s_add_u32 s30, s{soff}, {4096*j}")
        k(f"buffer_load_dword v{t+j}, v{voff}, s[4:7], s{soff if j==0 else 30} offen sc1")
    k("s_add_u32 s31, s31, 1\ns_waitcnt vmcnt(0)")
    for j in range(n): k(f"v_xor_b32 v{t+j}, s60, v{t+j}")
    for j in range(1,n): k(f"v_or_b32 v{t}, v{t}, v{t+j}")
    k(f"""
    v_cmp_ne_u32 vcc, 0, v{t}
    s_cmp_gt_u32 s31, {LIMIT}
    s_cbranch_scc1 {lab}x
    s_cbranch_vccz {lab}x
    s_sleep {SLP}
    s_branch {lab}
    {lab}x:
    """)
def flag(k, soff, t):
    k(f"""
    v_mov_b32 v{t}, s60
    v_mov_b32 v{t+1}, 0
    s_mov_b64 exec, 1
    buffer_store_dword v{t}, v{t+1}, s[4:7], s{soff} offen sc1
    s_mov_b64 exec, -1
    """)
EB=56
def eloads(k):
    k(f"""
    buffer_load_dwordx4 v[{EB}:{EB+3}], v71, s[32:35], s26 offen sc1
    buffer_load_dwordx4 v[{EB+4}:{EB+7}], v70, s[32:35], s26 offen sc1
    buffer_load_dwordx4 v[{EB+8}:{EB+11}], v70, s[32:35], s26 offen offset:32 sc1
    """)
def uprep(k, nafter):
    k(f"s_waitcnt vmcnt({nafter+1})")
    for j in range(6): k(f"v_mov_b32 v{36+j}, v{EB+1+j}")
    k(f"""
    ds_write_b128 v68, v[{EB+2}:{EB+5}] offset:{UCC}
    ds_write_b128 v68, v[{EB+4}:{EB+7}] offset:{3*UCC}
    ds_write_b128 v68, v[36:39]
    ds_write_b128 v68, v[38:41] offset:{2*UCC}
    """)
    for j in range(4):
        k(f"v_lshlrev_b32 v{44+2*j}, 16, v{EB+4+j}\nv_and_b32 v{45+2*j}, 0xffff0000, v{EB+4+j}")
    for j in range(8): k(f"v_mul_f32 v{44+j}, s28, v{44+j}")
    for j in range(4): k(f"v_cvt_pk_bf16_f32 v{52+j}, v{44+2*j}, v{45+2*j}")
    k(f"""
    ds_write_b128 v69, v[52:55] offset:{T1-XT}
    s_waitcnt vmcnt({nafter})
    ds_write_b128 v69, v[{EB+8}:{EB+11}]
    s_waitcnt lgkmcnt(0)
    s_barrier
    """)
def kparams(k):
    k(f"""
    s_lshl_b32 s29, s66, 4
    s_lshr_b32 s27, s27, s29
    s_lshl_b32 s27, s27, 16
    s_lshr_b32 s28, s28, s26
    s_lshl_b32 s28, s28, 16
    v_mov_b32 v33, {LOG2E}
    v_mul_f32 v34, s27, v33
    v_exp_f32 v34, v34
    v_lshlrev_b32 v8, 16, v8
    v_lshlrev_b32 v9, 16, v9
    v_cvt_pk_bf16_f32 v34, v34, v34
    v_and_b32 v34, 0xffff0000, v34
    v_mul_f32 v8, v8, v33
    v_exp_f32 v8, v8
    v_mul_f32 v9, v9, v34
    v_cvt_pk_bf16_f32 v8, v8, v8
    v_and_b32 v8, 0xffff0000, v8
    v_mul_f32 v8, v8, v34
    v_mul_f32 v9, {INV2PI}, v9
    v_mul_f32 v8, 0xbfb8aa3b, v8
    """)
def common_addr(k):
    k(f"""
    v_mov_b32 v24, 0
    v_mov_b32 v25, 0
    v_mov_b32 v26, 0
    v_mov_b32 v27, 0
    s_mul_i32 s29, s3, {UCC}
    s_add_u32 s29, s29, {UC}
    v_add_u32 v28, s29, v7
    s_mul_i32 s29, s65, {KCC}
    s_add_u32 s29, s29, {KC}
    v_add_u32 v29, s29, v7
    s_mov_b64 exec, 0xffffff
    ds_write_b128 v28, v[24:27]
    s_mov_b64 exec, 0x7f
    ds_write_b128 v29, v[24:27]
    s_mov_b64 exec, -1
    s_mul_i32 s29, s66, {TBL}
    s_mul_i32 s31, s25, {TA}
    s_add_u32 s29, s29, s31
    s_and_b32 s31, s3, 1
    s_lshl_b32 s31, s31, 8
    s_add_u32 s29, s29, s31
    v_lshlrev_b32 v30, 2, v2
    v_add_u32 v30, s29, v30
    s_mul_i32 s29, s25, {UCH}
    s_add_u32 s29, s29, {UC+24*16}
    v_and_b32 v3, 255, v0
    v_lshlrev_b32 v69, 4, v3
    v_add_u32 v68, s29, v69
    s_lshl_b32 s29, s25, 12
    s_add_u32 s29, s29, {XT}
    v_add_u32 v69, s29, v69
    v_lshlrev_b32 v70, 6, v3
    v_subrev_u32 v71, 64, v70
    s_lshl_b32 s23, s2, 14
    s_add_u32 s32, s20, s23
    s_addc_u32 s33, s21, 0
    s_mov_b32 s34, 16384
    s_mov_b32 s35, 0x20000
    s_and_b32 s61, s2, 1
    s_lshl_b32 s61, s61, 3
    s_bfe_u32 s23, s2, 0x30003
    s_add_u32 s61, s61, s23          ; rb
    s_bfe_u32 s62, s2, 0x20001
    s_lshl_b32 s62, s62, 2
    s_lshr_b32 s23, s2, 6
    s_add_u32 s62, s62, s23          ; fs
    s_and_b32 s63, s2, 7
    s_lshl_b32 s63, s63, 2
    s_bfe_u32 s23, s2, 0x20003
    s_add_u32 s63, s63, s23          ; tl
    s_lshr_b32 s64, s2, 5            ; td
    s_mul_i32 s67, s64, 112
    s_mul_i32 s23, s65, 28
    s_mul_i32 s29, s25, {NM}
    s_add_u32 s23, s23, s29
    s_add_u32 s67, s67, s23
    s_lshl_b32 s67, s67, 11
    s_add_u32 s67, s67, {WS_WT}
    s_mul_i32 s68, s63, 224
    s_add_u32 s68, s68, s23
    s_lshl_b32 s68, s68, 10
    s_add_u32 s68, s68, {WS_HG}
    """)
def wtload(k, base, i):
    if i and i%4==0: k("s_add_u32 s67, s67, 4096")
    k(f"buffer_load_dwordx4 v[{base+4*i}:{base+4*i+3}], v7, s[4:7], s67 offen offset:{1024*(i&3)} sc1")

def gen_m():
    k = K("sequential_preLN__ssm_conv_s4d__glu_gated_glu__prompt_kernel", 256, 512, LDS, 256)
    k("L_begin:\ns_cmp_ge_u32 s2, 256\ns_cbranch_scc1 L_end")
    ts(k,0,False)
    k(f"""
    s_load_dwordx16 s[36:51], s[0:1], 0
    s_load_dwordx8 s[12:19], s[0:1], 64
    s_load_dwordx2 s[20:21], s[0:1], 104
    v_lshrrev_b32 v1, 6, v0
    v_and_b32 v2, 63, v0
    v_lshlrev_b32 v7, 4, v2
    v_readfirstlane_b32 s3, v1
    v_and_b32 v3, 255, v0
    s_lshl_b32 s24, s2, 9
    v_lshl_add_u32 v4, v3, 1, s24
    v_mov_b32 v5, 0
    s_lshl_b32 s22, s2, 2
    s_and_b32 s65, s3, 3
    s_lshr_b32 s25, s3, 2
    s_lshl_b32 s26, s25, 4
    s_bfe_u32 s66, s3, 0x10001
    s_mov_b32 s6, {WS_SIZE:#x}
    s_mov_b32 s7, 0x20000
    s_mov_b32 s23, {WS_TAG:#x}
    s_cmp_ge_u32 s3, 4
    s_cbranch_scc1 L_help
    """)
    gen_main(k)
    gen_help(k)
    k("L_end:\ns_endpgm\nL_stop:")
    return k

def gen_main(k):
    k(f"""
    s_lshl_b32 s29, s2, 13
    s_lshl_b32 s30, s3, 11
    s_add_u32 s29, s29, s30
    s_mov_b32 s10, {2048*512*2:#x}
    s_mov_b32 s11, 0x20000
    s_waitcnt lgkmcnt(0)
    s_mov_b32 s8, s36
    s_mov_b32 s9, s37
    s_mov_b32 s4, s20
    s_mov_b32 s5, s21
    buffer_load_dwordx4 v[12:15], v7, s[8:11], s29 offen
    buffer_load_dwordx4 v[16:19], v7, s[8:11], s29 offen offset:1024
    global_load_ushort v8, v4, s[38:39]
    global_load_ushort v9, v4, s[40:41]
    buffer_load_dword v10, v5, s[4:7], s23 offen sc1
    s_load_dword s27, s[46:47], s22
    s_load_dword s28, s[48:49], s22
    """)
    common_addr(k)
    X=12; F=36; O=52
    k(f"""
    v_mov_b32 v1, 0x3b000000
    s_mul_i32 s24, s3, {2*ROWS}
    s_add_u32 s24, s24, {LNB}
    v_lshlrev_b32 v4, 5, v2
    v_add_u32 v4, s24, v4
    v_bfe_u32 v5, v2, 2, 2
    v_mul_u32_u24 v5, {ROWS}, v5
    v_lshrrev_b32 v6, 4, v2
    v_lshl_add_u32 v5, v6, 5, v5
    v_and_b32 v6, 3, v2
    v_lshl_add_u32 v5, v6, 3, v5
    s_lshl_b32 s24, s3, 9
    s_add_u32 s24, s24, {LNB}
    v_add_u32 v5, s24, v5
    v_lshrrev_b32 v11, 2, v2
    v_lshlrev_b32 v11, 14, v11
    v_lshl_add_u32 v11, v6, 4, v11
    s_lshl_b32 s24, s3, 20
    s_lshl_b32 s29, s2, 6
    s_add_u32 s24, s24, s29
    """)
    for i in range(2):
        k(f"s_waitcnt vmcnt({4-i})")
        if i==0: ts(k,1,False)
        for j in range(4):
            k(f"v_lshlrev_b32 v{F+8*i+2*j}, 16, v{X+4*i+j}\nv_and_b32 v{F+1+8*i+2*j}, 0xffff0000, v{X+4*i+j}")
        f=F+8*i; S,Q=20+2*i,21+2*i
        k(f"v_add_f32 v{S}, v{f}, v{f+1}\nv_mul_f32 v{Q}, v{f}, v{f}\nv_fmac_f32 v{Q}, v{f+1}, v{f+1}")
        for j in range(2,8): k(f"v_add_f32 v{S}, v{S}, v{f+j}\nv_fmac_f32 v{Q}, v{f+j}, v{f+j}")
    for dpp in ("row_shr:1","row_shr:2","row_shr:4","row_shr:8"):
        for r in range(20,24): k(f"v_add_f32_dpp v{r}, v{r}, v{r} {dpp} row_mask:0xf bank_mask:0xf bound_ctrl:1")
    for dpp in ("row_bcast:15 row_mask:0xa","row_bcast:31 row_mask:0xc"):
        for r in range(20,24): k(f"v_add_f32_dpp v{r}, v{r}, v{r} {dpp} bank_mask:0xf")
    for r in range(4): k(f"v_readlane_b32 s{52+r}, v{20+r}, 63")
    for i in range(2):
        M,V,T=24+3*i,25+3*i,26+3*i
        k(f"""
        v_mul_f32 v{M}, s{52+2*i}, v1
        v_mul_f32 v{V}, s{53+2*i}, v1
        v_fma_f32 v{V}, -v{M}, v{M}, v{V}
        v_max_f32 v{V}, 0, v{V}
        v_cvt_pk_bf16_f32 v{T}, v{M}, v{V}
        v_lshlrev_b32 v{M}, 16, v{T}
        v_and_b32 v{V}, 0xffff0000, v{T}
        v_add_f32 v{V}, 0x3727c5ac, v{V}
        v_cvt_pk_bf16_f32 v{V}, v{V}, v{V}
        v_and_b32 v{V}, 0xffff0000, v{V}
        v_sqrt_f32 v{V}, v{V}
        v_cvt_pk_bf16_f32 v{V}, v{V}, v{V}
        v_and_b32 v{V}, 0xffff0000, v{V}
        v_rcp_f32 v{V}, v{V}
        """)
    for i in range(2):
        M,V=24+3*i,25+3*i; f=F+8*i; o=O+8*i
        for j in range(8): k(f"v_sub_f32 v{f+j}, v{f+j}, v{M}")
        for j in range(4): k(f"v_cvt_pk_bf16_f32 v{o+2*j}, v{f+2*j}, v{f+2*j+1}")
        for j in range(4): k(f"v_lshlrev_b32 v{f+2*j}, 16, v{o+2*j}\nv_and_b32 v{f+2*j+1}, 0xffff0000, v{o+2*j}")
        for j in range(8): k(f"v_mul_f32 v{f+j}, v{f+j}, v{V}")
        for j in range(4): k(f"v_cvt_pk_bf16_f32 v{o+2*j}, v{f+2*j}, v{f+2*j+1}\nv_mov_b32 v{o+2*j+1}, v{X+4*i+j}")
        k(f"ds_write_b128 v4, v[{o}:{o+3}] offset:{i*ROWS}\nds_write_b128 v4, v[{o+4}:{o+7}] offset:{i*ROWS+16}")
    k("s_waitcnt lgkmcnt(0)\ns_barrier        ; B1")
    for it in range(4):
        k(f"ds_read_b64_tr_b16 v[{12+4*it}:{13+4*it}], v5 offset:{it*128}")
        k(f"ds_read_b64_tr_b16 v[{14+4*it}:{15+4*it}], v5 offset:{it*128+4*ROWS}")
    for it in range(4):
        k(f"s_waitcnt lgkmcnt({6-2*it})")
        k(f"buffer_store_dwordx4 v[{12+4*it}:{15+4*it}], v11, s[4:7], s24 offen sc1")
        if it<3: k(f"s_add_u32 s24, s24, {16*16384}")
    ts(k,2,False)
    k("s_waitcnt vmcnt(4)\nv_readfirstlane_b32 s60, v10")
    kparams(k)
    k("s_mul_i32 s60, s60, 1664525\ns_add_u32 s60, s60, 1013904223")
    W=36; X0=38; X1=40; T=42; C=44
    direct(k, W, 8, 9, 8, T)
    k(f"v_mov_b32 v{C}, 0x00003f80\nds_write_b32 v30, v{C}")
    k(f"v_cvt_pk_bf16_f32 v{C+1}, v{W}, v{W+1}\nds_write_b32 v30, v{C+1} offset:{TROW}")
    cur=W
    for j in range(2,32):
        nxt = X0 if cur!=X0 else X1
        cmul(k, nxt, cur, W, T)
        c=C+(j&3)
        k(f"v_cvt_pk_bf16_f32 v{c}, v{nxt}, v{nxt+1}\nds_write_b32 v30, v{c} offset:{TROW*j}")
        cur=nxt
    k(f"""
    v_and_b32 v4, 31, v2
    v_mul_u32_u24 v4, {TROW}, v4
    v_lshrrev_b32 v5, 5, v2
    v_lshl_add_u32 v4, v5, 4, v4
    s_mul_i32 s29, s66, {TBL}
    v_add_u32 v4, s29, v4
    s_waitcnt vmcnt(0) lgkmcnt(0)
    s_barrier        ; B2
    """)
    ts(k,3)
    NB=6; KR=112
    def rd(s):
        b=KR+8*(s%NB)
        k(f"ds_read_b128 v[{b}:{b+3}], v4 offset:{TA+32*s}\nds_read_b128 v[{b+4}:{b+7}], v4 offset:{TB+32*s}")
    for s in range(NB-1): rd(s)
    k(f"""
    s_mul_i32 s29, s3, {KCC}
    s_add_u32 s29, s29, {KC+7*16}
    v_add_u32 v5, s29, v7
    v_and_b32 v8, 1, v2
    v_mul_u32_u24 v8, {KCC}, v8
    v_bfe_u32 v9, v2, 1, 3
    v_lshrrev_b32 v10, 4, v2
    v_sub_u32 v9, v9, v10
    v_add_u32 v9, 3, v9
    v_lshl_add_u32 v8, v9, 4, v8
    s_mul_i32 s29, s66, {2*KCC}
    s_and_b32 s69, s3, 1                     ; c-half
    s_lshl_b32 s56, s69, 8
    s_add_u32 s29, s29, s56
    s_add_u32 s29, s29, {KC}
    v_add_u32 v8, s29, v8
    v_and_b32 v9, 3, v2
    v_mul_u32_u24 v11, {UCC}, v9
    v_bfe_u32 v12, v2, 2, 2
    v_lshl_add_u32 v13, v12, 3, v10
    v_lshl_add_u32 v11, v13, 4, v11
    s_mul_i32 s29, s66, {UCH}
    s_sub_u32 s29, s29, s56
    s_add_u32 s29, s29, {UC+16*16}
    v_add_u32 v11, s29, v11
    v_lshlrev_b32 v13, 5, v10
    v_lshl_add_u32 v13, v9, 2, v13
    v_lshl_add_u32 v13, v12, 7, v13
    v_and_b32 v14, 1, v2
    v_cmp_eq_u32 s[58:59], 1, v14
    """)
    D=16
    for s in range(16):
        if s+NB-1<16: rd(s+NB-1)
        k(f"s_waitcnt lgkmcnt({2*(min(15,s+NB-1)-s)})")
        b=KR+8*(s%NB)
        k(f"v_mfma_f32_32x32x16_bf16 v[{D}:{D+15}], v[{b}:{b+3}], v[{b+4}:{b+7}], {'0' if s==0 else f'v[{D}:{D+15}]'}")
    e=lambda r: D+r
    O=32
    k(f"v_cndmask_b32 v48, v{e(11)}, v{e(12)}, s[58:59]\nv_cndmask_b32 v49, v{e(13)}, v{e(14)}, s[58:59]")
    k("s_cmp_eq_u32 s69, 0\ns_cbranch_scc1 L2_a0")
    def grp(idx, pairs):
        o=O+4*idx
        for t,(lo,hi) in enumerate(pairs):
            if t>0 and pairs[t-1]==(lo,hi): k(f"v_mov_b32 v{o+t}, v{o+t-1}")
            else: k(f"v_cvt_pk_bf16_f32 v{o+t}, v{lo}, v{hi}")
        k(f"ds_write_b128 v5, v[{o}:{o+3}] offset:{idx*1024}")
    grp(0,[(e(7),e(6)),(e(5),e(4)),(e(3),e(2)),(e(1),e(0))])
    grp(1,[(e(10),e(10)),(e(9),e(9)),(e(9),e(8)),(e(8),e(8))])
    grp(2,[(e(12),e(12)),(e(12),48),(e(11),e(11)),(e(11),e(11))])
    grp(3,[(e(14),e(14)),(e(14),49),(e(13),e(13)),(e(13),e(13))])
    k("s_branch L2_conv\nL2_a0:")
    k("v_mov_b32 v50, 0")
    k(f"v_mov_b32_dpp v50, v{e(7)} wave_shr:1 row_mask:0xf bank_mask:0xf bound_ctrl:1")
    grp(1,[(e(10),e(9)),(e(9),e(9)),(e(8),e(8)),(e(8),e(8))])
    grp(2,[(e(12),e(12)),(48,e(11)),(e(11),e(11)),(e(11),e(11))])
    grp(3,[(e(14),e(14)),(49,e(13)),(e(13),e(13)),(e(13),e(13))])
    grp(0,[(e(6),e(5)),(e(4),e(3)),(e(2),e(1)),(e(0),50)])
    k(f"""
    L2_conv:
    v_lshlrev_b32 v3, 6, v2
    s_mov_b32 s29, {WS_F1:#x}
    s_cmp_lg_u32 s3, 0
    s_cbranch_scc1 L_p1x
    """)
    poll(k,"L_p1",3,4,29,52,SL1)
    k("s_waitcnt lgkmcnt(0)\ns_barrier        ; B3")
    ts(k,4)
    eloads(k)
    for i in range(2*NM): wtload(k, MA, i)
    AF=[48,112]; BF=[80,144]; ACC=16
    def rdA(buf,g,cl): k(f"ds_read_b128 v[{AF[buf]+4*g}:{AF[buf]+4*g+3}], v8 offset:{512*g+64*cl}")
    def rdB(buf,t,cl): k(f"ds_read_b128 v[{BF[buf]+4*t}:{BF[buf]+4*t+3}], v11 offset:{512*t+(12-4*cl)*16}")
    for g in range(8): rdA(1,g,0)
    uprep(k, 2*NM)
    ts(k,5)
    k("s_setprio 1")
    for t in range(8): rdB(1,t,0)
    first=[True]*8
    for cl in range(4):
        buf=(cl&1)^1
        pend=[]
        if cl<3:
            for g in range(8): pend += [("A",g),("B",g)]
        seq=[(t,g) for t in range(8) for g in range(t+1)]
        issued=0
        for idx,(t,g) in enumerate(seq):
            if g==0:
                if cl==0: k(f"s_waitcnt lgkmcnt({min(15,7-t+issued)})")
                else: k(f"s_waitcnt lgkmcnt({min(15,14-2*t+issued)})")
            a=AF[buf]+4*g; b=BF[buf]+4*(t-g); c=ACC+4*t
            k(f"v_mfma_f32_16x16x32_bf16 v[{c}:{c+3}], v[{a}:{a+3}], v[{b}:{b+3}], {'0' if first[t] else f'v[{c}:{c+3}]'}")
            first[t]=False
            start = 4
            if pend and idx>=start and (idx%2==0 or len(seq)-idx<=len(pend)+2):
                kind,j=pend.pop(0)
                (rdA if kind=="A" else rdB)(buf^1,j,cl+1); issued+=1
        assert not pend
    k(f"""
    s_lshl_b32 s29, s3, 12
    s_add_u32 s29, s29, {RED}
    v_add_u32 v4, s29, v7
    s_xor_b32 s29, s3, 1
    s_lshl_b32 s29, s29, 12
    s_add_u32 s29, s29, {RED}
    v_add_u32 v5, s29, v7
    s_lshl_b32 s29, s3, 11
    s_lshl_b32 s57, s2, 13
    s_add_u32 s57, s57, s29
    s_add_u32 s57, s57, {WS_HT}
    s_add_u32 s29, s29, {XT}
    v_add_u32 v6, s29, v13
    v_add_u32 v9, s29, v7
    """)
    XR=112
    for t in range(4):
        k(f"ds_read_b32 v{XR+4*t}, v6 offset:{512*t}\nds_read_b32 v{XR+1+4*t}, v6 offset:{512*t+16}")
        k(f"ds_read_b32 v{XR+2+4*t}, v6 offset:{512*t+T1-XT}\nds_read_b32 v{XR+3+4*t}, v6 offset:{512*t+16+T1-XT}")
    k("s_cmp_eq_u32 s69, 0\ns_cbranch_scc1 L2_r0")
    for t in range(4): k(f"ds_write_b128 v4, v[{ACC+4*t}:{ACC+4*t+3}] offset:{1024*t}")
    k("s_waitcnt lgkmcnt(0)")
    for j in range(16): k(f"v_mov_b32 v{ACC+j}, v{ACC+16+j}")
    k("s_branch L2_r1\nL2_r0:")
    for t in range(4): k(f"ds_write_b128 v4, v[{ACC+16+4*t}:{ACC+16+4*t+3}] offset:{1024*t}")
    k("L2_r1:\ns_waitcnt lgkmcnt(0)\ns_barrier        ; B5")
    for t in range(4): k(f"ds_read_b128 v[{48+4*t}:{51+4*t}], v5 offset:{1024*t}")
    for t in range(4):
        for hh in range(2):
            i=2*t+hh
            k(f"v_lshlrev_b32 v{64+2*i}, 16, v{XR+4*t+hh}\nv_and_b32 v{65+2*i}, 0xffff0000, v{XR+4*t+hh}")
            k(f"v_lshlrev_b32 v{80+2*i}, 16, v{XR+2+4*t+hh}\nv_and_b32 v{81+2*i}, 0xffff0000, v{XR+2+4*t+hh}")
    for t in range(4):
        k(f"s_waitcnt lgkmcnt({3-t+2*t})")
        a=ACC+4*t
        for r in range(4): k(f"v_add_f32 v{a+r}, v{a+r}, v{48+4*t+r}")
        def rnd(): k(f"v_cvt_pk_bf16_f32 v{a}, v{a}, v{a+1}\nv_cvt_pk_bf16_f32 v{a+2}, v{a+2}, v{a+3}")
        def unp():
            k(f"v_and_b32 v{a+1}, 0xffff0000, v{a}\nv_and_b32 v{a+3}, 0xffff0000, v{a+2}")
            k(f"v_lshlrev_b32 v{a}, 16, v{a}\nv_lshlrev_b32 v{a+2}, 16, v{a+2}")
        rnd(); unp()
        for r in range(4): k(f"v_add_f32 v{a+r}, v{a+r}, v{80+4*t+r}")
        rnd(); unp()
        for r in range(4): k(f"v_add_f32 v{a+r}, v{a+r}, v{64+4*t+r}")
        rnd()
        k(f"ds_write_b32 v6, v{a} offset:{512*t}\nds_write_b32 v6, v{a+2} offset:{512*t+16}")
    k(f"""
    s_waitcnt lgkmcnt(0)
    ds_read_b128 v[48:51], v9
    ds_read_b128 v[52:55], v9 offset:1024
    s_waitcnt lgkmcnt(1)
    buffer_store_dwordx4 v[48:51], v7, s[4:7], s57 offen sc1
    s_waitcnt lgkmcnt(0)
    buffer_store_dwordx4 v[52:55], v7, s[4:7], s57 offen offset:1024 sc1
    """)
    ts(k,6,False)
    NA=4; AW=16; BW=32; BP=40; ZS=44; ACC=56
    k(f"""
    v_lshrrev_b32 v3, 5, v2
    v_bfe_u32 v4, v2, 2, 2
    v_lshl_add_u32 v5, v3, 3, v4
    v_bfe_u32 v6, v2, 4, 1
    v_and_b32 v15, 3, v2
    v_lshlrev_b32 v15, 3, v15
    v_mul_u32_u24 v8, 224, v5
    v_mul_u32_u24 v9, {UOFF}, v6
    v_add3_u32 v8, v8, v9, v15
    v_add_u32 v9, {4*WSL}, v8
    v_xor_b32 v10, s3, v4
    v_lshlrev_b32 v10, 6, v10
    v_lshl_add_u32 v10, v5, 8, v10
    v_lshl_add_u32 v10, v6, 5, v10
    v_add_u32 v10, v10, v15
    v_add_u32 v10, {HB}, v10
    v_and_b32 v11, 31, v2
    v_lshlrev_b32 v12, 4, v11
    s_lshl_b32 s29, s3, 9
    s_add_u32 s29, s29, {FS}
    v_add_u32 v13, s29, v12
    v_add_u32 v12, {AP}, v12
    v_cmp_eq_u32 s[56:57], 0, v3
    v_mov_b32 v{BP+2}, 0
    v_mov_b32 v{BP+3}, 0
    s_lshl_b32 s70, s61, 2
    s_add_u32 s70, s70, s3
    s_mul_i32 s70, s70, 112
    s_mul_i32 s29, s62, 7
    s_add_u32 s70, s70, s29
    s_lshl_b32 s70, s70, 10
    s_add_u32 s70, s70, {WS_HG}
    v_lshlrev_b32 v3, 6, v2
    s_lshl_b32 s29, s2, 6
    s_add_u32 s29, s29, {WS_F2}
    s_waitcnt vmcnt(0)
    s_barrier        ; B6
    s_cmp_lg_u32 s3, 0
    s_cbranch_scc1 L_p2x
    """)
    flag(k,29,48)
    k(f"s_mov_b32 s29, {WS_F2:#x}")
    poll(k,"L_p2",3,4,29,48,SL2)
    k("s_barrier        ; B7")
    ts(k,7)
    q=[]
    def rdA1(t):
        b=AW+4*(t%NA)
        if t>=231: return
        if t>=224:
            k(f"ds_read_b128 v[{b}:{b+3}], v12 offset:{(t-224)*512}"); q.append(("A",t)); return
        s=t//7; fb=t%7; j=s>>1; kk=s&1; sl=j%NW
        va = 8 if sl<4 else 9
        off=(sl%4)*WSL + kk*16*224 + fb*32
        k(f"ds_read_b64_tr_b16 v[{b}:{b+1}], v{va} offset:{off}\nds_read_b64_tr_b16 v[{b+2}:{b+3}], v{va} offset:{off+4*224}")
        q.extend([("A",t)]*2)
    def rdB1(s):
        b=BW+4*(s&1)
        if s==32:
            k(f"ds_read_b64 v[{BP}:{BP+1}], v13\nds_read_b64 v[{ZS}:{ZS+1}], v13 offset:8"); q.extend([("B",s)]*2); return
        j=s>>1; off=(j%NH)*HS+(s&1)*4096
        k(f"ds_read_b64_tr_b16 v[{b}:{b+1}], v10 offset:{off}\nds_read_b64_tr_b16 v[{b+2}:{b+3}], v10 offset:{off+1024}")
        q.extend([("B",s)]*2)
    k("s_barrier        ; G0")
    if STAMP: k("s_memtime s[72:73]")
    ts(k,8)
    rdB1(0)
    for t in range(NA): rdA1(t)
    for t in range(231):
        s=t//7; fb=t%7
        need=max(idx for idx,tag in enumerate(q) if tag==("A",t) or tag==("B",s))
        k(f"s_waitcnt lgkmcnt({len(q)-1-need})")
        a=AW+4*(t%NA); c=ACC+16*fb
        if s==32:
            if fb==0: k(f"v_cndmask_b32 v{BP}, 0, v{BP}, s[56:57]\nv_cndmask_b32 v{BP+1}, 0, v{BP+1}, s[56:57]")
            b=BP
        else: b=BW+4*(s&1)
        k(f"v_mfma_f32_32x32x16_bf16 v[{c}:{c+15}], v[{a}:{a+3}], v[{b}:{b+3}], {'0' if s==0 else f'v[{c}:{c+15}]'}")
        if fb==7-NA and s<32:
            if s&1 and s<31: k("s_barrier")
            rdB1(s+1)
        rdA1(t+NA)
    ts(k,10,False)
    if STAMP: k("s_memtime s[74:75]")
    for fb in range(7):
        c=ACC+16*fb; o=AW+4*(fb&3)
        for i in range(4): k(f"v_pk_mul_f32 v[{c+2*i}:{c+2*i+1}], v[{c+2*i}:{c+2*i+1}], v[{ZS}:{ZS+1}] op_sel_hi:[1,0]")
        for i in range(8): k(f"v_exp_f32 v{c+i}, v{c+i}")
        for i in range(4): k(f"v_pk_fma_f32 v[{c+2*i}:{c+2*i+1}], v[{c+2*i}:{c+2*i+1}], v[{ZS}:{ZS+1}], v[{ZS}:{ZS+1}] op_sel:[0,1,1] op_sel_hi:[1,1,1]")
        for i in range(8): k(f"v_rcp_f32 v{c+i}, v{c+i}")
        for i in range(4): k(f"v_pk_mul_f32 v[{c+2*i}:{c+2*i+1}], v[{c+2*i}:{c+2*i+1}], v[{c+8+2*i}:{c+9+2*i}]")
        for i in range(4): k(f"v_cvt_pk_bf16_f32 v{o+i}, v{c+2*i}, v{c+2*i+1}")
        if fb==4: k("s_add_u32 s70, s70, 4096")
        k(f"buffer_store_dwordx4 v[{o}:{o+3}], v7, s[4:7], s70 offen offset:{1024*(fb&3)} sc1")
    k(f"""
    s_setprio 0
    s_lshl_b32 s29, s61, 4
    s_add_u32 s29, s29, s62
    s_lshl_b32 s29, s29, 6
    s_add_u32 s29, s29, {WS_F3}
    v_add_u32 v6, {112*1024}, v7
    s_lshl_b32 s23, s3, 14
    v_add_u32 v5, s23, v7
    v_and_b32 v3, 15, v2
    v_lshlrev_b32 v3, 6, v3
    s_waitcnt vmcnt(0)
    s_barrier        ; B8
    s_cmp_lg_u32 s3, 0
    s_cbranch_scc1 L_p3x
    """)
    flag(k,29,48)
    k(f"s_lshr_b32 s29, s63, 1\ns_lshl_b32 s29, s29, 10\ns_add_u32 s29, s29, {WS_F3}")
    poll(k,"L_p3",3,1,29,48,SL3)
    k("s_barrier        ; B9")
    ts(k,9,False)
    A2=48
    slots=[8+8*i for i in range(5)]+[112+8*i for i in range(5)]
    for s in range(NM):
        if s and s%4==0: k("s_add_u32 s68, s68, 4096")
        b=slots[s]
        k(f"buffer_load_dwordx4 v[{b}:{b+3}], v7, s[4:7], s68 offen offset:{1024*(s&3)} sc1")
        k(f"buffer_load_dwordx4 v[{b+4}:{b+7}], v6, s[4:7], s68 offen offset:{1024*(s&3)} sc1")
    for s in range(NM):
        for lb in range(2):
            k(f"s_waitcnt vmcnt({2*(NM-1-s)+1-lb})")
            for db in range(2):
                c=A2+16*(db+2*lb); a=MA+8*s+4*db; b=slots[s]+4*lb
                k(f"v_mfma_f32_32x32x16_bf16 v[{c}:{c+15}], v[{a}:{a+3}], v[{b}:{b+3}], {'0' if s==0 else f'v[{c}:{c+15}]'}")
    for j in range(16):
        k(f"ds_write_b128 v5, v[{A2+4*j}:{A2+4*j+3}] offset:{G2M+j*1024}")
    k(f"""
    s_waitcnt lgkmcnt(0)
    s_barrier        ; B10
    s_or_b32 s23, s2, s3
    s_cmp_lg_u32 s23, 0
    s_cbranch_scc1 L_mend
    s_mov_b32 s29, {WS_TAG:#x}
    """)
    flag(k,29,48)
    k("L_mend:")
    flush(k,[1,2,3,4,5,6,7,8,10,9],0,0)
    k("s_endpgm")

def gen_help(k):
    VH=100; VW=102
    CS=72; WJ=88
    k(f"""
    L_help:
    v_lshrrev_b32 v12, 3, v2
    v_and_b32 v13, 7, v2
    v_lshlrev_b32 v14, 4, v13
    v_lshl_add_u32 v14, v12, 10, v14
    v_add_u32 v15, {8192-1024}, v14
    s_lshr_b32 s29, s2, 1                    ; kf
    s_and_b32 s30, s2, 1
    s_lshl_b32 s30, s30, 2
    s_add_u32 s30, s30, s65
    s_lshl_b32 s31, s29, 14
    s_lshl_b32 s52, s30, 7
    s_add_u32 s31, s31, s52
    s_lshl_b32 s52, s65, 11
    s_add_u32 s52, s52, {WDS}
    s_mov_b32 m0, s52
    s_mul_i32 s53, s30, 112
    s_add_u32 s53, s53, s29
    s_lshl_b32 s53, s53, 11
    s_add_u32 s53, s53, {WS_WT}
    s_mov_b32 s10, {1792*512*2:#x}
    s_mov_b32 s11, 0x20000
    s_waitcnt lgkmcnt(0)
    s_mov_b32 s8, s16
    s_mov_b32 s9, s17
    s_mov_b32 s4, s20
    s_mov_b32 s5, s21
    s_cmp_ge_u32 s2, 224
    s_cbranch_scc1 L_h0
    buffer_load_dwordx4 v14, s[8:11], s31 offen lds
    buffer_load_dwordx4 v15, s[8:11], s31 offen offset:1024 lds
    L_h0:
    global_load_ushort v8, v4, s[38:39]
    global_load_ushort v9, v4, s[40:41]
    global_load_ushort v10, v4, s[42:43]
    global_load_ushort v11, v4, s[44:45]
    buffer_load_dword v16, v5, s[4:7], s23 offen sc1
    s_load_dword s27, s[46:47], s22
    s_load_dword s28, s[48:49], s22
    s_getpc_b64 s[54:55]
    L_pc:
    s_add_u32 s54, s54, L_begin-L_pc
    s_addc_u32 s55, s55, -1
    s_lshr_b32 s29, s2, 3
    s_lshl_b32 s29, s29, 2
    s_add_u32 s29, s29, s65
    s_lshl_b32 s29, s29, 9
    v_and_b32 v17, 7, v2
    v_lshl_add_u32 v17, v17, 6, s29
    v_min_u32 v17, L_stop-L_begin-4, v17
    global_load_dword v17, v17, s[54:55]
    """)
    common_addr(k)
    k(f"""
    v_lshrrev_b32 v18, 5, v2
    v_bfe_u32 v19, v2, 2, 2
    v_lshl_add_u32 v18, v18, 2, v19
    v_lshlrev_b32 v18, 7, v18
    v_and_b32 v19, 1, v2
    v_lshl_add_u32 v18, v19, 5, v18
    v_bfe_u32 v19, v2, 4, 1
    v_lshl_add_u32 v18, v19, 4, v18
    v_bfe_u32 v19, v2, 1, 1
    v_lshl_add_u32 v18, v19, 3, v18
    v_add_u32 v18, s52, v18
    s_barrier        ; B1
    s_cmp_ge_u32 s2, 224
    s_cbranch_scc1 L_h1
    s_waitcnt vmcnt(6)
    """)
    for db in range(2):
        k(f"ds_read_b64_tr_b16 v[{WJ+4*db}:{WJ+4*db+1}], v18 offset:{64*db}\nds_read_b64_tr_b16 v[{WJ+4*db+2}:{WJ+4*db+3}], v18 offset:{64*db+1024}")
    k(f"""
    s_waitcnt lgkmcnt(0)
    buffer_store_dwordx4 v[{WJ}:{WJ+3}], v7, s[4:7], s53 offen sc1
    buffer_store_dwordx4 v[{WJ+4}:{WJ+7}], v7, s[4:7], s53 offen offset:1024 sc1
    s_waitcnt vmcnt(3)
    s_branch L_h2
    L_h1:
    s_waitcnt vmcnt(1) lgkmcnt(0)
    L_h2:
    v_readfirstlane_b32 s60, v16
    """)
    ts(k,1,False)
    kparams(k)
    k("s_mul_i32 s60, s60, 1664525\ns_add_u32 s60, s60, 1013904223")
    Z1=36; Z8=38; V=40; Z2=42; Z4=44; T=46; E=48; X0=50; X1=52; CC=54; C=56
    k("v_sub_f32 v9, 0, v9")
    direct(k, Z1, 8, 9, 1, T)
    direct(k, Z8, 8, 9, 8, T)
    direct(k, V, 8, 9, 256, T)
    k(f"""
    v_add_f32 v34, v34, v34
    v_lshlrev_b32 v10, 16, v10
    v_lshlrev_b32 v11, 16, v11
    v_mul_f32 v{CC}, v10, v34
    v_mul_f32 v{CC+1}, -v11, v34
    """)
    cnt=[0]
    def put(src, rows):
        c=C+(cnt[0]&3); cnt[0]+=1
        k(f"v_cvt_pk_bf16_f32 v{c}, v{src}, v{src+1}")
        for (r,h) in rows: k(f"ds_write_b32 v30, v{c} offset:{TROW*rho(r,h)}")
    put(CC,[(0,0)])
    cmul(k,Z2,Z1,Z1,T)
    cur=CC
    for r in range(1,8):
        nxt = X0 if cur!=X0 else X1
        cmul(k,nxt,cur,Z1,T); put(nxt,[(r,0)]); cur=nxt
    cmul(k,Z4,Z2,Z2,T)
    cmul(k,E,CC,V,T); put(E,[(0,1),(1,1)])
    cur=E
    for rows in ([(2,1)],[(3,1),(4,1),(5,1)],[(6,1)],[(7,1)]):
        nxt = X0 if cur!=X0 else X1
        cmul(k,nxt,cur,Z2,T); put(nxt,rows); cur=nxt
    ecur=E
    for h in (0,1):
        en = CC if ecur==E else E
        cmul(k,en,ecur,V,T); put(en,[(8,h)]); ecur=en
        cmul(k,X0,ecur,Z4,T); put(X0,[(9,h)])
        cmul(k,X1,X0,Z4,T); put(X1,[(10,h)])
    for (r,h) in ((11,0),(11,1),(13,0),(13,1)):
        en = CC if ecur==E else E
        cmul(k,en,ecur,V,T); put(en,[(r,h)]); ecur=en
        cmul(k,X0,ecur,Z8,T); put(X0,[(r+1,h)])
    k(f"""
    s_lshr_b32 s52, s2, 3
    s_min_u32 s53, s52, 27
    s_and_b32 s29, s2, 1
    s_mul_i32 s29, s29, 28
    s_add_u32 s29, s29, s53                  ; t
    s_mul_i32 s30, s29, 4682
    s_lshr_b32 s30, s30, 16                  ; kchunk
    s_mul_i32 s31, s30, 14
    s_sub_u32 s29, s29, s31
    s_cmp_ge_u32 s29, 7
    s_cselect_b32 s8, s14, s12
    s_cselect_b32 s9, s15, s13
    s_cselect_b32 s31, 7, 0
    s_cselect_b32 s53, {1792*4}, 0
    s_sub_u32 s29, s29, s31
    s_bfe_u32 s31, s2, 0x20001
    s_mul_i32 s31, s31, 7
    s_add_u32 s29, s29, s31                  ; cb
    s_lshl_b32 s30, s30, 2
    s_add_u32 s30, s30, s65
    s_mul_i32 s31, s30, {32*3584}
    s_lshl_b32 s54, s29, 7
    s_add_u32 s31, s31, s54                  ; W soffset
    s_mul_i32 s30, s30, {3584*4}
    s_lshl_b32 s29, s29, 8
    s_add_u32 s30, s30, s29
    s_add_u32 s53, s53, s30
    s_add_u32 s53, s53, {WS_CS}
    v_mul_u32_u24 v12, 3584, v12
    v_lshl_add_u32 v12, v13, 4, v12
    v_lshrrev_b32 v14, 4, v2
    v_lshlrev_b32 v14, 3, v14
    v_lshl_add_u32 v13, v13, 5, v14
    s_lshl_b32 s29, s2, 6
    s_add_u32 s29, s29, {WS_F1}
    s_waitcnt vmcnt(0) lgkmcnt(0)
    s_barrier        ; B2
    s_cmp_lg_u32 s3, 4
    s_cbranch_scc1 L_h3
    """)
    flag(k,29,20)
    k("L_h3:")
    ts(k,2,False)
    for i in range(4):
        k(f"buffer_load_dwordx4 v[{CS+4*i}:{CS+4*i+3}], v12, s[8:11], s31 offen")
        if i<3: k(f"s_add_u32 s31, s31, {8*3584}")
    k(f"""
    v_lshrrev_b32 v3, 4, v2
    v_and_b32 v4, 15, v2
    v_lshlrev_b32 v5, 2, v3
    v_xor_b32 v4, v4, v5
    v_lshlrev_b32 v4, 4, v4
    v_lshl_add_u32 v4, v3, 12, v4
    s_lshl_b32 s29, s65, 15
    v_add_u32 v{VH}, s29, v4
    v_add_u32 v{VH+1}, {16384-1024}, v{VH}
    s_lshl_b32 s70, s61, 8
    s_add_u32 s70, s70, {WS_HT}              ; H soffset
    s_mul_i32 s71, s62, 224
    s_mul_i32 s29, s66, 114688
    s_add_u32 s71, s71, s29
    s_lshl_b32 s72, s65, 11
    s_add_u32 s72, s72, {HB}                 ; H lds
    s_and_b32 s29, s65, 1
    s_mul_i32 s73, s29, {UOFF}
    s_mul_i32 s30, s66, {WSL}
    s_add_u32 s73, s73, s30
    s_add_u32 s73, s73, {WB}                 ; W lds
    s_cmp_eq_u32 s29, 0
    s_cselect_b32 s36, s12, s14
    s_cselect_b32 s37, s13, s15
    s_mov_b32 s38, {512*1792*2:#x}
    s_mov_b32 s39, 0x20000
    """)
    for i in range(7):
        k(f"""
        v_add_u32 v6, {64*i}, v2
        v_mul_u32_u24 v5, 4682, v6
        v_lshrrev_b32 v5, 16, v5
        v_mul_u32_u24 v4, 14, v5
        v_sub_u32 v6, v6, v4
        v_mul_u32_u24 v5, 3584, v5
        v_lshl_add_u32 v{VW+i}, v6, 4, v5
        """)
        if i&3: k(f"v_subrev_u32 v{VW+i}, {1024*(i&3)}, v{VW+i}")
    q=[]
    def issueH(j):
        if j>15: return
        k(f"s_add_u32 m0, s72, {(j%NH)*HS}\ns_add_u32 s31, s70, {j*131072}")
        k(f"buffer_load_dwordx4 v{VH}, s[4:7], s31 offen sc1 lds\nbuffer_load_dwordx4 v{VH+1}, s[4:7], s31 offen offset:1024 sc1 lds")
        q.extend([("H",j)]*2)
    def issueW(j):
        if j>15: return
        k(f"s_add_u32 m0, s73, {(j%NW)*WSL}\ns_add_u32 s31, s71, {j*114688}")
        for i in range(7):
            if i==4: k(f"s_add_u32 m0, s73, {(j%NW)*WSL+4096}")
            k(f"buffer_load_dwordx4 v{VW+i}, s[36:39], s31 offen offset:{1024*(i&3)} lds")
        q.extend([("W",j)]*7)
    wt=[0]
    def issueT(n):
        for _ in range(n):
            if wt[0]<2*NHS:
                wtload(k, HA, wt[0]); q.append(("T",wt[0])); wt[0]+=1
    k("s_barrier        ; B3")
    ts(k,4,False)
    eloads(k)
    issueW(0); issueW(2); issueT(NPRE)
    uprep(k, len(q))
    ts(k,5,False)
    for i in range(4):
        for j in range(4):
            if i==0: k(f"v_lshlrev_b32 v{24+2*j}, 16, v{CS+j}\nv_and_b32 v{25+2*j}, 0xffff0000, v{CS+j}")
            else:
                k(f"v_lshlrev_b32 v32, 16, v{CS+4*i+j}\nv_and_b32 v33, 0xffff0000, v{CS+4*i+j}")
                k(f"v_add_f32 v{24+2*j}, v{24+2*j}, v32\nv_add_f32 v{25+2*j}, v{25+2*j}, v33")
    for i in range(4): k(f"v_permlane32_swap_b32 v{24+i}, v{28+i}")
    for i in range(4): k(f"v_add_f32 v{24+i}, v{24+i}, v{28+i}")
    for i in range(2): k(f"v_permlane16_swap_b32 v{24+i}, v{26+i}")
    for i in range(2): k(f"v_add_f32 v{24+i}, v{24+i}, v{26+i}")
    for i in range(2): k(f"v_add_f32_dpp v{24+i}, v{24+i}, v{24+i} row_ror:8 row_mask:0xf bank_mask:0xf")
    k(f"""
    s_cmp_ge_u32 s52, 28
    s_cbranch_scc1 L_h4
    s_mov_b32 exec_lo, 0x00ff00ff
    s_mov_b32 exec_hi, 0x00ff00ff
    buffer_store_dwordx2 v[24:25], v13, s[4:7], s53 offen sc1
    s_mov_b64 exec, -1
    L_h4:
    v_and_b32 v3, 255, v0
    v_lshrrev_b32 v4, 5, v3
    v_lshlrev_b32 v4, 4, v4
    v_and_b32 v5, 15, v3
    v_add_u32 v4, v4, v5
    v_bfe_u32 v5, v3, 4, 1
    v_mul_u32_u24 v5, 1792, v5
    v_add_u32 v4, v4, v5
    v_lshlrev_b32 v4, 2, v4
    v_cmp_gt_u32 vcc, 224, v3
    v_mov_b32 v5, 0x7fffff00
    v_cndmask_b32 v4, v5, v4, vcc
    s_mul_i32 s53, s62, 448
    s_add_u32 s53, s53, {WS_CS}
    v_lshlrev_b32 v3, 4, v3
    v_add_u32 v3, {AP}, v3
    v_lshrrev_b32 v5, 4, v2
    v_lshlrev_b32 v6, 10, v5
    v_and_b32 v15, 15, v2
    v_lshl_add_u32 v6, v15, 4, v6
    s_lshl_b32 s29, s65, 8
    s_add_u32 s29, s29, {HB}
    v_add_u32 v6, s29, v6
    s_lshl_b32 s29, s65, 2
    v_xor_b32 v15, s29, v15
    v_lshlrev_b32 v15, 5, v15
    v_and_b32 v12, 1, v5
    v_lshl_add_u32 v15, v12, 4, v15
    v_lshrrev_b32 v12, 1, v5
    v_lshl_add_u32 v15, v12, 9, v15
    s_lshl_b32 s29, s65, 10
    s_add_u32 s29, s29, {PART}
    v_add_u32 v15, s29, v15
    v_and_b32 v13, 31, v2
    s_lshl_b32 s29, s65, 5
    v_add_u32 v13, s29, v13
    v_lshlrev_b32 v14, 4, v13
    v_add_u32 v14, {FS}, v14
    v_lshlrev_b32 v13, 2, v13
    v_lshl_add_u32 v13, v12, 9, v13
    v_add_u32 v13, {PART}, v13
    s_barrier        ; B5
    s_waitcnt vmcnt(0)
    s_barrier        ; B6
    s_barrier        ; B7
    """)
    ts(k,7,False)
    q.clear()
    for j in range(4): issueH(j)
    issueW(4)
    for j in range(4,8): issueH(j)
    for p in range(16):
        k(f"buffer_load_dword v{CS+p}, v4, s[4:7], s53 offen sc1"); q.append(("C",p))
        if p<15: k(f"s_add_u32 s53, s53, {3584*4}")
    S=24; Q=32; RB=[40,44,48]; T=52
    done=0
    rest=2*NHS-NPRE
    JC=6
    for j in range(16):
        need=[idx for idx,(kind,b) in enumerate(q) if (kind=="W" and b<=j) or (kind=="H" and b<=hb(j)) or (kind=="C" and j>=JC)]
        k(f"s_waitcnt vmcnt({min(63,len(q)-1-max(need))})\ns_barrier")
        if j>=2: issueH(j+NH-2)
        if j>=3 and j&1: issueW(j+3)
        if j>=1: issueT((rest*j)//13-(rest*(j-1))//13)
        rs=list(range(done,CUM[j])); done=CUM[j]
        for n,r in enumerate(rs):
            k(f"ds_read_b128 v[{RB[n]}:{RB[n]+3}], v6 offset:{((r>>1)%NH)*HS+(r&1)*4096}")
        if j==JC:
            for st in (8,4,2,1):
                for p in range(st): k(f"v_add_f32 v{CS+p}, v{CS+p}, v{CS+p+st}")
            k(f"""
            v_cvt_pk_bf16_f32 v9, v{CS}, v{CS}
            v_and_b32 v9, 0xffff0000, v9
            v_sub_f32 v8, v{CS}, v9
            v_cvt_pk_bf16_f32 v10, v8, v8
            v_and_b32 v10, 0xffff0000, v10
            v_sub_f32 v8, v8, v10
            v_cvt_pk_bf16_f32 v16, v9, v10
            v_cvt_pk_bf16_f32 v17, v8, 0
            v_mov_b32 v18, 0
            v_mov_b32 v19, 0
            """)
        for n,r in enumerate(rs):
            k(f"s_waitcnt lgkmcnt({len(rs)-1-n})")
            for d in range(4):
                src=RB[n]+d
                if r==0:
                    k(f"v_lshlrev_b32 v{S+2*d}, 16, v{src}\nv_and_b32 v{S+2*d+1}, 0xffff0000, v{src}")
                    k(f"v_mul_f32 v{Q+2*d}, v{S+2*d}, v{S+2*d}\nv_mul_f32 v{Q+2*d+1}, v{S+2*d+1}, v{S+2*d+1}")
                else:
                    t=T+2*(d&1)
                    k(f"v_lshlrev_b32 v{t}, 16, v{src}\nv_and_b32 v{t+1}, 0xffff0000, v{src}")
                    k(f"v_add_f32 v{S+2*d}, v{S+2*d}, v{t}\nv_add_f32 v{S+2*d+1}, v{S+2*d+1}, v{t+1}")
                    k(f"v_fmac_f32 v{Q+2*d}, v{t}, v{t}\nv_fmac_f32 v{Q+2*d+1}, v{t+1}, v{t+1}")
        if j==JC: k("ds_write_b128 v3, v[16:19]\ns_waitcnt lgkmcnt(0)")
        if j==13:
            for i in range(8): k(f"v_permlane32_swap_b32 v{S+i}, v{Q+i}")
            for i in range(8): k(f"v_add_f32 v{S+i}, v{S+i}, v{Q+i}")
            for i in range(4): k(f"v_permlane16_swap_b32 v{S+i}, v{S+4+i}")
            for i in range(4): k(f"v_add_f32 v{S+i}, v{S+i}, v{S+4+i}")
            k(f"ds_write_b128 v15, v[{S}:{S+3}]\ns_waitcnt lgkmcnt(0)")
        if j==14:
            for p in range(4): k(f"ds_read_b32 v{40+p}, v13 offset:{1024*p}")
            k(f"""
            v_mov_b32 v1, 0x3b000000
            s_waitcnt lgkmcnt(0)
            v_add_f32 v40, v40, v41
            v_add_f32 v42, v42, v43
            v_add_f32 v40, v40, v42
            v_mov_b32 v41, v40
            v_permlane32_swap_b32 v40, v41
            v_mul_f32 v40, v40, v1
            v_mul_f32 v41, v41, v1
            v_fma_f32 v41, -v40, v40, v41
            v_max_f32 v41, 0, v41
            v_cvt_pk_bf16_f32 v41, v41, v41
            v_and_b32 v41, 0xffff0000, v41
            v_add_f32 v41, 0x3727c5ac, v41
            v_cvt_pk_bf16_f32 v41, v41, v41
            v_and_b32 v41, 0xffff0000, v41
            v_sqrt_f32 v41, v41
            v_cvt_pk_bf16_f32 v44, -v40, -v40
            v_cvt_pk_bf16_f32 v41, v41, v41
            v_and_b32 v47, 0xffff0000, v41
            v_rcp_f32 v46, v47
            v_mov_b32 v45, v44
            v_mul_f32 v46, 0xbfb8aa3b, v46
            ds_write_b128 v14, v[44:47]
            s_waitcnt lgkmcnt(0)
            """)
    assert wt[0]==2*NHS
    ts(k,8,False)
    k(f"""
    v_add_u32 v6, {112*1024}, v7
    v_lshrrev_b32 v3, 2, v2
    v_lshlrev_b32 v3, 12, v3
    v_and_b32 v4, 3, v2
    v_lshl_add_u32 v3, v4, 4, v3
    v_add_u32 v4, {65536-1024}, v3
    s_and_b32 s29, s65, 1
    s_lshl_b32 s30, s64, 1
    s_add_u32 s29, s29, s30          ; d block32
    s_lshl_b32 s30, s63, 1
    s_add_u32 s30, s30, s66          ; l block32
    s_lshl_b32 s52, s29, 17
    s_lshl_b32 s53, s30, 6
    s_add_u32 s52, s52, s53
    s_add_u32 s52, s52, {WS_HT}      ; h soffset
    s_lshl_b32 s74, s30, 15
    s_lshl_b32 s53, s29, 6
    s_add_u32 s74, s74, s53
    s_lshl_b32 s53, s65, 11
    s_add_u32 s53, s53, {G2R}
    s_mov_b32 s8, s18
    s_mov_b32 s9, s19
    s_mov_b32 s10, {2048*512*2:#x}
    s_barrier        ; B8
    {TSI+' s[92:93]' if STAMP else ''}
    s_mov_b32 m0, s53
    s_nop 0
    buffer_load_dwordx4 v3, s[4:7], s52 offen sc1 lds
    buffer_load_dwordx4 v4, s[4:7], s52 offen offset:1024 sc1 lds
    v_lshrrev_b32 v3, 5, v2
    v_bfe_u32 v4, v2, 2, 2
    v_lshl_add_u32 v4, v3, 4, v4
    v_lshlrev_b32 v4, 6, v4
    v_bfe_u32 v5, v2, 4, 1
    v_lshl_add_u32 v4, v5, 5, v4
    v_and_b32 v5, 3, v2
    v_lshl_add_u32 v4, v5, 3, v4
    v_add_u32 v4, s53, v4
    v_and_b32 v5, 31, v2
    v_lshlrev_b32 v5, 10, v5
    v_lshl_add_u32 v5, v3, 5, v5
    s_lshl_b32 s29, s65, 14
    s_add_u32 s29, s29, {G2H}
    v_add_u32 v3, s29, v7
    s_lshl_b32 s29, s65, 12
    v_add_u32 v1, s29, v7
    s_barrier        ; B9
    """)
    ts(k,9,False)
    A2=48
    free=[8+8*i for i in range(5)]
    slot={}; q=[]
    nxt=[0]
    def ldB():
        s=nxt[0]
        if s>=NHS or not free: return False
        if s and s%4==0: k("s_add_u32 s68, s68, 4096")
        b=free.pop(0); slot[s]=b
        k(f"buffer_load_dwordx4 v[{b}:{b+3}], v7, s[4:7], s68 offen offset:{1024*(s&3)} sc1")
        k(f"buffer_load_dwordx4 v[{b+4}:{b+7}], v6, s[4:7], s68 offen offset:{1024*(s&3)} sc1")
        q.extend([(s,0),(s,1)]); nxt[0]+=1
        return True
    while ldB(): pass
    for s in range(NHS):
        for lb in range(2):
            k(f"s_waitcnt vmcnt({len(q)-1-q.index((s,lb))})")
            for db in range(2):
                c=A2+16*(db+2*lb); a=HA+8*s+4*db; b=slot[s]+4*lb
                k(f"v_mfma_f32_32x32x16_bf16 v[{c}:{c+15}], v[{a}:{a+3}], v[{b}:{b+3}], {'0' if s==0 else f'v[{c}:{c+15}]'}")
        if s>=1:
            free.append(slot[s-1]); free.append(HA+8*(s-1))
        ldB(); ldB()
    for w in range(4):
        if w<3: k(f"s_cmp_lg_u32 s65, {w}\ns_cbranch_scc1 L4_w{w}")
        for qd in range(4):
            if qd==w: continue
            for j in range(4):
                k(f"ds_write_b128 v3, v[{A2+16*qd+4*j}:{A2+16*qd+4*j+3}] offset:{qd*4096+j*1024}")
        if w:
            for j in range(16): k(f"v_mov_b32 v{A2+j}, v{A2+16*w+j}")
        if w<3: k(f"s_branch L4_red\nL4_w{w}:")
    k("L4_red:")
    HT=8; HF=16; P=112
    for j in range(4): k(f"ds_read_b64_tr_b16 v[{HT+2*j}:{HT+1+2*j}], v4 offset:{j*256}")
    k("s_waitcnt lgkmcnt(0)\ns_barrier        ; B10")
    for p in range(4):
        for j in range(4): k(f"ds_read_b128 v[{P+16*p+4*j}:{P+3+16*p+4*j}], v1 offset:{G2M+p*16384+j*1024}")
    for j in range(8):
        k(f"v_and_b32 v{HF+1+2*j}, 0xffff0000, v{HT+j}\nv_lshlrev_b32 v{HF+2*j}, 16, v{HT+j}")
    def addp(p):
        for j in range(8): k(f"v_pk_add_f32 v[{A2+2*j}:{A2+2*j+1}], v[{A2+2*j}:{A2+2*j+1}], v[{P+16*p+2*j}:{P+1+16*p+2*j}]")
    for p in range(1,4):
        k(f"s_add_u32 s29, s65, {p}\ns_and_b32 s29, s29, 3\ns_lshl_b32 s29, s29, 14\ns_add_u32 s29, s29, {G2H}\nv_add_u32 v3, s29, v1")
        k(f"s_waitcnt lgkmcnt(12)");
        for j in range(4): k(f"ds_read_b128 v[{P+16*(p+3)+4*j}:{P+3+16*(p+3)+4*j}], v3 offset:{j*1024}")
        addp(p-1)
    for p in range(3,7):
        k(f"s_waitcnt lgkmcnt({4*(6-p)})"); addp(p)
    for j in range(8): k(f"v_cvt_pk_bf16_f32 v{64+j}, v{A2+2*j}, v{A2+2*j+1}")
    for j in range(8): k(f"v_lshlrev_b32 v{A2+2*j}, 16, v{64+j}\nv_and_b32 v{A2+2*j+1}, 0xffff0000, v{64+j}")
    for j in range(8): k(f"v_pk_add_f32 v[{A2+2*j}:{A2+2*j+1}], v[{A2+2*j}:{A2+2*j+1}], v[{HF+2*j}:{HF+1+2*j}]")
    for j in range(8): k(f"v_cvt_pk_bf16_f32 v{64+j}, v{A2+2*j}, v{A2+2*j+1}")
    for jj in range(2):
        k(f"buffer_store_dwordx4 v[{64+4*jj}:{67+4*jj}], v5, s[8:11], s74 offen offset:{16*jj} {os.environ.get('OUTM','')}")
    ts(k,3,False)
    flush(k,[1,8,6,3],10,4)

if __name__=="__main__":
    out = sys.argv[1] if len(sys.argv)>1 else "m.s"
    finish(out, [gen_m()])
```

```python
import sys, os
sys.path.insert(0,'gen')
from common import *
from k2 import cmul, direct, rho, LOG2E, INV2PI
E_=lambda n,d: int(os.environ.get(n,str(d)),0)
WS_WT=0x1000000
WS_F1=0x1400000; WS_F2=0x1410000; WS_F3=0x1420000; WS_TAG=0x1430000; WS_F4=0x1440000; WS_SP=0x1450000
WSL=14464; UOFF=7184; NW=6; WB=0
TB=0; TA=33792; TBL=16896; TROW=528
UC=72320; UCC=4640; UCH=4*UCC
KC=109440; KCC=4224
XT=126336; T1=XT+8192; RED=142720
LNB=XT; ROWS=2112; WDS=143360
NH=8; HS=8192; HB=86784
MISC=HB+NH*HS; PART=MISC; FS=MISC+4096; AP=MISC+6144
G2M=0; G2H=65536; G2R=131072
PF=160768
LDS=163840
CUM=[2,4,6,8,10,13,15,18,20,23,25,28,30,32,32,32]
def hb(j): return max(j,(CUM[j]-1)>>1)
NM=10; NHS=18
MA=176; HA=112
N1=E_("N1",28); N3=E_("N3",8)
J0=E_("J0",0); J1=E_("J1",1); J2=E_("J2",2); JF=E_("JF",6); JP=E_("JP",9); JQ=E_("JQ",11); JR=E_("JR",13); JC=E_("JC",7)
SL1=E_("SL1",0); SL2=E_("SL2",8); SL3=E_("SL3",8); SLP=E_("SLP",2)
LIMIT=4000
TSI='s_memtime' if E_('CY',0) else 's_memrealtime'
def ts(k,i,drain=True):
    if not STAMP: return
    k(f"{TSI} s[{80+2*i}:{81+2*i}]")
    if drain: k("s_waitcnt lgkmcnt(0)")
def flush(k, idxs, base, wave):
    if STAMP==3:
        DI=E_("DI",0); DWV=E_("DWV",0); DW=E_("DBGWG",-1)
        if DWV!=wave: return
        if DW>=0: k(f"s_cmp_lg_u32 s2, {DW}\ns_cbranch_scc1 L_df{wave}")
        k(f"""s_cmp_lg_u32 s3, {wave}
        s_cbranch_scc1 L_df{wave}
        s_waitcnt lgkmcnt(0)
        s_add_u32 s29, s{80+2*DI}, 6000
        s_mov_b32 s23, 0
        L_dl{wave}:
        s_memrealtime s[30:31]
        s_add_u32 s23, s23, 1
        s_waitcnt lgkmcnt(0)
        s_sub_u32 s30, s30, s29
        s_cmp_gt_u32 s23, 200000
        s_cbranch_scc1 L_df{wave}
        s_cmp_lt_i32 s30, 0
        s_cbranch_scc1 L_dl{wave}
        L_df{wave}:""")
        return
    if STAMP!=2:
        stamp_flush(k,0,11,20,3,vt=8)
        if STAMP and wave==0: k("s_sub_u32 s29, s74, s72\nv_mov_b32 v8, s29\nbuffer_store_dword v8, v9, s[76:79], 0 offen offset:44")
        return
    DW=E_("DBGWG",0)
    k(f"s_cmp_lg_u32 s2, {DW}\ns_cbranch_scc1 L_df{wave}\ns_cmp_lg_u32 s3, {wave}\ns_cbranch_scc1 L_df{wave}")
    k("s_load_dwordx2 s[76:77], s[0:1], 96\ns_mov_b32 s78, 256\ns_mov_b32 s79, 0x20000\nv_mov_b32 v9, 0\ns_waitcnt lgkmcnt(0)")
    for n,i in enumerate(idxs):
        k(f"s_sub_u32 s29, s{80+2*i}, s80\nv_mov_b32 v8, s29\nbuffer_store_dword v8, v9, s[76:79], 0 offen offset:{4*(base+n)}")
    k(f"L_df{wave}:")
def poll(k, lab, voff, n, soff, t, first):
    if first: k(f"s_sleep {first}")
    k(f"s_mov_b32 s31, 0\n{lab}:")
    for j in range(n):
        if j: k(f"s_add_u32 s30, s{soff}, {4096*j}")
        k(f"buffer_load_dword v{t+j}, v{voff}, s[4:7], s{soff if j==0 else 30} offen sc1")
    k("s_add_u32 s31, s31, 1\ns_waitcnt vmcnt(0)")
    for j in range(n): k(f"v_xor_b32 v{t+j}, s60, v{t+j}")
    for j in range(1,n): k(f"v_or_b32 v{t}, v{t}, v{t+j}")
    k(f"""
    v_cmp_ne_u32 vcc, 0, v{t}
    s_cmp_gt_u32 s31, {LIMIT}
    s_cbranch_scc1 {lab}x
    s_cbranch_vccz {lab}x
    s_sleep {SLP}
    s_branch {lab}
    {lab}x:
    """)
def flag(k, soff, t):
    k(f"""
    v_mov_b32 v{t}, s60
    v_mov_b32 v{t+1}, 0
    s_mov_b64 exec, 1
    buffer_store_dword v{t}, v{t+1}, s[4:7], s{soff} offen sc1
    s_mov_b64 exec, -1
    """)
EB=56
def eloads(k):
    k(f"""
    buffer_load_dwordx4 v[{EB}:{EB+3}], v71, s[32:35], s26 offen sc1
    buffer_load_dwordx4 v[{EB+4}:{EB+7}], v70, s[32:35], s26 offen sc1
    buffer_load_dwordx4 v[{EB+8}:{EB+11}], v70, s[32:35], s26 offen offset:32 sc1
    """)
def uprep(k, nafter):
    k(f"s_waitcnt vmcnt({nafter+1})")
    for j in range(6): k(f"v_mov_b32 v{36+j}, v{EB+1+j}")
    k(f"""
    ds_write_b128 v68, v[{EB+2}:{EB+5}] offset:{UCC}
    ds_write_b128 v68, v[{EB+4}:{EB+7}] offset:{3*UCC}
    ds_write_b128 v68, v[36:39]
    ds_write_b128 v68, v[38:41] offset:{2*UCC}
    """)
    for j in range(4):
        k(f"v_lshlrev_b32 v{44+2*j}, 16, v{EB+4+j}\nv_and_b32 v{45+2*j}, 0xffff0000, v{EB+4+j}")
    for j in range(8): k(f"v_mul_f32 v{44+j}, s28, v{44+j}")
    for j in range(4): k(f"v_cvt_pk_bf16_f32 v{52+j}, v{44+2*j}, v{45+2*j}")
    k(f"""
    ds_write_b128 v69, v[52:55] offset:{T1-XT}
    s_waitcnt vmcnt({nafter})
    ds_write_b128 v69, v[{EB+8}:{EB+11}]
    s_waitcnt lgkmcnt(0)
    s_barrier
    """)
def kparams(k):
    k(f"""
    s_lshl_b32 s29, s66, 4
    s_lshr_b32 s27, s27, s29
    s_lshl_b32 s27, s27, 16
    s_lshr_b32 s28, s28, s26
    s_lshl_b32 s28, s28, 16
    v_mov_b32 v33, {LOG2E}
    v_mul_f32 v34, s27, v33
    v_exp_f32 v34, v34
    v_lshlrev_b32 v8, 16, v8
    v_lshlrev_b32 v9, 16, v9
    v_cvt_pk_bf16_f32 v34, v34, v34
    v_and_b32 v34, 0xffff0000, v34
    v_mul_f32 v8, v8, v33
    v_exp_f32 v8, v8
    v_mul_f32 v9, v9, v34
    v_cvt_pk_bf16_f32 v8, v8, v8
    v_and_b32 v8, 0xffff0000, v8
    v_mul_f32 v8, v8, v34
    v_mul_f32 v9, {INV2PI}, v9
    v_mul_f32 v8, 0xbfb8aa3b, v8
    """)
def common_addr(k):
    k(f"""
    v_mov_b32 v24, 0
    v_mov_b32 v25, 0
    v_mov_b32 v26, 0
    v_mov_b32 v27, 0
    s_mul_i32 s29, s3, {UCC}
    s_add_u32 s29, s29, {UC}
    v_add_u32 v28, s29, v7
    s_mul_i32 s29, s65, {KCC}
    s_add_u32 s29, s29, {KC}
    v_add_u32 v29, s29, v7
    s_mov_b64 exec, 0xffffff
    ds_write_b128 v28, v[24:27]
    s_mov_b64 exec, 0x7f
    ds_write_b128 v29, v[24:27]
    s_mov_b64 exec, -1
    s_mul_i32 s29, s66, {TBL}
    s_mul_i32 s31, s25, {TA}
    s_add_u32 s29, s29, s31
    s_and_b32 s31, s3, 1
    s_lshl_b32 s31, s31, 8
    s_add_u32 s29, s29, s31
    v_lshlrev_b32 v30, 2, v2
    v_add_u32 v30, s29, v30
    s_mul_i32 s29, s25, {UCH}
    s_add_u32 s29, s29, {UC+24*16}
    v_and_b32 v3, 255, v0
    v_lshlrev_b32 v69, 4, v3
    v_add_u32 v68, s29, v69
    s_lshl_b32 s29, s25, 12
    s_add_u32 s29, s29, {XT}
    v_add_u32 v69, s29, v69
    v_lshlrev_b32 v70, 6, v3
    v_subrev_u32 v71, 64, v70
    s_lshl_b32 s23, s2, 14
    s_add_u32 s32, s20, s23
    s_addc_u32 s33, s21, 0
    s_mov_b32 s34, 16384
    s_mov_b32 s35, 0x20000
    s_and_b32 s61, s2, 1
    s_lshl_b32 s61, s61, 3
    s_bfe_u32 s23, s2, 0x30003
    s_add_u32 s61, s61, s23          ; rb
    s_bfe_u32 s62, s2, 0x20001
    s_lshl_b32 s62, s62, 2
    s_lshr_b32 s23, s2, 6
    s_add_u32 s62, s62, s23          ; fs
    s_and_b32 s63, s2, 7
    s_lshl_b32 s63, s63, 2
    s_bfe_u32 s23, s2, 0x20003
    s_add_u32 s63, s63, s23          ; tl
    s_lshr_b32 s64, s2, 5            ; td
    s_mul_i32 s67, s64, 112
    s_mul_i32 s23, s65, 28
    s_mul_i32 s29, s25, {NM}
    s_add_u32 s23, s23, s29
    s_add_u32 s67, s67, s23
    s_lshl_b32 s67, s67, 11
    s_add_u32 s67, s67, {WS_WT}
    s_mul_i32 s68, s63, 224
    s_add_u32 s68, s68, s23
    s_lshl_b32 s68, s68, 10
    s_add_u32 s68, s68, {WS_HG}
    """)
def wtload(k, base, i):
    if i and i%4==0: k("s_add_u32 s67, s67, 4096")
    k(f"buffer_load_dwordx4 v[{base+4*i}:{base+4*i+3}], v7, s[4:7], s67 offen offset:{1024*(i&3)} sc1")

def gen_m():
    k = K("sequential_preLN__ssm_conv_s4d__glu_gated_glu__prompt_kernel", 256, 512, LDS, 256)
    k("L_begin:\ns_cmp_ge_u32 s2, 256\ns_cbranch_scc1 L_end")
    ts(k,0,False)
    k(f"""
    s_load_dwordx16 s[36:51], s[0:1], 0
    s_load_dwordx8 s[12:19], s[0:1], 64
    s_load_dwordx2 s[20:21], s[0:1], 104
    v_lshrrev_b32 v1, 6, v0
    v_and_b32 v2, 63, v0
    v_lshlrev_b32 v7, 4, v2
    v_readfirstlane_b32 s3, v1
    v_and_b32 v3, 255, v0
    s_lshl_b32 s24, s2, 9
    v_lshl_add_u32 v4, v3, 1, s24
    v_mov_b32 v5, 0
    s_lshl_b32 s22, s2, 2
    s_and_b32 s65, s3, 3
    s_lshr_b32 s25, s3, 2
    s_lshl_b32 s26, s25, 4
    s_bfe_u32 s66, s3, 0x10001
    s_mov_b32 s6, {WS_SIZE:#x}
    s_mov_b32 s7, 0x20000
    s_mov_b32 s23, {WS_TAG:#x}
    s_cmp_ge_u32 s3, 4
    s_cbranch_scc1 L_help
    """)
    gen_main(k)
    gen_help(k)
    k("L_end:\ns_endpgm\nL_stop:")
    return k

def gen_main(k):
    k(f"""
    s_lshl_b32 s29, s2, 13
    s_lshl_b32 s30, s3, 11
    s_add_u32 s29, s29, s30
    s_mov_b32 s10, {2048*512*2:#x}
    s_mov_b32 s11, 0x20000
    s_waitcnt lgkmcnt(0)
    s_mov_b32 s8, s36
    s_mov_b32 s9, s37
    s_mov_b32 s4, s20
    s_mov_b32 s5, s21
    buffer_load_dwordx4 v[12:15], v7, s[8:11], s29 offen
    buffer_load_dwordx4 v[16:19], v7, s[8:11], s29 offen offset:1024
    global_load_ushort v8, v4, s[38:39]
    global_load_ushort v9, v4, s[40:41]
    buffer_load_dword v10, v5, s[4:7], s23 offen sc1
    s_load_dword s27, s[46:47], s22
    s_load_dword s28, s[48:49], s22
    """)
    common_addr(k)
    X=12; F=36; O=52
    k(f"""
    s_lshl_b32 s24, s3, 2
    s_add_u32 s24, s24, {PF}
    v_mov_b32 v1, s24
    ds_write_b32 v1, v24
    v_mov_b32 v1, 0x3b000000
    s_mul_i32 s24, s3, {2*ROWS}
    s_add_u32 s24, s24, {LNB}
    v_lshlrev_b32 v4, 5, v2
    v_add_u32 v4, s24, v4
    v_bfe_u32 v5, v2, 2, 2
    v_mul_u32_u24 v5, {ROWS}, v5
    v_lshrrev_b32 v6, 4, v2
    v_lshl_add_u32 v5, v6, 5, v5
    v_and_b32 v6, 3, v2
    v_lshl_add_u32 v5, v6, 3, v5
    s_lshl_b32 s24, s3, 9
    s_add_u32 s24, s24, {LNB}
    v_add_u32 v5, s24, v5
    v_lshrrev_b32 v11, 2, v2
    v_lshlrev_b32 v11, 14, v11
    v_lshl_add_u32 v11, v6, 4, v11
    s_lshl_b32 s24, s3, 20
    s_lshl_b32 s29, s2, 6
    s_add_u32 s24, s24, s29
    """)
    for i in range(2):
        k(f"s_waitcnt vmcnt({4-i})")
        if i==0: ts(k,1,False)
        for j in range(4):
            k(f"v_lshlrev_b32 v{F+8*i+2*j}, 16, v{X+4*i+j}\nv_and_b32 v{F+1+8*i+2*j}, 0xffff0000, v{X+4*i+j}")
        f=F+8*i; S,Q=20+2*i,21+2*i
        k(f"v_add_f32 v{S}, v{f}, v{f+1}\nv_mul_f32 v{Q}, v{f}, v{f}\nv_fmac_f32 v{Q}, v{f+1}, v{f+1}")
        for j in range(2,8): k(f"v_add_f32 v{S}, v{S}, v{f+j}\nv_fmac_f32 v{Q}, v{f+j}, v{f+j}")
    for dpp in ("row_shr:1","row_shr:2","row_shr:4","row_shr:8"):
        for r in range(20,24): k(f"v_add_f32_dpp v{r}, v{r}, v{r} {dpp} row_mask:0xf bank_mask:0xf bound_ctrl:1")
    for dpp in ("row_bcast:15 row_mask:0xa","row_bcast:31 row_mask:0xc"):
        for r in range(20,24): k(f"v_add_f32_dpp v{r}, v{r}, v{r} {dpp} bank_mask:0xf")
    for r in range(4): k(f"v_readlane_b32 s{52+r}, v{20+r}, 63")
    for i in range(2):
        M,V,T=24+3*i,25+3*i,26+3*i
        k(f"""
        v_mul_f32 v{M}, s{52+2*i}, v1
        v_mul_f32 v{V}, s{53+2*i}, v1
        v_fma_f32 v{V}, -v{M}, v{M}, v{V}
        v_max_f32 v{V}, 0, v{V}
        v_cvt_pk_bf16_f32 v{T}, v{M}, v{V}
        v_lshlrev_b32 v{M}, 16, v{T}
        v_and_b32 v{V}, 0xffff0000, v{T}
        v_add_f32 v{V}, 0x3727c5ac, v{V}
        v_cvt_pk_bf16_f32 v{V}, v{V}, v{V}
        v_and_b32 v{V}, 0xffff0000, v{V}
        v_sqrt_f32 v{V}, v{V}
        v_cvt_pk_bf16_f32 v{V}, v{V}, v{V}
        v_and_b32 v{V}, 0xffff0000, v{V}
        v_rcp_f32 v{V}, v{V}
        """)
    for i in range(2):
        M,V=24+3*i,25+3*i; f=F+8*i; o=O+8*i
        for j in range(8): k(f"v_sub_f32 v{f+j}, v{f+j}, v{M}")
        for j in range(4): k(f"v_cvt_pk_bf16_f32 v{o+2*j}, v{f+2*j}, v{f+2*j+1}")
        for j in range(4): k(f"v_lshlrev_b32 v{f+2*j}, 16, v{o+2*j}\nv_and_b32 v{f+2*j+1}, 0xffff0000, v{o+2*j}")
        for j in range(8): k(f"v_mul_f32 v{f+j}, v{f+j}, v{V}")
        for j in range(4): k(f"v_cvt_pk_bf16_f32 v{o+2*j}, v{f+2*j}, v{f+2*j+1}\nv_mov_b32 v{o+2*j+1}, v{X+4*i+j}")
        k(f"ds_write_b128 v4, v[{o}:{o+3}] offset:{i*ROWS}\nds_write_b128 v4, v[{o+4}:{o+7}] offset:{i*ROWS+16}")
    k("s_waitcnt lgkmcnt(0)\ns_barrier        ; B1")
    for it in range(4):
        k(f"ds_read_b64_tr_b16 v[{12+4*it}:{13+4*it}], v5 offset:{it*128}")
        k(f"ds_read_b64_tr_b16 v[{14+4*it}:{15+4*it}], v5 offset:{it*128+4*ROWS}")
    for it in range(4):
        k(f"s_waitcnt lgkmcnt({6-2*it})")
        k(f"buffer_store_dwordx4 v[{12+4*it}:{15+4*it}], v11, s[4:7], s24 offen sc1")
        if it<3: k(f"s_add_u32 s24, s24, {16*16384}")
    ts(k,2,False)
    k("s_waitcnt vmcnt(4)\nv_readfirstlane_b32 s60, v10")
    kparams(k)
    k("s_mul_i32 s60, s60, 1664525\ns_add_u32 s60, s60, 1013904223")
    W=36; X0=38; X1=40; T=42; C=44
    direct(k, W, 8, 9, 8, T)
    k(f"v_mov_b32 v{C}, 0x00003f80\nds_write_b32 v30, v{C}")
    k(f"v_cvt_pk_bf16_f32 v{C+1}, v{W}, v{W+1}\nds_write_b32 v30, v{C+1} offset:{TROW}")
    cur=W
    for j in range(2,32):
        nxt = X0 if cur!=X0 else X1
        cmul(k, nxt, cur, W, T)
        c=C+(j&3)
        k(f"v_cvt_pk_bf16_f32 v{c}, v{nxt}, v{nxt+1}\nds_write_b32 v30, v{c} offset:{TROW*j}")
        cur=nxt
    k(f"""
    v_and_b32 v4, 31, v2
    v_mul_u32_u24 v4, {TROW}, v4
    v_lshrrev_b32 v5, 5, v2
    v_lshl_add_u32 v4, v5, 4, v4
    s_mul_i32 s29, s66, {TBL}
    v_add_u32 v4, s29, v4
    s_waitcnt vmcnt(0) lgkmcnt(0)
    s_barrier        ; B2
    """)
    ts(k,3)
    NB=6; KR=112
    def rd(s):
        b=KR+8*(s%NB)
        k(f"ds_read_b128 v[{b}:{b+3}], v4 offset:{TA+32*s}\nds_read_b128 v[{b+4}:{b+7}], v4 offset:{TB+32*s}")
    for s in range(NB-1): rd(s)
    k(f"""
    s_mul_i32 s29, s3, {KCC}
    s_add_u32 s29, s29, {KC+7*16}
    v_add_u32 v5, s29, v7
    v_and_b32 v8, 1, v2
    v_mul_u32_u24 v8, {KCC}, v8
    v_bfe_u32 v9, v2, 1, 3
    v_lshrrev_b32 v10, 4, v2
    v_sub_u32 v9, v9, v10
    v_add_u32 v9, 3, v9
    v_lshl_add_u32 v8, v9, 4, v8
    s_mul_i32 s29, s66, {2*KCC}
    s_and_b32 s69, s3, 1                     ; c-half
    s_lshl_b32 s56, s69, 8
    s_add_u32 s29, s29, s56
    s_add_u32 s29, s29, {KC}
    v_add_u32 v8, s29, v8
    v_and_b32 v9, 3, v2
    v_mul_u32_u24 v11, {UCC}, v9
    v_bfe_u32 v12, v2, 2, 2
    v_lshl_add_u32 v13, v12, 3, v10
    v_lshl_add_u32 v11, v13, 4, v11
    s_mul_i32 s29, s66, {UCH}
    s_sub_u32 s29, s29, s56
    s_add_u32 s29, s29, {UC+16*16}
    v_add_u32 v11, s29, v11
    v_lshlrev_b32 v13, 5, v10
    v_lshl_add_u32 v13, v9, 2, v13
    v_lshl_add_u32 v13, v12, 7, v13
    v_and_b32 v14, 1, v2
    v_cmp_eq_u32 s[58:59], 1, v14
    """)
    D=16
    for s in range(16):
        if s+NB-1<16: rd(s+NB-1)
        k(f"s_waitcnt lgkmcnt({2*(min(15,s+NB-1)-s)})")
        b=KR+8*(s%NB)
        k(f"v_mfma_f32_32x32x16_bf16 v[{D}:{D+15}], v[{b}:{b+3}], v[{b+4}:{b+7}], {'0' if s==0 else f'v[{D}:{D+15}]'}")
    e=lambda r: D+r
    O=32
    k(f"v_cndmask_b32 v48, v{e(11)}, v{e(12)}, s[58:59]\nv_cndmask_b32 v49, v{e(13)}, v{e(14)}, s[58:59]")
    k("s_cmp_eq_u32 s69, 0\ns_cbranch_scc1 L2_a0")
    def grp(idx, pairs):
        o=O+4*idx
        for t,(lo,hi) in enumerate(pairs):
            if t>0 and pairs[t-1]==(lo,hi): k(f"v_mov_b32 v{o+t}, v{o+t-1}")
            else: k(f"v_cvt_pk_bf16_f32 v{o+t}, v{lo}, v{hi}")
        k(f"ds_write_b128 v5, v[{o}:{o+3}] offset:{idx*1024}")
    grp(0,[(e(7),e(6)),(e(5),e(4)),(e(3),e(2)),(e(1),e(0))])
    grp(1,[(e(10),e(10)),(e(9),e(9)),(e(9),e(8)),(e(8),e(8))])
    grp(2,[(e(12),e(12)),(e(12),48),(e(11),e(11)),(e(11),e(11))])
    grp(3,[(e(14),e(14)),(e(14),49),(e(13),e(13)),(e(13),e(13))])
    k("s_branch L2_conv\nL2_a0:")
    k("v_mov_b32 v50, 0")
    k(f"v_mov_b32_dpp v50, v{e(7)} wave_shr:1 row_mask:0xf bank_mask:0xf bound_ctrl:1")
    grp(1,[(e(10),e(9)),(e(9),e(9)),(e(8),e(8)),(e(8),e(8))])
    grp(2,[(e(12),e(12)),(48,e(11)),(e(11),e(11)),(e(11),e(11))])
    grp(3,[(e(14),e(14)),(49,e(13)),(e(13),e(13)),(e(13),e(13))])
    grp(0,[(e(6),e(5)),(e(4),e(3)),(e(2),e(1)),(e(0),50)])
    k(f"""
    L2_conv:
    v_lshlrev_b32 v3, 6, v2
    s_mov_b32 s29, {WS_F1:#x}
    s_cmp_lg_u32 s3, 0
    s_cbranch_scc1 L_p1x
    """)
    poll(k,"L_p1",3,4,29,52,SL1)
    k("s_waitcnt lgkmcnt(0)\ns_barrier        ; B3")
    ts(k,4)
    eloads(k)
    AF=[48,112]; BF=[80,144]; ACC=16
    def rdA(buf,g,cl): k(f"ds_read_b128 v[{AF[buf]+4*g}:{AF[buf]+4*g+3}], v8 offset:{512*g+64*cl}")
    def rdB(buf,t,cl): k(f"ds_read_b128 v[{BF[buf]+4*t}:{BF[buf]+4*t+3}], v11 offset:{512*t+(12-4*cl)*16}")
    for g in range(8): rdA(1,g,0)
    uprep(k, 0)
    ts(k,5)
    k("s_setprio 1")
    for t in range(8): rdB(1,t,0)
    first=[True]*8
    for cl in range(4):
        buf=(cl&1)^1
        pend=[]
        if cl<3:
            for g in range(8): pend += [("A",g),("B",g)]
        seq=[(t,g) for t in range(8) for g in range(t+1)]
        issued=0
        for idx,(t,g) in enumerate(seq):
            if g==0:
                if cl==0: k(f"s_waitcnt lgkmcnt({min(15,7-t+issued)})")
                else: k(f"s_waitcnt lgkmcnt({min(15,14-2*t+issued)})")
            a=AF[buf]+4*g; b=BF[buf]+4*(t-g); c=ACC+4*t
            k(f"v_mfma_f32_16x16x32_bf16 v[{c}:{c+3}], v[{a}:{a+3}], v[{b}:{b+3}], {'0' if first[t] else f'v[{c}:{c+3}]'}")
            first[t]=False
            start = 4
            if pend and idx>=start and (idx%2==0 or len(seq)-idx<=len(pend)+2):
                kind,j=pend.pop(0)
                (rdA if kind=="A" else rdB)(buf^1,j,cl+1); issued+=1
        assert not pend
    k(f"""
    s_lshl_b32 s29, s3, 12
    s_add_u32 s29, s29, {RED}
    v_add_u32 v4, s29, v7
    s_xor_b32 s29, s3, 1
    s_lshl_b32 s29, s29, 12
    s_add_u32 s29, s29, {RED}
    v_add_u32 v5, s29, v7
    s_lshl_b32 s29, s3, 11
    s_lshl_b32 s57, s2, 13
    s_add_u32 s57, s57, s29
    s_add_u32 s57, s57, {WS_HT}
    s_add_u32 s29, s29, {XT}
    v_add_u32 v6, s29, v13
    v_add_u32 v9, s29, v7
    """)
    XR=112
    for t in range(4):
        k(f"ds_read_b32 v{XR+4*t}, v6 offset:{512*t}\nds_read_b32 v{XR+1+4*t}, v6 offset:{512*t+16}")
        k(f"ds_read_b32 v{XR+2+4*t}, v6 offset:{512*t+T1-XT}\nds_read_b32 v{XR+3+4*t}, v6 offset:{512*t+16+T1-XT}")
    k("s_cmp_eq_u32 s69, 0\ns_cbranch_scc1 L2_r0")
    for t in range(4): k(f"ds_write_b128 v4, v[{ACC+4*t}:{ACC+4*t+3}] offset:{1024*t}")
    k("s_waitcnt lgkmcnt(0)")
    for j in range(16): k(f"v_mov_b32 v{ACC+j}, v{ACC+16+j}")
    k("s_branch L2_r1\nL2_r0:")
    for t in range(4): k(f"ds_write_b128 v4, v[{ACC+16+4*t}:{ACC+16+4*t+3}] offset:{1024*t}")
    k(f"""
    L2_r1:
    s_lshl_b32 s29, s3, 2
    s_add_u32 s29, s29, {PF}
    v_mov_b32 v8, s29
    v_xor_b32 v10, 4, v8
    ds_write_b32 v8, v8
    s_mov_b32 s31, 0
    L_b5:
    ds_read_b32 v11, v10
    s_add_u32 s31, s31, 1
    s_waitcnt lgkmcnt(0)
    v_cmp_eq_u32 vcc, 0, v11
    s_cmp_gt_u32 s31, 100000
    s_cbranch_scc1 L_b5x
    s_cbranch_vccnz L_b5
    L_b5x:
    """)
    for t in range(4): k(f"ds_read_b128 v[{48+4*t}:{51+4*t}], v5 offset:{1024*t}")
    for t in range(4):
        for hh in range(2):
            i=2*t+hh
            k(f"v_lshlrev_b32 v{64+2*i}, 16, v{XR+4*t+hh}\nv_and_b32 v{65+2*i}, 0xffff0000, v{XR+4*t+hh}")
            k(f"v_lshlrev_b32 v{80+2*i}, 16, v{XR+2+4*t+hh}\nv_and_b32 v{81+2*i}, 0xffff0000, v{XR+2+4*t+hh}")
    for t in range(4):
        k(f"s_waitcnt lgkmcnt({3-t+2*t})")
        a=ACC+4*t
        for r in range(4): k(f"v_add_f32 v{a+r}, v{a+r}, v{48+4*t+r}")
        def rnd(): k(f"v_cvt_pk_bf16_f32 v{a}, v{a}, v{a+1}\nv_cvt_pk_bf16_f32 v{a+2}, v{a+2}, v{a+3}")
        def unp():
            k(f"v_and_b32 v{a+1}, 0xffff0000, v{a}\nv_and_b32 v{a+3}, 0xffff0000, v{a+2}")
            k(f"v_lshlrev_b32 v{a}, 16, v{a}\nv_lshlrev_b32 v{a+2}, 16, v{a+2}")
        rnd(); unp()
        for r in range(4): k(f"v_add_f32 v{a+r}, v{a+r}, v{80+4*t+r}")
        rnd(); unp()
        for r in range(4): k(f"v_add_f32 v{a+r}, v{a+r}, v{64+4*t+r}")
        rnd()
        k(f"ds_write_b32 v6, v{a} offset:{512*t}\nds_write_b32 v6, v{a+2} offset:{512*t+16}")
    k(f"""
    s_waitcnt lgkmcnt(0)
    ds_read_b128 v[48:51], v9
    ds_read_b128 v[52:55], v9 offset:1024
    s_waitcnt lgkmcnt(1)
    buffer_store_dwordx4 v[48:51], v7, s[4:7], s57 offen sc1
    s_waitcnt lgkmcnt(0)
    buffer_store_dwordx4 v[52:55], v7, s[4:7], s57 offen offset:1024 sc1
    """)
    ts(k,6,False)
    MSL=E_("MSL",0)
    NA=4; AW=48; BW=[16,32]; ACC=64
    k(f"""
    v_lshrrev_b32 v3, 4, v2                  ; q
    v_bfe_u32 v4, v2, 2, 2                   ; r
    v_lshl_add_u32 v5, v3, 2, v4             ; row 4q+r
    v_and_b32 v6, 3, v2                      ; c
    v_mul_u32_u24 v8, 224, v5
    v_and_b32 v10, 1, v6
    v_lshl_add_u32 v10, v10, 3, v8
    v_lshrrev_b32 v11, 1, v6
    v_mul_u32_u24 v11, {UOFF}, v11
    s_lshl_b32 s29, s66, 4
    s_add_u32 s29, s29, {WB+96}
    v_add3_u32 v10, v10, v11, s29            ; A mixed
    v_add_u32 v11, {4*WSL}, v10
    v_lshl_add_u32 v8, v6, 3, v8
    s_lshl_b32 s29, s66, 7
    s_add_u32 s29, s29, {WB}
    v_add_u32 v8, s29, v8                    ; A normal
    v_add_u32 v9, {4*WSL}, v8
    v_lshlrev_b32 v1, 8, v5
    v_lshl_add_u32 v1, v6, 3, v1
    v_add_u32 v1, {HB}, v1
    v_and_b32 v5, 7, v5
    s_lshl_b32 s29, s69, 2
    v_xor_b32 v5, s29, v5
    """)
    for lb in range(4):
        k(f"v_xor_b32 v6, {lb}, v5\nv_lshl_add_u32 v{12+lb}, v6, 5, v1")
    k(f"""
    v_and_b32 v1, 15, v2                     ; m
    v_lshlrev_b32 v6, 4, v1
    s_lshl_b32 s29, s66, 11
    s_add_u32 s29, s29, {AP}
    v_add_u32 v4, s29, v6
    v_lshrrev_b32 v5, 3, v1
    v_lshl_add_u32 v5, v5, 7, v6
    s_lshl_b32 s29, s66, 7
    s_add_u32 s29, s29, {AP+96*16}
    v_add_u32 v5, s29, v5
    s_lshl_b32 s29, s69, 10
    s_add_u32 s29, s29, {FS}
    v_add_u32 v6, s29, v6
    v_add_u32 v1, s29, v7
    v_cmp_eq_u32 s[56:57], 0, v3
    s_lshl_b32 s70, s61, 1
    s_add_u32 s70, s70, s69
    s_mul_i32 s70, s70, 224
    s_mul_i32 s29, s62, 7
    s_add_u32 s70, s70, s29
    s_add_u32 s71, s70, 3
    s_lshl_b32 s29, s66, 2
    s_add_u32 s70, s70, s29
    s_lshl_b32 s70, s70, 10
    s_add_u32 s70, s70, {WS_HG}
    s_lshl_b32 s71, s71, 10
    s_lshl_b32 s29, s66, 9
    s_add_u32 s71, s71, s29
    s_add_u32 s71, s71, {WS_HG}
    v_lshlrev_b32 v3, 6, v2
    s_lshl_b32 s29, s2, 6
    s_add_u32 s29, s29, {WS_F2}
    {TSI+' s[82:83]' if STAMP and E_('B6S',0) else ''}
    s_waitcnt vmcnt(0)
    {TSI+' s[84:85]' if STAMP and E_('B6S',0) else ''}
    s_barrier        ; B6
    {TSI+' s[86:87]' if STAMP and E_('B6S',0) else ''}
    s_cmp_lg_u32 s3, 0
    s_cbranch_scc1 L_f2x
    """)
    flag(k,29,48)
    k("L_f2x:")
    if MSL: k(f"s_sleep {MSL}")
    for i in range(2*NM): wtload(k, MA, i)
    k("s_barrier        ; B7")
    ts(k,7)
    q=[]
    ZS=32; ZM=40
    FBB=E_("FBB",2)
    def rdA1(t,h=None):
        b=AW+4*(t%NA)
        if t>=119: return
        if h is None: rdA1(t,0); rdA1(t,1); return
        j=t//7; fb=t%7
        if j==16:
            if h: return
            if fb<6: k(f"ds_read_b128 v[{b}:{b+3}], v4 offset:{(fb>>1)*512+(fb&1)*256}")
            else: k(f"ds_read_b128 v[{b}:{b+3}], v5")
            q.append(("A",t)); return
        sl=j%NW
        va = (8 if fb<6 else 10) + (0 if sl<4 else 1)
        off=(sl%4)*WSL + ((fb&1)*UOFF + (fb>>1)*32 if fb<6 else 0)
        k(f"ds_read_b64_tr_b16 v[{b+2*h}:{b+2*h+1}], v{va} offset:{off+h*16*224}")
        q.append(("A",t))
    def rdB1(s,lb,h=None):
        b=BW[s&1]+4*lb
        if h is None: rdB1(s,lb,0); rdB1(s,lb,1); return
        if s==16:
            if h: return
            k(f"ds_read_b64 v[{b}:{b+1}], v6 offset:{lb*256}\nv_mov_b32 v{b+2}, 0\nv_mov_b32 v{b+3}, 0"); q.append(("B",s,lb)); return
        off=(s%NH)*HS
        k(f"ds_read_b64_tr_b16 v[{b+2*h}:{b+2*h+1}], v{12+lb} offset:{off+h*4096}")
        q.append(("B",s,lb))
    k("s_barrier        ; G0")
    if STAMP: k("s_memtime s[72:73]")
    ts(k,8)
    rdB1(0,0); rdA1(0)
    for lb in range(1,4): rdB1(0,lb)
    for t in range(1,NA): rdA1(t)
    waited=[-1]
    def need(tag):
        n=max(idx for idx,x in enumerate(q) if x==tag)
        if n>waited[0]:
            k(f"s_waitcnt lgkmcnt({len(q)-1-n})"); waited[0]=n
    for t in range(119):
        s=t//7; fb=t%7
        a=AW+4*(t%NA)
        for lb in range(4):
            if lb==0: need(("A",t))
            if fb==0:
                need(("B",s,lb))
                if s==16:
                    b=BW[0]+4*lb
                    k(f"v_cndmask_b32 v{b}, 0, v{b}, s[56:57]\nv_cndmask_b32 v{b+1}, 0, v{b+1}, s[56:57]")
            c=ACC+16*fb+4*lb; b=BW[s&1]+4*lb
            k(f"v_mfma_f32_16x16x32_bf16 v[{c}:{c+3}], v[{a}:{a+3}], v[{b}:{b+3}], {'0' if s==0 else f'v[{c}:{c+3}]'}")
            if s<16:
                if fb==FBB and lb==1 and s<15: k("s_barrier")
                if FBB<=fb<FBB+4 and lb in (1,2): rdB1(s+1,fb-FBB,lb-1)
            if s==16 and fb==1:
                k(f"ds_read_b64 v[{ZS+2*lb}:{ZS+2*lb+1}], v6 offset:{lb*256+8}"); q.append(("Z",0))
                if lb==3: k(f"ds_read_b64 v[{ZM}:{ZM+1}], v1 offset:8"); q.append(("Z",0))
            if lb==3: rdA1(t+NA,0)
            if lb==0 and t>0: rdA1(t-1+NA,1)
    ts(k,10,False)
    if STAMP: k("s_memtime s[74:75]")
    k(f"""
    v_add_u32 v6, {112*1024}, v7
    v_and_b32 v4, 31, v2
    v_lshlrev_b32 v4, 4, v4
    v_lshrrev_b32 v5, 5, v2
    v_mul_u32_u24 v5, {112*1024}, v5
    v_add_u32 v4, v4, v5
    s_waitcnt lgkmcnt(0)
    """)
    def glu(gs, us, zs, outs):
        for g,z in zip(gs,zs): k(f"v_pk_mul_f32 v[{g}:{g+1}], v[{g}:{g+1}], v[{z}:{z+1}] op_sel_hi:[1,0]")
        for g in gs: k(f"v_exp_f32 v{g}, v{g}\nv_exp_f32 v{g+1}, v{g+1}")
        for g,z in zip(gs,zs): k(f"v_pk_fma_f32 v[{g}:{g+1}], v[{g}:{g+1}], v[{z}:{z+1}], v[{z}:{z+1}] op_sel:[0,1,1] op_sel_hi:[1,1,1]")
        for g in gs: k(f"v_rcp_f32 v{g}, v{g}\nv_rcp_f32 v{g+1}, v{g+1}")
        for g,u in zip(gs,us): k(f"v_pk_mul_f32 v[{g}:{g+1}], v[{g}:{g+1}], v[{u}:{u+1}]")
        for g,o in zip(gs,outs): k(f"v_cvt_pk_bf16_f32 v{o}, v{g}, v{g+1}")
    n=0
    for i in range(3):
        for L in range(2):
            cg=ACC+32*i+8*L; cu=cg+16; o=AW+4*(n&3); n+=1
            glu([cg,cg+2,cg+4,cg+6],[cu,cu+2,cu+4,cu+6],[ZS+4*L,ZS+4*L,ZS+4*L+2,ZS+4*L+2],[o,o+1,o+2,o+3])
            k(f"v_permlane16_swap_b32 v{o}, v{o+2}\nv_permlane16_swap_b32 v{o+1}, v{o+3}")
            k(f"buffer_store_dwordx4 v[{o}:{o+3}], v{7-L}, s[4:7], s70 offen offset:{1024*i} sc1")
        if i==0:
            c=ACC+96
            for r in range(4): k(f"v_permlane32_swap_b32 v{c+r}, v{c+8+r}\nv_permlane32_swap_b32 v{c+4+r}, v{c+12+r}")
            for r in range(4): k(f"v_permlane16_swap_b32 v{c+r}, v{c+4+r}\nv_permlane16_swap_b32 v{c+8+r}, v{c+12+r}")
    c=ACC+96; o=AW+4*(n&3)
    glu([c,c+2,c+4,c+6],[c+8,c+10,c+12,c+14],[ZM]*4,[o,o+1,o+2,o+3])
    k(f"buffer_store_dwordx4 v[{o}:{o+3}], v4, s[4:7], s71 offen sc1")
    k(f"""
    s_setprio 0
    s_lshl_b32 s29, s61, 4
    s_add_u32 s29, s29, s62
    s_lshl_b32 s29, s29, 6
    s_add_u32 s29, s29, {WS_F3}
    s_lshl_b32 s23, s3, 14
    v_add_u32 v5, s23, v7
    v_and_b32 v3, 15, v2
    v_lshlrev_b32 v3, 6, v3
    s_waitcnt vmcnt(0)
    s_barrier        ; B8
    s_cmp_lg_u32 s3, 0
    s_cbranch_scc1 L_p3x
    """)
    flag(k,29,48)
    k(f"s_lshr_b32 s29, s63, 1\ns_lshl_b32 s29, s29, 10\ns_add_u32 s29, s29, {WS_F3}")
    poll(k,"L_p3",3,1,29,48,SL3)
    k("s_barrier        ; B9")
    ts(k,9,False)
    A2=48
    slots=[8+8*i for i in range(5)]+[112+8*i for i in range(5)]
    for s in range(NM):
        if s and s%4==0: k("s_add_u32 s68, s68, 4096")
        b=slots[s]
        k(f"buffer_load_dwordx4 v[{b}:{b+3}], v7, s[4:7], s68 offen offset:{1024*(s&3)} sc1")
        k(f"buffer_load_dwordx4 v[{b+4}:{b+7}], v6, s[4:7], s68 offen offset:{1024*(s&3)} sc1")
    for s in range(NM):
        for lb in range(2):
            k(f"s_waitcnt vmcnt({2*(NM-1-s)+1-lb})")
            for db in range(2):
                c=A2+16*(db+2*lb); a=MA+8*s+4*db; b=slots[s]+4*lb
                k(f"v_mfma_f32_32x32x16_bf16 v[{c}:{c+15}], v[{a}:{a+3}], v[{b}:{b+3}], {'0' if s==0 else f'v[{c}:{c+15}]'}")
    for j in range(16):
        k(f"ds_write_b128 v5, v[{A2+4*j}:{A2+4*j+3}] offset:{G2M+j*1024}")
    k(f"""
    s_waitcnt lgkmcnt(0)
    s_barrier        ; B10
    s_or_b32 s23, s2, s3
    s_cmp_lg_u32 s23, 0
    s_cbranch_scc1 L_mend
    s_mov_b32 s29, {WS_TAG:#x}
    """)
    flag(k,29,48)
    k("L_mend:")
    flush(k,[1,2,3,4,5,6,7,8,10,9],0,0)
    k("s_endpgm")

def gen_help(k):
    VH=100; VW=102
    CS=72; WJ=88
    k(f"""
    L_help:
    v_lshrrev_b32 v12, 3, v2
    v_and_b32 v13, 7, v2
    v_lshlrev_b32 v14, 4, v13
    v_lshl_add_u32 v14, v12, 10, v14
    v_add_u32 v15, {8192-1024}, v14
    s_lshr_b32 s29, s2, 1                    ; kf
    s_and_b32 s30, s2, 1
    s_lshl_b32 s30, s30, 2
    s_add_u32 s30, s30, s65
    s_lshl_b32 s31, s29, 14
    s_lshl_b32 s52, s30, 7
    s_add_u32 s31, s31, s52
    s_lshl_b32 s52, s65, 11
    s_add_u32 s52, s52, {WDS}
    s_mov_b32 m0, s52
    s_mul_i32 s53, s30, 112
    s_add_u32 s53, s53, s29
    s_lshl_b32 s53, s53, 11
    s_add_u32 s53, s53, {WS_WT}
    s_mov_b32 s10, {1792*512*2:#x}
    s_mov_b32 s11, 0x20000
    s_waitcnt lgkmcnt(0)
    s_mov_b32 s8, s16
    s_mov_b32 s9, s17
    s_mov_b32 s4, s20
    s_mov_b32 s5, s21
    s_cmp_ge_u32 s2, 224
    s_cbranch_scc1 L_h0
    buffer_load_dwordx4 v14, s[8:11], s31 offen lds
    buffer_load_dwordx4 v15, s[8:11], s31 offen offset:1024 lds
    L_h0:
    global_load_ushort v8, v4, s[38:39]
    global_load_ushort v9, v4, s[40:41]
    global_load_ushort v10, v4, s[42:43]
    global_load_ushort v11, v4, s[44:45]
    buffer_load_dword v16, v5, s[4:7], s23 offen sc1
    s_load_dword s27, s[46:47], s22
    s_load_dword s28, s[48:49], s22
    s_getpc_b64 s[54:55]
    L_pc:
    s_add_u32 s54, s54, L_begin-L_pc
    s_addc_u32 s55, s55, -1
    s_lshr_b32 s29, s2, 3
    s_lshl_b32 s29, s29, 2
    s_add_u32 s29, s29, s65
    s_lshl_b32 s29, s29, 9
    v_and_b32 v17, 7, v2
    v_lshl_add_u32 v17, v17, 6, s29
    v_min_u32 v17, L_stop-L_begin-4, v17
    global_load_dword v17, v17, s[54:55]
    """)
    common_addr(k)
    k(f"""
    v_lshrrev_b32 v18, 5, v2
    v_bfe_u32 v19, v2, 2, 2
    v_lshl_add_u32 v18, v18, 3, v19
    v_lshlrev_b32 v18, 7, v18
    v_and_b32 v19, 1, v2
    v_lshl_add_u32 v18, v19, 5, v18
    v_bfe_u32 v19, v2, 4, 1
    v_lshl_add_u32 v18, v19, 4, v18
    v_bfe_u32 v19, v2, 1, 1
    v_lshl_add_u32 v18, v19, 3, v18
    v_add_u32 v18, s52, v18
    s_barrier        ; B1
    s_cmp_ge_u32 s2, 224
    s_cbranch_scc1 L_h1
    s_waitcnt vmcnt(6)
    """)
    for db in range(2):
        k(f"ds_read_b64_tr_b16 v[{WJ+4*db}:{WJ+4*db+1}], v18 offset:{64*db}\nds_read_b64_tr_b16 v[{WJ+4*db+2}:{WJ+4*db+3}], v18 offset:{64*db+512}")
    k(f"""
    s_waitcnt lgkmcnt(0)
    buffer_store_dwordx4 v[{WJ}:{WJ+3}], v7, s[4:7], s53 offen sc1
    buffer_store_dwordx4 v[{WJ+4}:{WJ+7}], v7, s[4:7], s53 offen offset:1024 sc1
    s_waitcnt vmcnt(3)
    s_branch L_h2
    L_h1:
    s_waitcnt vmcnt(1) lgkmcnt(0)
    L_h2:
    v_readfirstlane_b32 s60, v16
    """)
    ts(k,1,False)
    kparams(k)
    k("s_mul_i32 s60, s60, 1664525\ns_add_u32 s60, s60, 1013904223")
    Z1=36; Z8=38; V=40; Z2=42; Z4=44; T=46; E=48; X0=50; X1=52; CC=54; C=56
    k("v_sub_f32 v9, 0, v9")
    direct(k, Z1, 8, 9, 1, T)
    direct(k, Z8, 8, 9, 8, T)
    direct(k, V, 8, 9, 256, T)
    k(f"""
    v_add_f32 v34, v34, v34
    v_lshlrev_b32 v10, 16, v10
    v_lshlrev_b32 v11, 16, v11
    v_mul_f32 v{CC}, v10, v34
    v_mul_f32 v{CC+1}, -v11, v34
    """)
    cnt=[0]
    def put(src, rows):
        c=C+(cnt[0]&3); cnt[0]+=1
        k(f"v_cvt_pk_bf16_f32 v{c}, v{src}, v{src+1}")
        for (r,h) in rows: k(f"ds_write_b32 v30, v{c} offset:{TROW*rho(r,h)}")
    put(CC,[(0,0)])
    cmul(k,Z2,Z1,Z1,T)
    cur=CC
    for r in range(1,8):
        nxt = X0 if cur!=X0 else X1
        cmul(k,nxt,cur,Z1,T); put(nxt,[(r,0)]); cur=nxt
    cmul(k,Z4,Z2,Z2,T)
    cmul(k,E,CC,V,T); put(E,[(0,1),(1,1)])
    cur=E
    for rows in ([(2,1)],[(3,1),(4,1),(5,1)],[(6,1)],[(7,1)]):
        nxt = X0 if cur!=X0 else X1
        cmul(k,nxt,cur,Z2,T); put(nxt,rows); cur=nxt
    ecur=E
    for h in (0,1):
        en = CC if ecur==E else E
        cmul(k,en,ecur,V,T); put(en,[(8,h)]); ecur=en
        cmul(k,X0,ecur,Z4,T); put(X0,[(9,h)])
        cmul(k,X1,X0,Z4,T); put(X1,[(10,h)])
    for (r,h) in ((11,0),(11,1),(13,0),(13,1)):
        en = CC if ecur==E else E
        cmul(k,en,ecur,V,T); put(en,[(r,h)]); ecur=en
        cmul(k,X0,ecur,Z8,T); put(X0,[(r+1,h)])
    k(f"""
    s_lshr_b32 s52, s2, 3
    s_min_u32 s53, s52, 27
    s_and_b32 s29, s2, 1
    s_mul_i32 s29, s29, 28
    s_add_u32 s29, s29, s53                  ; t
    s_mul_i32 s30, s29, 4682
    s_lshr_b32 s30, s30, 16                  ; kchunk
    s_mul_i32 s31, s30, 14
    s_sub_u32 s29, s29, s31
    s_cmp_ge_u32 s29, 7
    s_cselect_b32 s8, s14, s12
    s_cselect_b32 s9, s15, s13
    s_cselect_b32 s31, 7, 0
    s_cselect_b32 s53, {1792*4}, 0
    s_sub_u32 s29, s29, s31
    s_bfe_u32 s31, s2, 0x20001
    s_mul_i32 s31, s31, 7
    s_add_u32 s29, s29, s31                  ; cb
    s_lshl_b32 s30, s30, 2
    s_add_u32 s30, s30, s65
    s_mul_i32 s31, s30, {32*3584}
    s_lshl_b32 s54, s29, 7
    s_add_u32 s31, s31, s54                  ; W soffset
    s_mul_i32 s30, s30, {3584*4}
    s_lshl_b32 s29, s29, 8
    s_add_u32 s30, s30, s29
    s_add_u32 s53, s53, s30
    s_add_u32 s53, s53, {WS_CS}
    v_mul_u32_u24 v12, 3584, v12
    v_lshl_add_u32 v12, v13, 4, v12
    v_lshrrev_b32 v14, 4, v2
    v_lshlrev_b32 v14, 3, v14
    v_lshl_add_u32 v13, v13, 5, v14
    s_lshl_b32 s29, s2, 6
    s_add_u32 s29, s29, {WS_F1}
    s_waitcnt vmcnt(0) lgkmcnt(0)
    s_barrier        ; B2
    s_cmp_lg_u32 s3, 4
    s_cbranch_scc1 L_h3
    """)
    flag(k,29,20)
    k("L_h3:")
    ts(k,2,False)
    for i in range(4):
        k(f"buffer_load_dwordx4 v[{CS+4*i}:{CS+4*i+3}], v12, s[8:11], s31 offen")
        if i<3: k(f"s_add_u32 s31, s31, {8*3584}")
    if E_("WARM",1):
        k(f"s_mov_b32 s29, {8*114688-24*3584:#x}\ns_bitcmp1_b32 s2, 0\ns_cselect_b32 s29, {(-8*114688-24*3584)&0xffffffff:#x}, s29\ns_add_u32 s31, s31, s29")
        for i in range(4):
            k(f"buffer_load_dwordx4 v[{40+4*i}:{43+4*i}], v12, s[8:11], s31 offen")
            if i<3: k(f"s_add_u32 s31, s31, {8*3584}")
    k(f"""
    v_lshrrev_b32 v3, 4, v2
    v_and_b32 v4, 15, v2
    v_lshlrev_b32 v5, 1, v3
    v_xor_b32 v4, v4, v5
    v_lshlrev_b32 v4, 4, v4
    v_lshl_add_u32 v4, v3, 12, v4
    s_lshl_b32 s29, s65, 15
    v_add_u32 v{VH}, s29, v4
    v_xor_b32 v4, 128, v{VH}
    v_add_u32 v{VH+1}, {16384-1024}, v4
    s_lshl_b32 s70, s61, 8
    s_add_u32 s70, s70, {WS_HT}              ; H soffset
    s_mul_i32 s71, s62, 224
    s_mul_i32 s29, s66, 114688
    s_add_u32 s71, s71, s29
    s_lshl_b32 s72, s65, 11
    s_add_u32 s72, s72, {HB}                 ; H lds
    s_and_b32 s29, s65, 1
    s_mul_i32 s73, s29, {UOFF}
    s_mul_i32 s30, s66, {WSL}
    s_add_u32 s73, s73, s30
    s_add_u32 s73, s73, {WB}                 ; W lds
    s_cmp_eq_u32 s29, 0
    s_cselect_b32 s36, s12, s14
    s_cselect_b32 s37, s13, s15
    s_mov_b32 s38, {512*1792*2:#x}
    s_mov_b32 s39, 0x20000
    """)
    for i in range(7):
        k(f"""
        v_add_u32 v6, {64*i}, v2
        v_mul_u32_u24 v5, 4682, v6
        v_lshrrev_b32 v5, 16, v5
        v_mul_u32_u24 v4, 14, v5
        v_sub_u32 v6, v6, v4
        v_mul_u32_u24 v5, 3584, v5
        v_lshl_add_u32 v{VW+i}, v6, 4, v5
        """)
        if i&3: k(f"v_subrev_u32 v{VW+i}, {1024*(i&3)}, v{VW+i}")
    q=[]
    def issueH(j):
        if j>15: return
        k(f"s_add_u32 m0, s72, {(j%NH)*HS}\ns_add_u32 s31, s70, {j*131072}")
        k(f"buffer_load_dwordx4 v{VH}, s[4:7], s31 offen sc1 lds\nbuffer_load_dwordx4 v{VH+1}, s[4:7], s31 offen offset:1024 sc1 lds")
        q.extend([("H",j)]*2)
    def issueW(j):
        if j>15: return
        k(f"s_add_u32 m0, s73, {(j%NW)*WSL}\ns_add_u32 s31, s71, {j*114688}")
        for i in range(7):
            if i==4: k(f"s_add_u32 m0, s73, {(j%NW)*WSL+4096}")
            k(f"buffer_load_dwordx4 v{VW+i}, s[36:39], s31 offen offset:{1024*(i&3)} lds")
        q.extend([("W",j)]*7)
    wt=[0]
    def issueT(n):
        for _ in range(n):
            if wt[0]<2*NHS:
                wtload(k, HA, wt[0]); q.append(("T",wt[0])); wt[0]+=1
    k("s_barrier        ; B3")
    ts(k,4,False)
    eloads(k)
    uprep(k, 0)
    ts(k,5,False)
    for i in range(4):
        for j in range(4):
            if i==0: k(f"v_lshlrev_b32 v{24+2*j}, 16, v{CS+j}\nv_and_b32 v{25+2*j}, 0xffff0000, v{CS+j}")
            else:
                k(f"v_lshlrev_b32 v32, 16, v{CS+4*i+j}\nv_and_b32 v33, 0xffff0000, v{CS+4*i+j}")
                k(f"v_add_f32 v{24+2*j}, v{24+2*j}, v32\nv_add_f32 v{25+2*j}, v{25+2*j}, v33")
    for i in range(4): k(f"v_permlane32_swap_b32 v{24+i}, v{28+i}")
    for i in range(4): k(f"v_add_f32 v{24+i}, v{24+i}, v{28+i}")
    for i in range(2): k(f"v_permlane16_swap_b32 v{24+i}, v{26+i}")
    for i in range(2): k(f"v_add_f32 v{24+i}, v{24+i}, v{26+i}")
    for i in range(2): k(f"v_add_f32_dpp v{24+i}, v{24+i}, v{24+i} row_ror:8 row_mask:0xf bank_mask:0xf")
    k(f"""
    s_cmp_ge_u32 s52, 28
    s_cbranch_scc1 L_h4
    s_mov_b32 exec_lo, 0x00ff00ff
    s_mov_b32 exec_hi, 0x00ff00ff
    buffer_store_dwordx2 v[24:25], v13, s[4:7], s53 offen sc1
    s_mov_b64 exec, -1
    L_h4:
    """)
    issueW(0); issueW(2); issueT(N1)
    k(f"""
    v_and_b32 v3, 255, v0
    v_lshrrev_b32 v4, 5, v3
    v_lshlrev_b32 v4, 4, v4
    v_and_b32 v5, 15, v3
    v_add_u32 v4, v4, v5
    v_bfe_u32 v5, v3, 4, 1
    v_mul_u32_u24 v5, 1792, v5
    v_add_u32 v4, v4, v5
    v_lshlrev_b32 v4, 2, v4
    v_cmp_gt_u32 vcc, 224, v3
    v_mov_b32 v5, 0x7fffff00
    v_cndmask_b32 v4, v5, v4, vcc
    s_mul_i32 s53, s62, 448
    s_add_u32 s53, s53, {WS_CS}
    v_lshlrev_b32 v3, 4, v3
    v_add_u32 v3, {AP}, v3
    v_lshrrev_b32 v5, 4, v2                  ; row
    v_and_b32 v15, 15, v2
    v_lshlrev_b32 v12, 6, v15
    v_lshlrev_b32 v13, 4, v15
    v_lshl_add_u32 v6, v5, 12, v13
    s_lshl_b32 s29, s65, 8
    s_add_u32 s29, s29, {PART}
    v_add_u32 v13, s29, v13
    v_lshlrev_b32 v15, 5, v15
    v_and_b32 v1, 1, v5
    v_lshl_add_u32 v15, v1, 4, v15
    v_lshrrev_b32 v1, 1, v5
    v_lshl_add_u32 v15, v1, 9, v15
    s_lshl_b32 s29, s65, 10
    s_add_u32 s29, s29, {PART}
    v_add_u32 v15, s29, v15
    v_and_b32 v1, 7, v2
    v_lshlrev_b32 v14, 4, v1
    v_lshl_add_u32 v14, v5, 10, v14
    v_bfe_u32 v8, v2, 3, 1
    v_lshl_add_u32 v14, v8, 9, v14
    v_lshl_add_u32 v1, v1, 2, v5
    v_lshlrev_b32 v1, 4, v1
    s_lshl_b32 s29, s65, 9
    s_add_u32 s29, s29, {FS}
    v_add_u32 v1, s29, v1
    s_lshl_b32 s54, s62, 17
    s_lshl_b32 s29, s65, 15
    s_add_u32 s54, s54, s29
    s_add_u32 s54, s54, s70
    s_lshl_b32 s29, s61, 4
    s_add_u32 s29, s29, s62
    s_lshl_b32 s56, s29, 6
    s_add_u32 s56, s56, {WS_F4}              ; own F4
    s_lshl_b32 s55, s29, 10
    s_lshl_b32 s29, s65, 8
    s_add_u32 s55, s55, s29
    s_add_u32 s55, s55, {WS_SP}
    s_lshl_b32 s57, s61, 10
    s_add_u32 s57, s57, {WS_F4}              ; F4 row
    s_lshl_b32 s58, s61, 14
    s_lshl_b32 s29, s65, 7
    s_add_u32 s58, s58, s29
    s_add_u32 s58, s58, {WS_SP}
    v_lshlrev_b32 v5, 6, v2
    s_mov_b32 s29, {WS_F2:#x}
    """)
    k(f"s_waitcnt vmcnt({len(q)})\ns_barrier        ; B6")
    issueW(4)
    issueT(N3)
    k("s_cmp_lg_u32 s3, 4\ns_cbranch_scc1 L_p2x")
    poll(k,"L_p2",5,4,29,48,SL2)
    k("s_barrier        ; B7")
    ts(k,7,False)
    S=24; Q=32; RB=[40,44]; T=52
    SH=E_("SH",2)
    for j in range(SH): issueH(j)
    k(f"buffer_load_dwordx4 v[40:43], v6, s[4:7], s54 offen sc1\ns_add_u32 s54, s54, 16384\nbuffer_load_dwordx4 v[44:47], v6, s[4:7], s54 offen sc1")
    q.extend([("S",0),("S",1)])
    for j in range(SH,8): issueH(j)
    for p in range(16):
        k(f"buffer_load_dword v{CS+p}, v4, s[4:7], s53 offen sc1"); q.append(("C",p))
        if p<15: k(f"s_add_u32 s53, s53, {3584*4}")
    def vwait(f):
        n=max(idx for idx,x in enumerate(q) if f(x))
        k(f"s_waitcnt vmcnt({min(63,len(q)-1-n)})")
    def smath(r):
        vwait(lambda x: x==("S",r))
        for d in range(4):
            src=RB[r]+d
            if r==0:
                k(f"v_lshlrev_b32 v{S+2*d}, 16, v{src}\nv_and_b32 v{S+2*d+1}, 0xffff0000, v{src}")
                k(f"v_mul_f32 v{Q+2*d}, v{S+2*d}, v{S+2*d}\nv_mul_f32 v{Q+2*d+1}, v{S+2*d+1}, v{S+2*d+1}")
            else:
                t=T+2*(d&1)
                k(f"v_lshlrev_b32 v{t}, 16, v{src}\nv_and_b32 v{t+1}, 0xffff0000, v{src}")
                k(f"v_add_f32 v{S+2*d}, v{S+2*d}, v{t}\nv_add_f32 v{S+2*d+1}, v{S+2*d+1}, v{t+1}")
                k(f"v_fmac_f32 v{Q+2*d}, v{t}, v{t}\nv_fmac_f32 v{Q+2*d+1}, v{t+1}, v{t+1}")
    def sred():
        for i in range(8): k(f"v_permlane32_swap_b32 v{S+i}, v{Q+i}")
        for i in range(8): k(f"v_add_f32 v{S+i}, v{S+i}, v{Q+i}")
        for i in range(4): k(f"v_permlane16_swap_b32 v{S+i}, v{S+4+i}")
        for i in range(4): k(f"v_add_f32 v{S+i}, v{S+i}, v{S+4+i}")
        k(f"ds_write_b128 v15, v[{S}:{S+3}]\ns_waitcnt lgkmcnt(0)")
    if J0<0: smath(0)
    if J1<0: smath(1)
    if J2<0: sred()
    rest=2*NHS-wt[0]
    HJ=[int(x) for x in os.environ.get("HJ","").split(",") if x]
    for j in range(16):
        vwait(lambda x: (x[0]=="W" and x[1]<=j) or (x[0]=="H" and x[1]<=j) or (x[0]=="C" and j>=JC) or (x[0]=="P" and j>=JF) or (x[0]=="F" and j>=JQ) or (x[0]=="G" and j>=JR))
        k("s_barrier")
        if STAMP and j in HJ: ts(k,[1,2,4,5,7][HJ.index(j)],False)
        if j==JF:
            flag(k,56,48); q.append(("f",0))
        if j==JQ:
            k(f"v_xor_b32 v48, s60, v50\nv_cmp_ne_u32 vcc, 0, v48\ns_cbranch_vccz L_p4x")
            poll(k,"L_p4",12,1,57,48,0)
            for i in range(4):
                k(f"buffer_load_dwordx4 v[{24+4*i}:{27+4*i}], v14, s[4:7], s58 offen sc1"); q.append(("G",i))
                if i<3: k("s_add_u32 s58, s58, 4096")
        if j==JP:
            k("buffer_load_dword v50, v12, s[4:7], s57 offen sc1"); q.append(("F",0))
        if j>=2 and not E_('NOH',0): issueH(j+NH-2)
        if j>=3 and j&1 and not E_('NOW',0): issueW(j+3)
        if j>=1: issueT((rest*j)//13-(rest*(j-1))//13)
        if j==J0: smath(0)
        if j==J1: smath(1)
        if j==J2: sred()
        if j==J2+1:
            for p in range(4): k(f"ds_read_b128 v[{24+4*p}:{27+4*p}], v13 offset:{1024*p}")
            k("s_waitcnt lgkmcnt(2)")
            for i in range(4): k(f"v_add_f32 v{24+i}, v{24+i}, v{28+i}")
            k("s_waitcnt lgkmcnt(0)")
            for i in range(4): k(f"v_add_f32 v{32+i}, v{32+i}, v{36+i}")
            for i in range(4): k(f"v_add_f32 v{40+i}, v{24+i}, v{32+i}")
            k("s_mov_b64 exec, 0xffff\nbuffer_store_dwordx4 v[40:43], v7, s[4:7], s55 offen sc1\ns_mov_b64 exec, -1"); q.append(("P",0))
        if j==JC:
            for st in (8,4,2,1):
                for p in range(st): k(f"v_add_f32 v{CS+p}, v{CS+p}, v{CS+p+st}")
            k(f"""
            v_cvt_pk_bf16_f32 v9, v{CS}, v{CS}
            v_and_b32 v9, 0xffff0000, v9
            v_sub_f32 v8, v{CS}, v9
            v_cvt_pk_bf16_f32 v10, v8, v8
            v_and_b32 v10, 0xffff0000, v10
            v_sub_f32 v8, v8, v10
            v_cvt_pk_bf16_f32 v16, v9, v10
            v_cvt_pk_bf16_f32 v17, v8, 0
            v_mov_b32 v18, 0
            v_mov_b32 v19, 0
            ds_write_b128 v3, v[16:19]
            s_waitcnt lgkmcnt(0)
            """)
        if j==JR:
            for i in range(8): k(f"v_add_f32 v{24+i}, v{24+i}, v{32+i}")
            for i in range(4): k(f"v_add_f32 v{24+i}, v{24+i}, v{28+i}")
            k(f"""
            v_permlane32_swap_b32 v24, v26
            v_permlane32_swap_b32 v25, v27
            v_add_f32 v24, v24, v26
            v_add_f32 v25, v25, v27
            v_permlane16_swap_b32 v24, v25
            v_add_f32 v40, v24, v25
            v_mov_b32_dpp v41, v40 row_ror:8 row_mask:0xf bank_mask:0xf
            v_mul_f32 v40, 0x3b000000, v40
            v_mul_f32 v41, 0x3b000000, v41
            v_fma_f32 v41, -v40, v40, v41
            v_max_f32 v41, 0, v41
            v_cvt_pk_bf16_f32 v41, v41, v41
            v_and_b32 v41, 0xffff0000, v41
            v_add_f32 v41, 0x3727c5ac, v41
            v_cvt_pk_bf16_f32 v41, v41, v41
            v_and_b32 v41, 0xffff0000, v41
            v_sqrt_f32 v41, v41
            v_cvt_pk_bf16_f32 v44, -v40, -v40
            v_cvt_pk_bf16_f32 v41, v41, v41
            v_and_b32 v47, 0xffff0000, v41
            v_rcp_f32 v46, v47
            v_mov_b32 v45, v44
            v_mul_f32 v46, 0xbfb8aa3b, v46
            s_mov_b32 exec_lo, 0x00ff00ff
            s_mov_b32 exec_hi, 0x00ff00ff
            ds_write_b128 v1, v[44:47]
            s_mov_b64 exec, -1
            s_waitcnt lgkmcnt(0)
            """)
    assert wt[0]==2*NHS
    ts(k,8,False)
    k(f"""
    v_add_u32 v6, {112*1024}, v7
    v_lshrrev_b32 v3, 2, v2
    v_lshlrev_b32 v3, 12, v3
    v_and_b32 v4, 3, v2
    v_lshl_add_u32 v3, v4, 4, v3
    v_add_u32 v4, {65536-1024}, v3
    s_and_b32 s29, s65, 1
    s_lshl_b32 s30, s64, 1
    s_add_u32 s29, s29, s30          ; d block32
    s_lshl_b32 s30, s63, 1
    s_add_u32 s30, s30, s66          ; l block32
    s_lshl_b32 s52, s29, 17
    s_lshl_b32 s53, s30, 6
    s_add_u32 s52, s52, s53
    s_add_u32 s52, s52, {WS_HT}      ; h soffset
    s_lshl_b32 s74, s30, 15
    s_lshl_b32 s53, s29, 6
    s_add_u32 s74, s74, s53
    s_lshl_b32 s53, s65, 11
    s_add_u32 s53, s53, {G2R}
    s_mov_b32 s8, s18
    s_mov_b32 s9, s19
    s_mov_b32 s10, {2048*512*2:#x}
    s_barrier        ; B8
    {TSI+' s[92:93]' if STAMP else ''}
    s_mov_b32 m0, s53
    s_nop 0
    buffer_load_dwordx4 v3, s[4:7], s52 offen sc1 lds
    buffer_load_dwordx4 v4, s[4:7], s52 offen offset:1024 sc1 lds
    v_lshrrev_b32 v3, 5, v2
    v_bfe_u32 v4, v2, 2, 2
    v_lshl_add_u32 v4, v3, 4, v4
    v_lshlrev_b32 v4, 6, v4
    v_bfe_u32 v5, v2, 4, 1
    v_lshl_add_u32 v4, v5, 5, v4
    v_and_b32 v5, 3, v2
    v_lshl_add_u32 v4, v5, 3, v4
    v_add_u32 v4, s53, v4
    v_and_b32 v5, 31, v2
    v_lshlrev_b32 v5, 10, v5
    v_lshl_add_u32 v5, v3, 5, v5
    s_lshl_b32 s29, s65, 14
    s_add_u32 s29, s29, {G2H}
    v_add_u32 v3, s29, v7
    s_lshl_b32 s29, s65, 12
    v_add_u32 v1, s29, v7
    s_barrier        ; B9
    """)
    ts(k,9,False)
    A2=48
    free=[8+8*i for i in range(5)]
    slot={}; q=[]
    nxt=[0]
    def ldB():
        s=nxt[0]
        if s>=NHS or not free: return False
        if s and s%4==0: k("s_add_u32 s68, s68, 4096")
        b=free.pop(0); slot[s]=b
        k(f"buffer_load_dwordx4 v[{b}:{b+3}], v7, s[4:7], s68 offen offset:{1024*(s&3)} sc1")
        k(f"buffer_load_dwordx4 v[{b+4}:{b+7}], v6, s[4:7], s68 offen offset:{1024*(s&3)} sc1")
        q.extend([(s,0),(s,1)]); nxt[0]+=1
        return True
    while ldB(): pass
    for s in range(NHS):
        for lb in range(2):
            k(f"s_waitcnt vmcnt({len(q)-1-q.index((s,lb))})")
            for db in range(2):
                c=A2+16*(db+2*lb); a=HA+8*s+4*db; b=slot[s]+4*lb
                k(f"v_mfma_f32_32x32x16_bf16 v[{c}:{c+15}], v[{a}:{a+3}], v[{b}:{b+3}], {'0' if s==0 else f'v[{c}:{c+15}]'}")
        if s>=1:
            free.append(slot[s-1]); free.append(HA+8*(s-1))
        ldB(); ldB()
    for w in range(4):
        if w<3: k(f"s_cmp_lg_u32 s65, {w}\ns_cbranch_scc1 L4_w{w}")
        for qd in range(4):
            if qd==w: continue
            for j in range(4):
                k(f"ds_write_b128 v3, v[{A2+16*qd+4*j}:{A2+16*qd+4*j+3}] offset:{qd*4096+j*1024}")
        if w:
            for j in range(16): k(f"v_mov_b32 v{A2+j}, v{A2+16*w+j}")
        if w<3: k(f"s_branch L4_red\nL4_w{w}:")
    k("L4_red:")
    HT=8; HF=16; P=112
    for j in range(4): k(f"ds_read_b64_tr_b16 v[{HT+2*j}:{HT+1+2*j}], v4 offset:{j*256}")
    k("s_waitcnt lgkmcnt(0)\ns_barrier        ; B10")
    for p in range(4):
        for j in range(4): k(f"ds_read_b128 v[{P+16*p+4*j}:{P+3+16*p+4*j}], v1 offset:{G2M+p*16384+j*1024}")
    for j in range(8):
        k(f"v_and_b32 v{HF+1+2*j}, 0xffff0000, v{HT+j}\nv_lshlrev_b32 v{HF+2*j}, 16, v{HT+j}")
    def addp(p):
        for j in range(8): k(f"v_pk_add_f32 v[{A2+2*j}:{A2+2*j+1}], v[{A2+2*j}:{A2+2*j+1}], v[{P+16*p+2*j}:{P+1+16*p+2*j}]")
    for p in range(1,4):
        k(f"s_add_u32 s29, s65, {p}\ns_and_b32 s29, s29, 3\ns_lshl_b32 s29, s29, 14\ns_add_u32 s29, s29, {G2H}\nv_add_u32 v3, s29, v1")
        k(f"s_waitcnt lgkmcnt(12)");
        for j in range(4): k(f"ds_read_b128 v[{P+16*(p+3)+4*j}:{P+3+16*(p+3)+4*j}], v3 offset:{j*1024}")
        addp(p-1)
    for p in range(3,7):
        k(f"s_waitcnt lgkmcnt({4*(6-p)})"); addp(p)
    for j in range(8): k(f"v_cvt_pk_bf16_f32 v{64+j}, v{A2+2*j}, v{A2+2*j+1}")
    for j in range(8): k(f"v_lshlrev_b32 v{A2+2*j}, 16, v{64+j}\nv_and_b32 v{A2+2*j+1}, 0xffff0000, v{64+j}")
    for j in range(8): k(f"v_pk_add_f32 v[{A2+2*j}:{A2+2*j+1}], v[{A2+2*j}:{A2+2*j+1}], v[{HF+2*j}:{HF+1+2*j}]")
    for j in range(8): k(f"v_cvt_pk_bf16_f32 v{64+j}, v{A2+2*j}, v{A2+2*j+1}")
    for jj in range(2):
        k(f"buffer_store_dwordx4 v[{64+4*jj}:{67+4*jj}], v5, s[8:11], s74 offen offset:{16*jj} {os.environ.get('OUTM','')}")
    ts(k,3,False)
    flush(k,[1,8,6,3],10,4)

if __name__=="__main__":
    out = sys.argv[1] if len(sys.argv)>1 else "m.s"
    finish(out, [gen_m()])
```

```python
import sys, os
sys.path.insert(0,'gen')
from common import *
from k2 import cmul, direct, rho, LOG2E, INV2PI
E_=lambda n,d: int(os.environ.get(n,str(d)),0)
WS_WT=0x1000000
WS_F1=0x1400000; WS_F2=0x1410000; WS_F3=0x1420000; WS_TAG=0x1430000; WS_F4=0x1440000; WS_SP=0x1450000
WSL=14464; UOFF=7184; NW=E_("NW",7); WB=0
TB=0; TA=33792; TBL=16896; TROW=528
UC=72320; UCC=4640; UCH=4*UCC
KC=109440; KCC=4224
XT=126336; T1=XT+8192; RED=142720
LNB=XT; ROWS=2112; WDS=143360
NH=E_("NH",8 if NW==6 else 6); HS=8192; HB=NW*WSL
MISC=HB+NH*HS; PART=MISC; FS=MISC+4096; AP=MISC+6144
G2M=0; G2H=65536; G2R=131072
PF=160768
LDS=163840
CUM=[2,4,6,8,10,13,15,18,20,23,25,28,30,32,32,32]
def hb(j): return max(j,(CUM[j]-1)>>1)
NM=10; NHS=18
MA=176; HA=112
N1=E_("N1",36); N3=E_("N3",0)
J0=E_("J0",2); J1=E_("J1",2); J2=E_("J2",3); JF=E_("JF",7); JP=E_("JP",10); JQ=E_("JQ",12); JR=E_("JR",14); JC=E_("JC",13)
SL1=E_("SL1",0); SL2=E_("SL2",8); SL3=E_("SL3",8); SLP=E_("SLP",2)
LIMIT=4000
ROT1=E_('ROT1',0); ROT2=E_('ROT2',0); SP1=E_('SP1',6); SP2=E_('SP2',6)
TSI='s_memtime' if E_('CY',0) else 's_memrealtime'
def ts(k,i,drain=True):
    if not STAMP: return
    k(f"{TSI} s[{80+2*i}:{81+2*i}]")
    if drain: k("s_waitcnt lgkmcnt(0)")
def flush(k, idxs, base, wave):
    if STAMP==3:
        DI=E_("DI",0); DWV=E_("DWV",0); DW=E_("DBGWG",-1)
        if DWV!=wave: return
        if DW>=0: k(f"s_cmp_lg_u32 s2, {DW}\ns_cbranch_scc1 L_df{wave}")
        k(f"""s_cmp_lg_u32 s3, {wave}
        s_cbranch_scc1 L_df{wave}
        s_waitcnt lgkmcnt(0)
        s_add_u32 s29, s{80+2*DI}, 6000
        s_mov_b32 s23, 0
        L_dl{wave}:
        s_memrealtime s[30:31]
        s_add_u32 s23, s23, 1
        s_waitcnt lgkmcnt(0)
        s_sub_u32 s30, s30, s29
        s_cmp_gt_u32 s23, 200000
        s_cbranch_scc1 L_df{wave}
        s_cmp_lt_i32 s30, 0
        s_cbranch_scc1 L_dl{wave}
        L_df{wave}:""")
        return
    if STAMP!=2:
        stamp_flush(k,0,11,20,3,vt=8)
        if STAMP and wave==0: k("s_sub_u32 s29, s74, s72\nv_mov_b32 v8, s29\nbuffer_store_dword v8, v9, s[76:79], 0 offen offset:44")
        return
    DW=E_("DBGWG",0)
    k(f"s_cmp_lg_u32 s2, {DW}\ns_cbranch_scc1 L_df{wave}\ns_cmp_lg_u32 s3, {wave}\ns_cbranch_scc1 L_df{wave}")
    k("s_load_dwordx2 s[76:77], s[0:1], 96\ns_mov_b32 s78, 256\ns_mov_b32 s79, 0x20000\nv_mov_b32 v9, 0\ns_waitcnt lgkmcnt(0)")
    for n,i in enumerate(idxs):
        k(f"s_sub_u32 s29, s{80+2*i}, s80\nv_mov_b32 v8, s29\nbuffer_store_dword v8, v9, s[76:79], 0 offen offset:{4*(base+n)}")
    k(f"L_df{wave}:")
def poll(k, lab, voff, n, soff, t, first, sp=6):
    if first: k(f"s_sleep {first}")
    k(f"s_mov_b32 s31, 0\n{lab}:")
    if sp==2 and n==4: k(f"buffer_load_dwordx4 v[{t}:{t+3}], v7, s[4:7], s{soff} offen sc1")
    else:
      for j in range(n):
        if j: k(f"s_add_u32 s30, s{soff}, {(64<<sp)*j}")
        k(f"buffer_load_dword v{t+j}, v{voff}, s[4:7], s{soff if j==0 else 30} offen sc1")
    k("s_add_u32 s31, s31, 1\ns_waitcnt vmcnt(0)")
    for j in range(n): k(f"v_xor_b32 v{t+j}, s60, v{t+j}")
    for j in range(1,n): k(f"v_or_b32 v{t}, v{t}, v{t+j}")
    k(f"""
    v_cmp_ne_u32 vcc, 0, v{t}
    s_cmp_gt_u32 s31, {LIMIT}
    s_cbranch_scc1 {lab}x
    s_cbranch_vccz {lab}x
    s_sleep {SLP}
    s_branch {lab}
    {lab}x:
    """)
def flag(k, soff, t):
    k(f"""
    v_mov_b32 v{t}, s60
    v_mov_b32 v{t+1}, 0
    s_mov_b64 exec, 1
    buffer_store_dword v{t}, v{t+1}, s[4:7], s{soff} offen sc1
    s_mov_b64 exec, -1
    """)
EB=56
def eloads(k):
    k(f"""
    buffer_load_dwordx4 v[{EB}:{EB+3}], v71, s[32:35], s26 offen sc1
    buffer_load_dwordx4 v[{EB+4}:{EB+7}], v70, s[32:35], s26 offen sc1
    buffer_load_dwordx4 v[{EB+8}:{EB+11}], v70, s[32:35], s26 offen offset:32 sc1
    """)
def uprep(k, nafter):
    k(f"s_waitcnt vmcnt({nafter+1})")
    for j in range(6): k(f"v_mov_b32 v{36+j}, v{EB+1+j}")
    k(f"""
    ds_write_b128 v68, v[{EB+2}:{EB+5}] offset:{UCC}
    ds_write_b128 v68, v[{EB+4}:{EB+7}] offset:{3*UCC}
    ds_write_b128 v68, v[36:39]
    ds_write_b128 v68, v[38:41] offset:{2*UCC}
    """)
    for j in range(4):
        k(f"v_lshlrev_b32 v{44+2*j}, 16, v{EB+4+j}\nv_and_b32 v{45+2*j}, 0xffff0000, v{EB+4+j}")
    for j in range(8): k(f"v_mul_f32 v{44+j}, s28, v{44+j}")
    for j in range(4): k(f"v_cvt_pk_bf16_f32 v{52+j}, v{44+2*j}, v{45+2*j}")
    k(f"""
    ds_write_b128 v69, v[52:55] offset:{T1-XT}
    s_waitcnt vmcnt({nafter})
    ds_write_b128 v69, v[{EB+8}:{EB+11}]
    s_waitcnt lgkmcnt(0)
    s_barrier
    """)
def kparams(k):
    k(f"""
    s_lshl_b32 s29, s66, 4
    s_lshr_b32 s27, s27, s29
    s_lshl_b32 s27, s27, 16
    s_lshr_b32 s28, s28, s26
    s_lshl_b32 s28, s28, 16
    v_mov_b32 v33, {LOG2E}
    v_mul_f32 v34, s27, v33
    v_exp_f32 v34, v34
    v_lshlrev_b32 v8, 16, v8
    v_lshlrev_b32 v9, 16, v9
    v_cvt_pk_bf16_f32 v34, v34, v34
    v_and_b32 v34, 0xffff0000, v34
    v_mul_f32 v8, v8, v33
    v_exp_f32 v8, v8
    v_mul_f32 v9, v9, v34
    v_cvt_pk_bf16_f32 v8, v8, v8
    v_and_b32 v8, 0xffff0000, v8
    v_mul_f32 v8, v8, v34
    v_mul_f32 v9, {INV2PI}, v9
    v_mul_f32 v8, 0xbfb8aa3b, v8
    """)
def common_addr(k):
    k(f"""
    v_mov_b32 v24, 0
    v_mov_b32 v25, 0
    v_mov_b32 v26, 0
    v_mov_b32 v27, 0
    s_mul_i32 s29, s3, {UCC}
    s_add_u32 s29, s29, {UC}
    v_add_u32 v28, s29, v7
    s_mul_i32 s29, s65, {KCC}
    s_add_u32 s29, s29, {KC}
    v_add_u32 v29, s29, v7
    s_mov_b64 exec, 0xffffff
    ds_write_b128 v28, v[24:27]
    s_mov_b64 exec, 0x7f
    ds_write_b128 v29, v[24:27]
    s_mov_b64 exec, -1
    s_mul_i32 s29, s66, {TBL}
    s_mul_i32 s31, s25, {TA}
    s_add_u32 s29, s29, s31
    s_and_b32 s31, s3, 1
    s_lshl_b32 s31, s31, 8
    s_add_u32 s29, s29, s31
    v_lshlrev_b32 v30, 2, v2
    v_add_u32 v30, s29, v30
    s_mul_i32 s29, s25, {UCH}
    s_add_u32 s29, s29, {UC+24*16}
    v_and_b32 v3, 255, v0
    v_lshlrev_b32 v69, 4, v3
    v_add_u32 v68, s29, v69
    s_lshl_b32 s29, s25, 12
    s_add_u32 s29, s29, {XT}
    v_add_u32 v69, s29, v69
    v_lshlrev_b32 v70, 6, v3
    v_subrev_u32 v71, 64, v70
    s_lshl_b32 s23, s2, 14
    s_add_u32 s32, s20, s23
    s_addc_u32 s33, s21, 0
    s_mov_b32 s34, 16384
    s_mov_b32 s35, 0x20000
    s_and_b32 s61, s2, 1
    s_lshl_b32 s61, s61, 3
    s_bfe_u32 s23, s2, 0x30003
    s_add_u32 s61, s61, s23          ; rb
    s_bfe_u32 s62, s2, 0x20001
    s_lshl_b32 s62, s62, 2
    s_lshr_b32 s23, s2, 6
    s_add_u32 s62, s62, s23          ; fs
    s_and_b32 s63, s2, 7
    s_lshl_b32 s63, s63, 2
    s_bfe_u32 s23, s2, 0x20003
    s_add_u32 s63, s63, s23          ; tl
    s_lshr_b32 s64, s2, 5            ; td
    s_mul_i32 s67, s64, 112
    s_mul_i32 s23, s65, 28
    s_mul_i32 s29, s25, {NM}
    s_add_u32 s23, s23, s29
    s_add_u32 s67, s67, s23
    s_lshl_b32 s67, s67, 11
    s_add_u32 s67, s67, {WS_WT}
    s_mul_i32 s68, s63, 224
    s_add_u32 s68, s68, s23
    s_lshl_b32 s68, s68, 10
    s_add_u32 s68, s68, {WS_HG}
    """)
def rot2init(k, N):
    if not ROT2: return
    k(f"s_mul_i32 s41, s64, {N}\ns_lshr_b32 s41, s41, 3\ns_lshl_b32 s40, s41, 11\ns_lshl_b32 s41, s41, 10\ns_add_u32 s42, s67, s40\ns_add_u32 s43, s68, s41")
def hgload(k, b, s, N):
    if ROT2:
        if s: k(f"s_add_u32 s41, s41, 1024\ns_cmp_eq_u32 s41, {N*1024}\ns_cselect_b32 s41, 0, s41\ns_add_u32 s43, s68, s41")
        k(f"buffer_load_dwordx4 v[{b}:{b+3}], v7, s[4:7], s43 offen sc1")
        k(f"buffer_load_dwordx4 v[{b+4}:{b+7}], v6, s[4:7], s43 offen sc1")
        return
    if s and s%4==0: k("s_add_u32 s68, s68, 4096")
    k(f"buffer_load_dwordx4 v[{b}:{b+3}], v7, s[4:7], s68 offen offset:{1024*(s&3)} sc1")
    k(f"buffer_load_dwordx4 v[{b+4}:{b+7}], v6, s[4:7], s68 offen offset:{1024*(s&3)} sc1")
def wtload(k, base, i):
    if ROT2:
        N=NM if base==MA else NHS
        if i and i%2==0: k(f"s_add_u32 s40, s40, 2048\ns_cmp_eq_u32 s40, {N*2048}\ns_cselect_b32 s40, 0, s40\ns_add_u32 s42, s67, s40")
        k(f"buffer_load_dwordx4 v[{base+4*i}:{base+4*i+3}], v7, s[4:7], s42 offen offset:{1024*(i&1)} sc1")
        return
    if i and i%4==0: k("s_add_u32 s67, s67, 4096")
    k(f"buffer_load_dwordx4 v[{base+4*i}:{base+4*i+3}], v7, s[4:7], s67 offen offset:{1024*(i&3)} sc1")

def gen_m():
    k = K("sequential_preLN__ssm_conv_s4d__glu_gated_glu__prompt_kernel", 256, 512, LDS, 256)
    k("L_begin:\ns_cmp_ge_u32 s2, 256\ns_cbranch_scc1 L_end")
    ts(k,0,False)
    k(f"""
    s_load_dwordx16 s[36:51], s[0:1], 0
    s_load_dwordx8 s[12:19], s[0:1], 64
    s_load_dwordx2 s[20:21], s[0:1], 104
    v_lshrrev_b32 v1, 6, v0
    v_and_b32 v2, 63, v0
    v_lshlrev_b32 v7, 4, v2
    v_readfirstlane_b32 s3, v1
    v_and_b32 v3, 255, v0
    s_lshl_b32 s24, s2, 9
    v_lshl_add_u32 v4, v3, 1, s24
    v_mov_b32 v5, 0
    s_lshl_b32 s22, s2, 2
    s_and_b32 s65, s3, 3
    s_lshr_b32 s25, s3, 2
    s_lshl_b32 s26, s25, 4
    s_bfe_u32 s66, s3, 0x10001
    s_mov_b32 s6, {WS_SIZE:#x}
    s_mov_b32 s7, 0x20000
    s_mov_b32 s23, {WS_TAG:#x}
    s_cmp_ge_u32 s3, 4
    s_cbranch_scc1 L_help
    """)
    gen_main(k)
    gen_help(k)
    k("L_end:\ns_endpgm\nL_stop:")
    return k

def gen_main(k):
    k(f"""
    s_lshl_b32 s29, s2, 13
    s_lshl_b32 s30, s3, 11
    s_add_u32 s29, s29, s30
    s_mov_b32 s10, {2048*512*2:#x}
    s_mov_b32 s11, 0x20000
    s_waitcnt lgkmcnt(0)
    s_mov_b32 s8, s36
    s_mov_b32 s9, s37
    s_mov_b32 s4, s20
    s_mov_b32 s5, s21
    buffer_load_dwordx4 v[12:15], v7, s[8:11], s29 offen
    buffer_load_dwordx4 v[16:19], v7, s[8:11], s29 offen offset:1024
    global_load_ushort v8, v4, s[38:39]
    global_load_ushort v9, v4, s[40:41]
    buffer_load_dword v10, v5, s[4:7], s23 offen sc1
    s_load_dword s27, s[46:47], s22
    s_load_dword s28, s[48:49], s22
    """)
    common_addr(k)
    X=12; F=36; O=52
    k(f"""
    s_lshl_b32 s24, s3, 2
    s_add_u32 s24, s24, {PF}
    v_mov_b32 v1, s24
    ds_write_b32 v1, v24
    v_mov_b32 v1, 0x3b000000
    s_mul_i32 s24, s3, {2*ROWS}
    s_add_u32 s24, s24, {LNB}
    v_lshlrev_b32 v4, 5, v2
    v_add_u32 v4, s24, v4
    v_bfe_u32 v5, v2, 2, 2
    v_mul_u32_u24 v5, {ROWS}, v5
    v_lshrrev_b32 v6, 4, v2
    v_lshl_add_u32 v5, v6, 5, v5
    v_and_b32 v6, 3, v2
    v_lshl_add_u32 v5, v6, 3, v5
    s_lshl_b32 s24, s3, 9
    s_add_u32 s24, s24, {LNB}
    v_add_u32 v5, s24, v5
    v_lshrrev_b32 v11, 2, v2
    v_lshlrev_b32 v11, 14, v11
    v_lshl_add_u32 v11, v6, 4, v11
    s_lshl_b32 s24, s3, 20
    s_lshl_b32 s29, s2, 6
    s_add_u32 s24, s24, s29
    """)
    for i in range(2):
        k(f"s_waitcnt vmcnt({4-i})")
        if i==0: ts(k,1,False)
        for j in range(4):
            k(f"v_lshlrev_b32 v{F+8*i+2*j}, 16, v{X+4*i+j}\nv_and_b32 v{F+1+8*i+2*j}, 0xffff0000, v{X+4*i+j}")
        f=F+8*i; S,Q=20+2*i,21+2*i
        k(f"v_add_f32 v{S}, v{f}, v{f+1}\nv_mul_f32 v{Q}, v{f}, v{f}\nv_fmac_f32 v{Q}, v{f+1}, v{f+1}")
        for j in range(2,8): k(f"v_add_f32 v{S}, v{S}, v{f+j}\nv_fmac_f32 v{Q}, v{f+j}, v{f+j}")
    for dpp in ("row_shr:1","row_shr:2","row_shr:4","row_shr:8"):
        for r in range(20,24): k(f"v_add_f32_dpp v{r}, v{r}, v{r} {dpp} row_mask:0xf bank_mask:0xf bound_ctrl:1")
    for dpp in ("row_bcast:15 row_mask:0xa","row_bcast:31 row_mask:0xc"):
        for r in range(20,24): k(f"v_add_f32_dpp v{r}, v{r}, v{r} {dpp} bank_mask:0xf")
    for r in range(4): k(f"v_readlane_b32 s{52+r}, v{20+r}, 63")
    for i in range(2):
        M,V,T=24+3*i,25+3*i,26+3*i
        k(f"""
        v_mul_f32 v{M}, s{52+2*i}, v1
        v_mul_f32 v{V}, s{53+2*i}, v1
        v_fma_f32 v{V}, -v{M}, v{M}, v{V}
        v_max_f32 v{V}, 0, v{V}
        v_cvt_pk_bf16_f32 v{T}, v{M}, v{V}
        v_lshlrev_b32 v{M}, 16, v{T}
        v_and_b32 v{V}, 0xffff0000, v{T}
        v_add_f32 v{V}, 0x3727c5ac, v{V}
        v_cvt_pk_bf16_f32 v{V}, v{V}, v{V}
        v_and_b32 v{V}, 0xffff0000, v{V}
        v_sqrt_f32 v{V}, v{V}
        v_cvt_pk_bf16_f32 v{V}, v{V}, v{V}
        v_and_b32 v{V}, 0xffff0000, v{V}
        v_rcp_f32 v{V}, v{V}
        """)
    for i in range(2):
        M,V=24+3*i,25+3*i; f=F+8*i; o=O+8*i
        for j in range(8): k(f"v_sub_f32 v{f+j}, v{f+j}, v{M}")
        for j in range(4): k(f"v_cvt_pk_bf16_f32 v{o+2*j}, v{f+2*j}, v{f+2*j+1}")
        for j in range(4): k(f"v_lshlrev_b32 v{f+2*j}, 16, v{o+2*j}\nv_and_b32 v{f+2*j+1}, 0xffff0000, v{o+2*j}")
        for j in range(8): k(f"v_mul_f32 v{f+j}, v{f+j}, v{V}")
        for j in range(4): k(f"v_cvt_pk_bf16_f32 v{o+2*j}, v{f+2*j}, v{f+2*j+1}\nv_mov_b32 v{o+2*j+1}, v{X+4*i+j}")
        k(f"ds_write_b128 v4, v[{o}:{o+3}] offset:{i*ROWS}\nds_write_b128 v4, v[{o+4}:{o+7}] offset:{i*ROWS+16}")
    k("s_waitcnt lgkmcnt(0)\ns_barrier        ; B1")
    for it in range(4):
        k(f"ds_read_b64_tr_b16 v[{12+4*it}:{13+4*it}], v5 offset:{it*128}")
        k(f"ds_read_b64_tr_b16 v[{14+4*it}:{15+4*it}], v5 offset:{it*128+4*ROWS}")
    for it in range(4):
        k(f"s_waitcnt lgkmcnt({6-2*it})")
        k(f"buffer_store_dwordx4 v[{12+4*it}:{15+4*it}], v11, s[4:7], s24 offen sc1")
        if it<3: k(f"s_add_u32 s24, s24, {16*16384}")
    ts(k,2,False)
    k("s_waitcnt vmcnt(4)\nv_readfirstlane_b32 s60, v10")
    kparams(k)
    k("s_mul_i32 s60, s60, 1664525\ns_add_u32 s60, s60, 1013904223")
    W=36; X0=38; X1=40; T=42; C=44
    direct(k, W, 8, 9, 8, T)
    k(f"v_mov_b32 v{C}, 0x00003f80\nds_write_b32 v30, v{C}")
    k(f"v_cvt_pk_bf16_f32 v{C+1}, v{W}, v{W+1}\nds_write_b32 v30, v{C+1} offset:{TROW}")
    cur=W
    for j in range(2,32):
        nxt = X0 if cur!=X0 else X1
        cmul(k, nxt, cur, W, T)
        c=C+(j&3)
        k(f"v_cvt_pk_bf16_f32 v{c}, v{nxt}, v{nxt+1}\nds_write_b32 v30, v{c} offset:{TROW*j}")
        cur=nxt
    k(f"""
    v_and_b32 v4, 31, v2
    v_mul_u32_u24 v4, {TROW}, v4
    v_lshrrev_b32 v5, 5, v2
    v_lshl_add_u32 v4, v5, 4, v4
    s_mul_i32 s29, s66, {TBL}
    v_add_u32 v4, s29, v4
    s_waitcnt vmcnt(0) lgkmcnt(0)
    s_barrier        ; B2
    """)
    ts(k,3)
    NB=6; KR=112
    def rd(s):
        b=KR+8*(s%NB)
        k(f"ds_read_b128 v[{b}:{b+3}], v4 offset:{TA+32*s}\nds_read_b128 v[{b+4}:{b+7}], v4 offset:{TB+32*s}")
    for s in range(NB-1): rd(s)
    k(f"""
    s_mul_i32 s29, s3, {KCC}
    s_add_u32 s29, s29, {KC+7*16}
    v_add_u32 v5, s29, v7
    v_and_b32 v8, 1, v2
    v_mul_u32_u24 v8, {KCC}, v8
    v_bfe_u32 v9, v2, 1, 3
    v_lshrrev_b32 v10, 4, v2
    v_sub_u32 v9, v9, v10
    v_add_u32 v9, 3, v9
    v_lshl_add_u32 v8, v9, 4, v8
    s_mul_i32 s29, s66, {2*KCC}
    s_and_b32 s69, s3, 1                     ; c-half
    s_lshl_b32 s56, s69, 8
    s_add_u32 s29, s29, s56
    s_add_u32 s29, s29, {KC}
    v_add_u32 v8, s29, v8
    v_and_b32 v9, 3, v2
    v_mul_u32_u24 v11, {UCC}, v9
    v_bfe_u32 v12, v2, 2, 2
    v_lshl_add_u32 v13, v12, 3, v10
    v_lshl_add_u32 v11, v13, 4, v11
    s_mul_i32 s29, s66, {UCH}
    s_sub_u32 s29, s29, s56
    s_add_u32 s29, s29, {UC+16*16}
    v_add_u32 v11, s29, v11
    v_lshlrev_b32 v13, 5, v10
    v_lshl_add_u32 v13, v9, 2, v13
    v_lshl_add_u32 v13, v12, 7, v13
    v_and_b32 v14, 1, v2
    v_cmp_eq_u32 s[58:59], 1, v14
    """)
    D=16
    for s in range(16):
        if s+NB-1<16: rd(s+NB-1)
        k(f"s_waitcnt lgkmcnt({2*(min(15,s+NB-1)-s)})")
        b=KR+8*(s%NB)
        k(f"v_mfma_f32_32x32x16_bf16 v[{D}:{D+15}], v[{b}:{b+3}], v[{b+4}:{b+7}], {'0' if s==0 else f'v[{D}:{D+15}]'}")
    e=lambda r: D+r
    O=32
    k(f"v_cndmask_b32 v48, v{e(11)}, v{e(12)}, s[58:59]\nv_cndmask_b32 v49, v{e(13)}, v{e(14)}, s[58:59]")
    k("s_cmp_eq_u32 s69, 0\ns_cbranch_scc1 L2_a0")
    def grp(idx, pairs):
        o=O+4*idx
        for t,(lo,hi) in enumerate(pairs):
            if t>0 and pairs[t-1]==(lo,hi): k(f"v_mov_b32 v{o+t}, v{o+t-1}")
            else: k(f"v_cvt_pk_bf16_f32 v{o+t}, v{lo}, v{hi}")
        k(f"ds_write_b128 v5, v[{o}:{o+3}] offset:{idx*1024}")
    grp(0,[(e(7),e(6)),(e(5),e(4)),(e(3),e(2)),(e(1),e(0))])
    grp(1,[(e(10),e(10)),(e(9),e(9)),(e(9),e(8)),(e(8),e(8))])
    grp(2,[(e(12),e(12)),(e(12),48),(e(11),e(11)),(e(11),e(11))])
    grp(3,[(e(14),e(14)),(e(14),49),(e(13),e(13)),(e(13),e(13))])
    k("s_branch L2_conv\nL2_a0:")
    k("v_mov_b32 v50, 0")
    k(f"v_mov_b32_dpp v50, v{e(7)} wave_shr:1 row_mask:0xf bank_mask:0xf bound_ctrl:1")
    grp(1,[(e(10),e(9)),(e(9),e(9)),(e(8),e(8)),(e(8),e(8))])
    grp(2,[(e(12),e(12)),(48,e(11)),(e(11),e(11)),(e(11),e(11))])
    grp(3,[(e(14),e(14)),(49,e(13)),(e(13),e(13)),(e(13),e(13))])
    grp(0,[(e(6),e(5)),(e(4),e(3)),(e(2),e(1)),(e(0),50)])
    k(f"""
    L2_conv:
    v_lshlrev_b32 v3, {SP1}, v2
    s_mov_b32 s29, {WS_F1:#x}
    s_cmp_lg_u32 s3, 0
    s_cbranch_scc1 L_p1x
    """)
    poll(k,"L_p1",3,4,29,52,SL1,SP1)
    k("s_waitcnt lgkmcnt(0)\ns_barrier        ; B3")
    ts(k,4)
    eloads(k)
    AF=[48,112]; BF=[80,144]; ACC=16
    def rdA(buf,g,cl): k(f"ds_read_b128 v[{AF[buf]+4*g}:{AF[buf]+4*g+3}], v8 offset:{512*g+64*cl}")
    def rdB(buf,t,cl): k(f"ds_read_b128 v[{BF[buf]+4*t}:{BF[buf]+4*t+3}], v11 offset:{512*t+(12-4*cl)*16}")
    for g in range(8): rdA(1,g,0)
    uprep(k, 0)
    ts(k,5)
    k("s_setprio 1")
    for t in range(8): rdB(1,t,0)
    first=[True]*8
    for cl in range(4):
        buf=(cl&1)^1
        pend=[]
        if cl<3:
            for g in range(8): pend += [("A",g),("B",g)]
        seq=[(t,g) for t in range(8) for g in range(t+1)]
        issued=0
        for idx,(t,g) in enumerate(seq):
            if g==0:
                if cl==0: k(f"s_waitcnt lgkmcnt({min(15,7-t+issued)})")
                else: k(f"s_waitcnt lgkmcnt({min(15,14-2*t+issued)})")
            a=AF[buf]+4*g; b=BF[buf]+4*(t-g); c=ACC+4*t
            k(f"v_mfma_f32_16x16x32_bf16 v[{c}:{c+3}], v[{a}:{a+3}], v[{b}:{b+3}], {'0' if first[t] else f'v[{c}:{c+3}]'}")
            first[t]=False
            start = 4
            if pend and idx>=start and (idx%2==0 or len(seq)-idx<=len(pend)+2):
                kind,j=pend.pop(0)
                (rdA if kind=="A" else rdB)(buf^1,j,cl+1); issued+=1
        assert not pend
    k(f"""
    s_lshl_b32 s29, s3, 12
    s_add_u32 s29, s29, {RED}
    v_add_u32 v4, s29, v7
    s_xor_b32 s29, s3, 1
    s_lshl_b32 s29, s29, 12
    s_add_u32 s29, s29, {RED}
    v_add_u32 v5, s29, v7
    s_lshl_b32 s29, s3, 11
    s_lshl_b32 s57, s2, 13
    s_add_u32 s57, s57, s29
    s_add_u32 s57, s57, {WS_HT}
    s_add_u32 s29, s29, {XT}
    v_add_u32 v6, s29, v13
    v_add_u32 v9, s29, v7
    """)
    XR=112
    for t in range(4):
        k(f"ds_read_b32 v{XR+4*t}, v6 offset:{512*t}\nds_read_b32 v{XR+1+4*t}, v6 offset:{512*t+16}")
        k(f"ds_read_b32 v{XR+2+4*t}, v6 offset:{512*t+T1-XT}\nds_read_b32 v{XR+3+4*t}, v6 offset:{512*t+16+T1-XT}")
    k("s_cmp_eq_u32 s69, 0\ns_cbranch_scc1 L2_r0")
    for t in range(4): k(f"ds_write_b128 v4, v[{ACC+4*t}:{ACC+4*t+3}] offset:{1024*t}")
    k("s_waitcnt lgkmcnt(0)")
    for j in range(16): k(f"v_mov_b32 v{ACC+j}, v{ACC+16+j}")
    k("s_branch L2_r1\nL2_r0:")
    for t in range(4): k(f"ds_write_b128 v4, v[{ACC+16+4*t}:{ACC+16+4*t+3}] offset:{1024*t}")
    k(f"""
    L2_r1:
    s_lshl_b32 s29, s3, 2
    s_add_u32 s29, s29, {PF}
    v_mov_b32 v8, s29
    v_xor_b32 v10, 4, v8
    ds_write_b32 v8, v8
    s_mov_b32 s31, 0
    L_b5:
    ds_read_b32 v11, v10
    s_add_u32 s31, s31, 1
    s_waitcnt lgkmcnt(0)
    v_cmp_eq_u32 vcc, 0, v11
    s_cmp_gt_u32 s31, 100000
    s_cbranch_scc1 L_b5x
    s_cbranch_vccnz L_b5
    L_b5x:
    """)
    for t in range(4): k(f"ds_read_b128 v[{48+4*t}:{51+4*t}], v5 offset:{1024*t}")
    for t in range(4):
        for hh in range(2):
            i=2*t+hh
            k(f"v_lshlrev_b32 v{64+2*i}, 16, v{XR+4*t+hh}\nv_and_b32 v{65+2*i}, 0xffff0000, v{XR+4*t+hh}")
            k(f"v_lshlrev_b32 v{80+2*i}, 16, v{XR+2+4*t+hh}\nv_and_b32 v{81+2*i}, 0xffff0000, v{XR+2+4*t+hh}")
    for t in range(4):
        k(f"s_waitcnt lgkmcnt({3-t+2*t})")
        a=ACC+4*t
        for r in range(4): k(f"v_add_f32 v{a+r}, v{a+r}, v{48+4*t+r}")
        def rnd(): k(f"v_cvt_pk_bf16_f32 v{a}, v{a}, v{a+1}\nv_cvt_pk_bf16_f32 v{a+2}, v{a+2}, v{a+3}")
        def unp():
            k(f"v_and_b32 v{a+1}, 0xffff0000, v{a}\nv_and_b32 v{a+3}, 0xffff0000, v{a+2}")
            k(f"v_lshlrev_b32 v{a}, 16, v{a}\nv_lshlrev_b32 v{a+2}, 16, v{a+2}")
        rnd(); unp()
        for r in range(4): k(f"v_add_f32 v{a+r}, v{a+r}, v{80+4*t+r}")
        rnd(); unp()
        for r in range(4): k(f"v_add_f32 v{a+r}, v{a+r}, v{64+4*t+r}")
        rnd()
        k(f"ds_write_b32 v6, v{a} offset:{512*t}\nds_write_b32 v6, v{a+2} offset:{512*t+16}")
    k(f"""
    s_waitcnt lgkmcnt(0)
    ds_read_b128 v[48:51], v9
    ds_read_b128 v[52:55], v9 offset:1024
    s_waitcnt lgkmcnt(1)
    buffer_store_dwordx4 v[48:51], v7, s[4:7], s57 offen sc1
    s_waitcnt lgkmcnt(0)
    buffer_store_dwordx4 v[52:55], v7, s[4:7], s57 offen offset:1024 sc1
    """)
    ts(k,6,False)
    rot2init(k, NM)
    MSL=E_("MSL",0)
    NA=4; AW=48; BW=[16,32]; ACC=64
    k(f"""
    v_lshrrev_b32 v3, 4, v2                  ; q
    v_bfe_u32 v4, v2, 2, 2                   ; r
    v_lshl_add_u32 v5, v3, 2, v4             ; row 4q+r
    v_and_b32 v6, 3, v2                      ; c
    v_mul_u32_u24 v8, 224, v5
    v_and_b32 v10, 1, v6
    v_lshl_add_u32 v10, v10, 3, v8
    v_lshrrev_b32 v11, 1, v6
    v_mul_u32_u24 v11, {UOFF}, v11
    s_lshl_b32 s29, s66, 4
    s_add_u32 s29, s29, {WB+96}
    v_add3_u32 v10, v10, v11, s29            ; A mixed
    v_add_u32 v11, {4*WSL}, v10
    v_lshl_add_u32 v8, v6, 3, v8
    s_lshl_b32 s29, s66, 7
    s_add_u32 s29, s29, {WB}
    v_add_u32 v8, s29, v8                    ; A normal
    v_add_u32 v9, {4*WSL}, v8
    v_lshlrev_b32 v1, 8, v5
    v_lshl_add_u32 v1, v6, 3, v1
    v_add_u32 v1, {HB}, v1
    v_and_b32 v5, 7, v5
    s_lshl_b32 s29, s69, 2
    v_xor_b32 v5, s29, v5
    """)
    for lb in range(4):
        k(f"v_xor_b32 v6, {lb}, v5\nv_lshl_add_u32 v{12+lb}, v6, 5, v1")
    k(f"""
    v_and_b32 v1, 15, v2                     ; m
    v_lshlrev_b32 v6, 4, v1
    s_lshl_b32 s29, s66, 11
    s_add_u32 s29, s29, {AP}
    v_add_u32 v4, s29, v6
    v_lshrrev_b32 v5, 3, v1
    v_lshl_add_u32 v5, v5, 7, v6
    s_lshl_b32 s29, s66, 7
    s_add_u32 s29, s29, {AP+96*16}
    v_add_u32 v5, s29, v5
    s_lshl_b32 s29, s69, 10
    s_add_u32 s29, s29, {FS}
    v_add_u32 v6, s29, v6
    v_add_u32 v1, s29, v7
    v_cmp_eq_u32 s[56:57], 0, v3
    s_lshl_b32 s70, s61, 1
    s_add_u32 s70, s70, s69
    s_mul_i32 s70, s70, 224
    s_mul_i32 s29, s62, 7
    s_add_u32 s70, s70, s29
    s_add_u32 s71, s70, 3
    s_lshl_b32 s29, s66, 2
    s_add_u32 s70, s70, s29
    s_lshl_b32 s70, s70, 10
    s_add_u32 s70, s70, {WS_HG}
    s_lshl_b32 s71, s71, 10
    s_lshl_b32 s29, s66, 9
    s_add_u32 s71, s71, s29
    s_add_u32 s71, s71, {WS_HG}
    v_lshlrev_b32 v3, {SP2}, v2
    s_lshl_b32 s29, s2, {SP2}
    s_add_u32 s29, s29, {WS_F2}
    {TSI+' s[82:83]' if STAMP and E_('B6S',0) else ''}
    s_waitcnt vmcnt(0)
    {TSI+' s[84:85]' if STAMP and E_('B6S',0) else ''}
    s_barrier        ; B6
    {TSI+' s[86:87]' if STAMP and E_('B6S',0) else ''}
    s_cmp_lg_u32 s3, 0
    s_cbranch_scc1 L_f2x
    """)
    flag(k,29,48)
    k("L_f2x:")
    if MSL: k(f"s_sleep {MSL}")
    NMA=E_("NMA",20); POLM=E_("POLM",0); TM0=E_("TM0",70); TMS=E_("TMS",2)
    for i in range(NMA): wtload(k, MA, i)
    if POLM:
        k(f"s_cmp_lg_u32 s3, 1\ns_cbranch_scc1 L_p2x\ns_mov_b32 s29, {WS_F2:#x}")
        poll(k,"L_p2",3,4,29,48,SL2,SP2)
    mt=[NMA]
    k("s_barrier        ; B7")
    ts(k,7)
    q=[]
    ZS=32; ZM=40
    FBB=E_("FBB",2)
    def rdA1(t,h=None):
        b=AW+4*(t%NA)
        if t>=119: return
        if h is None: rdA1(t,0); rdA1(t,1); return
        j=t//7; fb=t%7
        if j==16:
            if h: return
            if fb<6: k(f"ds_read_b128 v[{b}:{b+3}], v4 offset:{(fb>>1)*512+(fb&1)*256}")
            else: k(f"ds_read_b128 v[{b}:{b+3}], v5")
            q.append(("A",t)); return
        sl=j%NW
        va = (8 if fb<6 else 10) + (0 if sl<4 else 1)
        off=(sl%4)*WSL + ((fb&1)*UOFF + (fb>>1)*32 if fb<6 else 0)
        k(f"ds_read_b64_tr_b16 v[{b+2*h}:{b+2*h+1}], v{va} offset:{off+h*16*224}")
        q.append(("A",t))
    def rdB1(s,lb,h=None):
        b=BW[s&1]+4*lb
        if h is None: rdB1(s,lb,0); rdB1(s,lb,1); return
        if s==16:
            if h: return
            k(f"ds_read_b64 v[{b}:{b+1}], v6 offset:{lb*256}\nv_mov_b32 v{b+2}, 0\nv_mov_b32 v{b+3}, 0"); q.append(("B",s,lb)); return
        off=(s%NH)*HS
        k(f"ds_read_b64_tr_b16 v[{b+2*h}:{b+2*h+1}], v{12+lb} offset:{off+h*4096}")
        q.append(("B",s,lb))
    k("s_barrier        ; G0")
    if STAMP: k("s_memtime s[72:73]")
    ts(k,8)
    rdB1(0,0); rdA1(0)
    for lb in range(1,4): rdB1(0,lb)
    for t in range(1,NA): rdA1(t)
    waited=[-1]
    def need(tag):
        n=max(idx for idx,x in enumerate(q) if x==tag)
        if n>waited[0]:
            k(f"s_waitcnt lgkmcnt({len(q)-1-n})"); waited[0]=n
    for t in range(119):
        s=t//7; fb=t%7
        a=AW+4*(t%NA)
        for lb in range(4):
            if lb==0: need(("A",t))
            if fb==0:
                need(("B",s,lb))
                if s==16:
                    b=BW[0]+4*lb
                    k(f"v_cndmask_b32 v{b}, 0, v{b}, s[56:57]\nv_cndmask_b32 v{b+1}, 0, v{b+1}, s[56:57]")
            c=ACC+16*fb+4*lb; b=BW[s&1]+4*lb
            k(f"v_mfma_f32_16x16x32_bf16 v[{c}:{c+3}], v[{a}:{a+3}], v[{b}:{b+3}], {'0' if s==0 else f'v[{c}:{c+3}]'}")
            if s<16:
                if fb==FBB and lb==1 and s<15: k("s_barrier")
                if FBB<=fb<FBB+4 and lb in (1,2): rdB1(s+1,fb-FBB,lb-1)
            if s==16 and fb==1:
                k(f"ds_read_b64 v[{ZS+2*lb}:{ZS+2*lb+1}], v6 offset:{lb*256+8}"); q.append(("Z",0))
                if lb==3: k(f"ds_read_b64 v[{ZM}:{ZM+1}], v1 offset:8"); q.append(("Z",0))
            if lb==2 and t>=TM0 and (t-TM0)%TMS==0 and mt[0]<2*NM:
                wtload(k, MA, mt[0]); mt[0]+=1
            if lb==3: rdA1(t+NA,0)
            if lb==0 and t>0: rdA1(t-1+NA,1)
    while mt[0]<2*NM:
        wtload(k, MA, mt[0]); mt[0]+=1
    ts(k,10,False)
    if STAMP: k("s_memtime s[74:75]")
    k(f"""
    v_add_u32 v6, {112*1024}, v7
    v_and_b32 v4, 31, v2
    v_lshlrev_b32 v4, 4, v4
    v_lshrrev_b32 v5, 5, v2
    v_mul_u32_u24 v5, {112*1024}, v5
    v_add_u32 v4, v4, v5
    s_waitcnt lgkmcnt(0)
    """)
    def glu(gs, us, zs, outs):
        for g,z in zip(gs,zs): k(f"v_pk_mul_f32 v[{g}:{g+1}], v[{g}:{g+1}], v[{z}:{z+1}] op_sel_hi:[1,0]")
        for g in gs: k(f"v_exp_f32 v{g}, v{g}\nv_exp_f32 v{g+1}, v{g+1}")
        for g,z in zip(gs,zs): k(f"v_pk_fma_f32 v[{g}:{g+1}], v[{g}:{g+1}], v[{z}:{z+1}], v[{z}:{z+1}] op_sel:[0,1,1] op_sel_hi:[1,1,1]")
        for g in gs: k(f"v_rcp_f32 v{g}, v{g}\nv_rcp_f32 v{g+1}, v{g+1}")
        for g,u in zip(gs,us): k(f"v_pk_mul_f32 v[{g}:{g+1}], v[{g}:{g+1}], v[{u}:{u+1}]")
        for g,o in zip(gs,outs): k(f"v_cvt_pk_bf16_f32 v{o}, v{g}, v{g+1}")
    n=0
    for i in range(3):
        for L in range(2):
            cg=ACC+32*i+8*L; cu=cg+16; o=AW+4*(n&3); n+=1
            glu([cg,cg+2,cg+4,cg+6],[cu,cu+2,cu+4,cu+6],[ZS+4*L,ZS+4*L,ZS+4*L+2,ZS+4*L+2],[o,o+1,o+2,o+3])
            k(f"v_permlane16_swap_b32 v{o}, v{o+2}\nv_permlane16_swap_b32 v{o+1}, v{o+3}")
            k(f"buffer_store_dwordx4 v[{o}:{o+3}], v{7-L}, s[4:7], s70 offen offset:{1024*i} sc1")
        if i==0:
            c=ACC+96
            for r in range(4): k(f"v_permlane32_swap_b32 v{c+r}, v{c+8+r}\nv_permlane32_swap_b32 v{c+4+r}, v{c+12+r}")
            for r in range(4): k(f"v_permlane16_swap_b32 v{c+r}, v{c+4+r}\nv_permlane16_swap_b32 v{c+8+r}, v{c+12+r}")
    c=ACC+96; o=AW+4*(n&3)
    glu([c,c+2,c+4,c+6],[c+8,c+10,c+12,c+14],[ZM]*4,[o,o+1,o+2,o+3])
    k(f"buffer_store_dwordx4 v[{o}:{o+3}], v4, s[4:7], s71 offen sc1")
    k(f"""
    s_setprio 0
    s_lshl_b32 s29, s61, 4
    s_add_u32 s29, s29, s62
    s_lshl_b32 s29, s29, 6
    s_add_u32 s29, s29, {WS_F3}
    s_lshl_b32 s23, s3, 14
    v_add_u32 v5, s23, v7
    v_and_b32 v3, 15, v2
    v_lshlrev_b32 v3, 6, v3
    s_waitcnt vmcnt(0)
    s_barrier        ; B8
    s_cmp_lg_u32 s3, 0
    s_cbranch_scc1 L_p3x
    """)
    flag(k,29,48)
    k(f"s_lshr_b32 s29, s63, 1\ns_lshl_b32 s29, s29, 10\ns_add_u32 s29, s29, {WS_F3}")
    poll(k,"L_p3",3,1,29,48,SL3)
    k("s_barrier        ; B9")
    ts(k,9,False)
    A2=48
    slots=[8+8*i for i in range(5)]+[112+8*i for i in range(5)]
    for s in range(NM): hgload(k, slots[s], s, NM)
    for s in range(NM):
        for lb in range(2):
            k(f"s_waitcnt vmcnt({2*(NM-1-s)+1-lb})")
            for db in range(2):
                c=A2+16*(db+2*lb); a=MA+8*s+4*db; b=slots[s]+4*lb
                k(f"v_mfma_f32_32x32x16_bf16 v[{c}:{c+15}], v[{a}:{a+3}], v[{b}:{b+3}], {'0' if s==0 else f'v[{c}:{c+15}]'}")
    for j in range(16):
        k(f"ds_write_b128 v5, v[{A2+4*j}:{A2+4*j+3}] offset:{G2M+j*1024}")
    k(f"""
    s_waitcnt lgkmcnt(0)
    s_barrier        ; B10
    s_or_b32 s23, s2, s3
    s_cmp_lg_u32 s23, 0
    s_cbranch_scc1 L_mend
    s_mov_b32 s29, {WS_TAG:#x}
    """)
    flag(k,29,48)
    k("L_mend:")
    flush(k,[1,2,3,4,5,6,7,8,10,9],0,0)
    k("s_endpgm")

def gen_help(k):
    VH=100; VW=102
    CS=72; WJ=88
    k(f"""
    L_help:
    v_lshrrev_b32 v12, 3, v2
    v_and_b32 v13, 7, v2
    v_lshlrev_b32 v14, 4, v13
    v_lshl_add_u32 v14, v12, 10, v14
    v_add_u32 v15, {8192-1024}, v14
    s_lshr_b32 s29, s2, 1                    ; kf
    s_and_b32 s30, s2, 1
    s_lshl_b32 s30, s30, 2
    s_add_u32 s30, s30, s65
    s_lshl_b32 s31, s29, 14
    s_lshl_b32 s52, s30, 7
    s_add_u32 s31, s31, s52
    s_lshl_b32 s52, s65, 11
    s_add_u32 s52, s52, {WDS}
    s_mov_b32 m0, s52
    s_mul_i32 s53, s30, 112
    s_add_u32 s53, s53, s29
    s_lshl_b32 s53, s53, 11
    s_add_u32 s53, s53, {WS_WT}
    s_mov_b32 s10, {1792*512*2:#x}
    s_mov_b32 s11, 0x20000
    s_waitcnt lgkmcnt(0)
    s_mov_b32 s8, s16
    s_mov_b32 s9, s17
    s_mov_b32 s4, s20
    s_mov_b32 s5, s21
    s_cmp_ge_u32 s2, 224
    s_cbranch_scc1 L_h0
    buffer_load_dwordx4 v14, s[8:11], s31 offen lds
    buffer_load_dwordx4 v15, s[8:11], s31 offen offset:1024 lds
    L_h0:
    global_load_ushort v8, v4, s[38:39]
    global_load_ushort v9, v4, s[40:41]
    global_load_ushort v10, v4, s[42:43]
    global_load_ushort v11, v4, s[44:45]
    buffer_load_dword v16, v5, s[4:7], s23 offen sc1
    s_load_dword s27, s[46:47], s22
    s_load_dword s28, s[48:49], s22
    s_getpc_b64 s[54:55]
    L_pc:
    s_add_u32 s54, s54, L_begin-L_pc
    s_addc_u32 s55, s55, -1
    s_lshr_b32 s29, s2, 3
    s_lshl_b32 s29, s29, 2
    s_add_u32 s29, s29, s65
    s_lshl_b32 s29, s29, 9
    v_and_b32 v17, 7, v2
    v_lshl_add_u32 v17, v17, 6, s29
    v_min_u32 v17, L_stop-L_begin-4, v17
    global_load_dword v17, v17, s[54:55]
    """)
    common_addr(k)
    k(f"""
    v_lshrrev_b32 v18, 5, v2
    v_bfe_u32 v19, v2, 2, 2
    v_lshl_add_u32 v18, v18, 3, v19
    v_lshlrev_b32 v18, 7, v18
    v_and_b32 v19, 1, v2
    v_lshl_add_u32 v18, v19, 5, v18
    v_bfe_u32 v19, v2, 4, 1
    v_lshl_add_u32 v18, v19, 4, v18
    v_bfe_u32 v19, v2, 1, 1
    v_lshl_add_u32 v18, v19, 3, v18
    v_add_u32 v18, s52, v18
    s_barrier        ; B1
    s_cmp_ge_u32 s2, 224
    s_cbranch_scc1 L_h1
    s_waitcnt vmcnt(6)
    """)
    for db in range(2):
        k(f"ds_read_b64_tr_b16 v[{WJ+4*db}:{WJ+4*db+1}], v18 offset:{64*db}\nds_read_b64_tr_b16 v[{WJ+4*db+2}:{WJ+4*db+3}], v18 offset:{64*db+512}")
    k(f"""
    s_waitcnt lgkmcnt(0)
    buffer_store_dwordx4 v[{WJ}:{WJ+3}], v7, s[4:7], s53 offen sc1
    buffer_store_dwordx4 v[{WJ+4}:{WJ+7}], v7, s[4:7], s53 offen offset:1024 sc1
    s_waitcnt vmcnt(3)
    s_branch L_h2
    L_h1:
    s_waitcnt vmcnt(1) lgkmcnt(0)
    L_h2:
    v_readfirstlane_b32 s60, v16
    """)
    ts(k,1,False)
    kparams(k)
    k("s_mul_i32 s60, s60, 1664525\ns_add_u32 s60, s60, 1013904223")
    Z1=36; Z8=38; V=40; Z2=42; Z4=44; T=46; E=48; X0=50; X1=52; CC=54; C=56
    k("v_sub_f32 v9, 0, v9")
    direct(k, Z1, 8, 9, 1, T)
    direct(k, Z8, 8, 9, 8, T)
    direct(k, V, 8, 9, 256, T)
    k(f"""
    v_add_f32 v34, v34, v34
    v_lshlrev_b32 v10, 16, v10
    v_lshlrev_b32 v11, 16, v11
    v_mul_f32 v{CC}, v10, v34
    v_mul_f32 v{CC+1}, -v11, v34
    """)
    cnt=[0]
    def put(src, rows):
        c=C+(cnt[0]&3); cnt[0]+=1
        k(f"v_cvt_pk_bf16_f32 v{c}, v{src}, v{src+1}")
        for (r,h) in rows: k(f"ds_write_b32 v30, v{c} offset:{TROW*rho(r,h)}")
    put(CC,[(0,0)])
    cmul(k,Z2,Z1,Z1,T)
    cur=CC
    for r in range(1,8):
        nxt = X0 if cur!=X0 else X1
        cmul(k,nxt,cur,Z1,T); put(nxt,[(r,0)]); cur=nxt
    cmul(k,Z4,Z2,Z2,T)
    cmul(k,E,CC,V,T); put(E,[(0,1),(1,1)])
    cur=E
    for rows in ([(2,1)],[(3,1),(4,1),(5,1)],[(6,1)],[(7,1)]):
        nxt = X0 if cur!=X0 else X1
        cmul(k,nxt,cur,Z2,T); put(nxt,rows); cur=nxt
    ecur=E
    for h in (0,1):
        en = CC if ecur==E else E
        cmul(k,en,ecur,V,T); put(en,[(8,h)]); ecur=en
        cmul(k,X0,ecur,Z4,T); put(X0,[(9,h)])
        cmul(k,X1,X0,Z4,T); put(X1,[(10,h)])
    for (r,h) in ((11,0),(11,1),(13,0),(13,1)):
        en = CC if ecur==E else E
        cmul(k,en,ecur,V,T); put(en,[(r,h)]); ecur=en
        cmul(k,X0,ecur,Z8,T); put(X0,[(r+1,h)])
    k(f"""
    s_lshr_b32 s52, s2, 3
    s_min_u32 s53, s52, 27
    s_and_b32 s29, s2, 1
    s_mul_i32 s29, s29, 28
    s_add_u32 s29, s29, s53                  ; t
    s_mul_i32 s30, s29, 4682
    s_lshr_b32 s30, s30, 16                  ; kchunk
    s_mul_i32 s31, s30, 14
    s_sub_u32 s29, s29, s31
    s_cmp_ge_u32 s29, 7
    s_cselect_b32 s8, s14, s12
    s_cselect_b32 s9, s15, s13
    s_cselect_b32 s31, 7, 0
    s_cselect_b32 s53, {1792*4}, 0
    s_sub_u32 s29, s29, s31
    s_bfe_u32 s31, s2, 0x20001
    s_mul_i32 s31, s31, 7
    s_add_u32 s29, s29, s31                  ; cb
    s_lshl_b32 s30, s30, 2
    s_add_u32 s30, s30, s65
    s_mul_i32 s31, s30, {32*3584}
    s_lshl_b32 s54, s29, 7
    s_add_u32 s31, s31, s54                  ; W soffset
    s_mul_i32 s30, s30, {3584*4}
    s_lshl_b32 s29, s29, 8
    s_add_u32 s30, s30, s29
    s_add_u32 s53, s53, s30
    s_add_u32 s53, s53, {WS_CS}
    v_mul_u32_u24 v12, 3584, v12
    v_lshl_add_u32 v12, v13, 4, v12
    v_lshrrev_b32 v14, 4, v2
    v_lshlrev_b32 v14, 3, v14
    v_lshl_add_u32 v13, v13, 5, v14
    s_lshl_b32 s29, s2, {SP1}
    s_add_u32 s29, s29, {WS_F1}
    s_waitcnt vmcnt(0) lgkmcnt(0)
    s_barrier        ; B2
    s_cmp_lg_u32 s3, 4
    s_cbranch_scc1 L_h3
    """)
    flag(k,29,20)
    k("L_h3:")
    ts(k,2,False)
    for i in range(4):
        k(f"buffer_load_dwordx4 v[{CS+4*i}:{CS+4*i+3}], v12, s[8:11], s31 offen")
        if i<3: k(f"s_add_u32 s31, s31, {8*3584}")
    WARM=E_("WARM",2)
    def warm():
        if WARM&2: k("s_bitcmp1_b32 s2, 0\ns_cbranch_scc1 L_nw")
        k(f"s_mov_b32 s29, {8*114688-24*3584:#x}\ns_bitcmp1_b32 s2, 0\ns_cselect_b32 s29, {(-8*114688-24*3584)&0xffffffff:#x}, s29\ns_add_u32 s75, s75, s29")
        for i in range(4):
            k(f"buffer_load_dwordx4 v[{88}:{91}], v12, s[8:11], s75 offen")
            if i<3: k(f"s_add_u32 s75, s75, {8*3584}")
        if WARM&2: k("L_nw:")
    k("s_mov_b32 s75, s31")
    if WARM and not WARM&4: warm()
    rot2init(k, NHS)
    k(f"""
    v_lshrrev_b32 v3, 4, v2
    v_and_b32 v4, 15, v2
    v_lshlrev_b32 v5, 1, v3
    v_xor_b32 v4, v4, v5
    v_lshlrev_b32 v4, 4, v4
    v_lshl_add_u32 v4, v3, 12, v4
    s_lshl_b32 s29, s65, 15
    v_add_u32 v{VH}, s29, v4
    v_xor_b32 v4, 128, v{VH}
    v_add_u32 v{VH+1}, {16384-1024}, v4
    s_lshl_b32 s70, s61, 8
    s_add_u32 s70, s70, {WS_HT}              ; H soffset
    s_mul_i32 s71, s62, 224
    s_mul_i32 s29, s66, 114688
    s_add_u32 s71, s71, s29
    s_lshl_b32 s72, s65, 11
    s_add_u32 s72, s72, {HB}                 ; H lds
    s_and_b32 s29, s65, 1
    s_mul_i32 s73, s29, {UOFF}
    s_mul_i32 s30, s66, {WSL}
    s_add_u32 s73, s73, s30
    s_add_u32 s73, s73, {WB}                 ; W lds
    s_cmp_eq_u32 s29, 0
    s_cselect_b32 s36, s12, s14
    s_cselect_b32 s37, s13, s15
    s_mov_b32 s38, {512*1792*2:#x}
    s_mov_b32 s39, 0x20000
    """)
    for i in range(7):
        k(f"""
        v_add_u32 v6, {64*i}, v2
        v_mul_u32_u24 v5, 4682, v6
        v_lshrrev_b32 v5, 16, v5
        v_mul_u32_u24 v4, 14, v5
        v_sub_u32 v6, v6, v4
        v_mul_u32_u24 v5, 3584, v5
        v_lshl_add_u32 v{VW+i}, v6, 4, v5
        """)
        if i&3: k(f"v_subrev_u32 v{VW+i}, {1024*(i&3)}, v{VW+i}")
    q=[]
    if ROT1:
        k("s_lshr_b32 s59, s2, 6\ns_lshl_b32 s59, s59, 1\ns_bfe_u32 s29, s2, 0x30003\ns_add_u32 s59, s59, s29\ns_and_b32 s59, s59, 7\ns_lshl_b32 s59, s59, 1")
        assert not WARM&4
        k("s_lshl_b32 s75, s59, 17")
    def wso(j):
        if ROT1: k(f"s_add_u32 s31, s59, {j}\ns_and_b32 s31, s31, 15\ns_mul_i32 s31, s31, 114688\ns_add_u32 s31, s31, s71")
        else: k(f"s_add_u32 s31, s71, {j*114688}")
    def issueH(j):
        if j>15 or (E_('NOH',0) and j>=NH): return
        k(f"s_add_u32 m0, s72, {(j%NH)*HS}")
        if ROT1: k(f"s_add_u32 s31, s75, {j*131072}\ns_and_b32 s31, s31, 0x1fffff\ns_add_u32 s31, s31, s70")
        else: k(f"s_add_u32 s31, s70, {j*131072}")
        k(f"buffer_load_dwordx4 v{VH}, s[4:7], s31 offen sc1 lds\nbuffer_load_dwordx4 v{VH+1}, s[4:7], s31 offen offset:1024 sc1 lds")
        q.extend([("H",j)]*2)
    def issueW(j):
        if j>15: return
        k(f"s_add_u32 m0, s73, {(j%NW)*WSL}"); wso(j)
        for i in range(7):
            if i==4: k(f"s_add_u32 m0, s73, {(j%NW)*WSL+4096}")
            k(f"buffer_load_dwordx4 v{VW+i}, s[36:39], s31 offen offset:{1024*(i&3)} lds")
        q.extend([("W",j)]*7)
    def issueW1(b,par):
        if b>15 or (E_('NOW',0) and b>6): return
        o=(b%NW-par)*WSL
        k(f"s_add_u32 m0, s73, {o&0xffffffff:#x}"); wso(b-par)
        for i in range(7):
            if i==4: k(f"s_add_u32 m0, s73, {(o+4096)&0xffffffff:#x}")
            k(f"buffer_load_dwordx4 v{VW+i}, s[36:39], s31 offen offset:{1024*(i&3)} lds")
        q.extend([("V",b)]*7)
    RW=E_("RW",0); NA2=E_("NA2",0); NB6=E_("NB6",4); TR=float(os.environ.get("TR","3.5")); TJ=E_("TJ",3)
    rw=[0]
    def regW(upto):
        while rw[0]<upto:
            n=rw[0]; rw[0]+=1
            if n==4: k("s_cmp_eq_u32 s66, 0\ns_cbranch_scc1 L_rw4")
            for i in range(7):
                k(f"buffer_load_dwordx4 v[{HA+28*n+4*i}:{HA+28*n+4*i+3}], v{VW+i}, s[36:39], s59 offen offset:{1024*(i&3)}")
            if n<4:
                k(f"s_add_u32 s59, s59, {2*114688}"); q.extend([("R",n)]*7)
            else: k("L_rw4:")
    def putW(b,par):
        n=(b-7)>>1
        k(f"v_add_u32 v109, {((b%NW-par)*WSL)&0xffffffff:#x}, v99")
        for i in range(7): k(f"ds_write_b128 v109, v[{HA+28*n+4*i}:{HA+28*n+4*i+3}] offset:{1024*i}")
    if RW:
        assert NW==7
        k(f"s_mul_i32 s59, s66, {(-2*114688)&0xffffffff:#x}\ns_add_u32 s59, s59, s71\ns_add_u32 s59, s59, {8*114688}\nv_add_u32 v99, s73, v7")
        regW(NA2); q.clear()
    wt=[0]
    def issueT(n):
        for _ in range(n):
            if wt[0]<2*NHS:
                wtload(k, HA, wt[0]); q.append(("T",wt[0])); wt[0]+=1
    k("s_barrier        ; B3")
    ts(k,4,False)
    eloads(k)
    uprep(k, 0)
    ts(k,5,False)
    if WARM&4: warm()
    for i in range(4):
        for j in range(4):
            if i==0: k(f"v_lshlrev_b32 v{24+2*j}, 16, v{CS+j}\nv_and_b32 v{25+2*j}, 0xffff0000, v{CS+j}")
            else:
                k(f"v_lshlrev_b32 v32, 16, v{CS+4*i+j}\nv_and_b32 v33, 0xffff0000, v{CS+4*i+j}")
                k(f"v_add_f32 v{24+2*j}, v{24+2*j}, v32\nv_add_f32 v{25+2*j}, v{25+2*j}, v33")
    for i in range(4): k(f"v_permlane32_swap_b32 v{24+i}, v{28+i}")
    for i in range(4): k(f"v_add_f32 v{24+i}, v{24+i}, v{28+i}")
    for i in range(2): k(f"v_permlane16_swap_b32 v{24+i}, v{26+i}")
    for i in range(2): k(f"v_add_f32 v{24+i}, v{24+i}, v{26+i}")
    for i in range(2): k(f"v_add_f32_dpp v{24+i}, v{24+i}, v{24+i} row_ror:8 row_mask:0xf bank_mask:0xf")
    k(f"""
    s_cmp_ge_u32 s52, 28
    s_cbranch_scc1 L_h4
    s_mov_b32 exec_lo, 0x00ff00ff
    s_mov_b32 exec_hi, 0x00ff00ff
    buffer_store_dwordx2 v[24:25], v13, s[4:7], s53 offen sc1
    s_mov_b64 exec, -1
    L_h4:
    """)
    issueW(0); issueW(2)
    if RW: regW(min(NB6,4))
    else: issueT(N1)
    k(f"""
    v_and_b32 v3, 255, v0
    v_lshrrev_b32 v4, 5, v3
    v_lshlrev_b32 v4, 4, v4
    v_and_b32 v5, 15, v3
    v_add_u32 v4, v4, v5
    v_bfe_u32 v5, v3, 4, 1
    v_mul_u32_u24 v5, 112, v5
    v_add_u32 v4, v4, v5
    v_min_u32 v4, 223, v4
    v_lshlrev_b32 v4, 2, v4
    v_add_u32 v110, {PART}, v4
    s_lshl_b32 s29, s65, 10
    s_add_u32 s29, s29, {PART}
    v_add_u32 v111, s29, v7
    v_cmp_le_u32 vcc, 28, v2
    v_mov_b32 v5, {1792*4-28*16}
    v_cndmask_b32 v4, 0, v5, vcc
    v_add_u32 v4, v4, v7
    v_cmp_gt_u32 vcc, 56, v2
    v_mov_b32 v5, 0x7fffff00
    v_cndmask_b32 v4, v5, v4, vcc
    s_mul_i32 s53, s62, 448
    s_mul_i32 s29, s65, {4*3584*4}
    s_add_u32 s53, s53, s29
    s_add_u32 s53, s53, {WS_CS}
    v_lshlrev_b32 v3, 4, v3
    v_add_u32 v3, {AP}, v3
    v_lshrrev_b32 v5, 4, v2                  ; row
    v_and_b32 v15, 15, v2
    v_lshlrev_b32 v12, 6, v15
    v_lshlrev_b32 v13, 4, v15
    v_lshl_add_u32 v6, v5, 12, v13
    s_lshl_b32 s29, s65, 8
    s_add_u32 s29, s29, {PART}
    v_add_u32 v13, s29, v13
    v_lshlrev_b32 v15, 5, v15
    v_and_b32 v1, 1, v5
    v_lshl_add_u32 v15, v1, 4, v15
    v_lshrrev_b32 v1, 1, v5
    v_lshl_add_u32 v15, v1, 9, v15
    s_lshl_b32 s29, s65, 10
    s_add_u32 s29, s29, {PART}
    v_add_u32 v15, s29, v15
    v_and_b32 v1, 7, v2
    v_lshlrev_b32 v14, 4, v1
    v_lshl_add_u32 v14, v5, 10, v14
    v_bfe_u32 v8, v2, 3, 1
    v_lshl_add_u32 v14, v8, 9, v14
    v_lshl_add_u32 v1, v1, 2, v5
    v_lshlrev_b32 v1, 4, v1
    s_lshl_b32 s29, s65, 9
    s_add_u32 s29, s29, {FS}
    v_add_u32 v1, s29, v1
    s_lshl_b32 s54, s62, 17
    s_lshl_b32 s29, s65, 15
    s_add_u32 s54, s54, s29
    s_add_u32 s54, s54, s70
    s_lshl_b32 s29, s61, 4
    s_add_u32 s29, s29, s62
    s_lshl_b32 s56, s29, 6
    s_add_u32 s56, s56, {WS_F4}              ; own F4
    s_lshl_b32 s55, s29, 10
    s_lshl_b32 s29, s65, 8
    s_add_u32 s55, s55, s29
    s_add_u32 s55, s55, {WS_SP}
    s_lshl_b32 s57, s61, 10
    s_add_u32 s57, s57, {WS_F4}              ; F4 row
    s_lshl_b32 s58, s61, 14
    s_lshl_b32 s29, s65, 7
    s_add_u32 s58, s58, s29
    s_add_u32 s58, s58, {WS_SP}
    v_lshlrev_b32 v5, {SP2}, v2
    s_mov_b32 s29, {WS_F2:#x}
    """)
    k(f"s_waitcnt vmcnt({min(63,len(q))})")
    if RW: regW(NB6)
    k("s_barrier        ; B6")
    PF1=E_("PF1",0)
    if not PF1:
        issueW(4)
        if not RW: issueT(N3)
    if NW==7:
        k("s_cmp_lg_u32 s66, 0\ns_cbranch_scc1 L_w6")
        q6=len(q); issueW1(6,0); del q[q6:]
        k("L_w6:")
    if RW: regW(5)
    if not E_("POLM",0):
        k("s_cmp_lg_u32 s3, 4\ns_cbranch_scc1 L_p2x")
        poll(k,"L_p2",5,4,29,48,SL2,SP2)
    k("s_barrier        ; B7")
    assert not (PF1 and NW==7)
    ts(k,7,False)
    S=24; Q=32; RB=[40,44]; T=52
    SH=E_("SH",3); HR=E_("HR",2); JS=E_("JS",0); CJ=E_("CJ",8); CK=E_("CK",12)
    hh=[0]
    def upH(n):
        while hh[0]<=min(n,15): issueH(hh[0]); hh[0]+=1
    def issueS():
        k(f"buffer_load_dwordx4 v[40:43], v6, s[4:7], s54 offen sc1\ns_add_u32 s54, s54, 16384\nbuffer_load_dwordx4 v[44:47], v6, s[4:7], s54 offen sc1")
        q.extend([("S",0),("S",1)])
    upH(SH-1)
    if JS<0: issueS()
    if PF1: issueW(4)
    def issueC():
        for p in range(4):
            k(f"buffer_load_dwordx4 v[{CS+4*p}:{CS+4*p+3}], v4, s[4:7], s53 offen sc1"); q.append(("C",p))
            if p<3: k(f"s_add_u32 s53, s53, {3584*4}")
    def vwait(f):
        n=max(idx for idx,x in enumerate(q) if f(x))
        k(f"s_waitcnt vmcnt({min(63,len(q)-1-n)})")
    def smath(r):
        vwait(lambda x: x==("S",r))
        for d in range(4):
            src=RB[r]+d
            if r==0:
                k(f"v_lshlrev_b32 v{S+2*d}, 16, v{src}\nv_and_b32 v{S+2*d+1}, 0xffff0000, v{src}")
                k(f"v_mul_f32 v{Q+2*d}, v{S+2*d}, v{S+2*d}\nv_mul_f32 v{Q+2*d+1}, v{S+2*d+1}, v{S+2*d+1}")
            else:
                t=T+2*(d&1)
                k(f"v_lshlrev_b32 v{t}, 16, v{src}\nv_and_b32 v{t+1}, 0xffff0000, v{src}")
                k(f"v_add_f32 v{S+2*d}, v{S+2*d}, v{t}\nv_add_f32 v{S+2*d+1}, v{S+2*d+1}, v{t+1}")
                k(f"v_fmac_f32 v{Q+2*d}, v{t}, v{t}\nv_fmac_f32 v{Q+2*d+1}, v{t+1}, v{t+1}")
    def sred():
        for i in range(8): k(f"v_permlane32_swap_b32 v{S+i}, v{Q+i}")
        for i in range(8): k(f"v_add_f32 v{S+i}, v{S+i}, v{Q+i}")
        for i in range(4): k(f"v_permlane16_swap_b32 v{S+i}, v{S+4+i}")
        for i in range(4): k(f"v_add_f32 v{S+i}, v{S+i}, v{S+4+i}")
        k(f"ds_write_b128 v15, v[{S}:{S+3}]\ns_waitcnt lgkmcnt(0)")
    if J0<0: smath(0)
    if J1<0: smath(1)
    if J2<0: sred()
    rest=2*NHS-wt[0]
    HJ=[int(x) for x in os.environ.get("HJ","").split(",") if x]
    HL=E_('HL',1)
    q0=list(q); h0=hh[0]; w0=wt[0]
    k('s_cmp_lg_u32 s66, 0\ns_cbranch_scc1 L_par1')
    for par,j in [(a,b) for a in range(2) for b in range(16)]:
        if j==0:
            q[:]=q0; hh[0]=h0; wt[0]=w0
            if par: k('s_branch L_parx\nL_par1:')
            if NW==7 and par==0:
                i6=max(i for i,x in enumerate(q) if x==('W',4))+1+(0 if RW else N3)
                q[i6:i6]=[('V',6)]*7
        vwait(lambda x: (x[0]=="W" and x[1]+par<=j) or (x[0]=="V" and x[1]<=j) or (x[0]=="H" and x[1]<=j) or (x[0]=="C" and j>=CK) or (x[0]=="P" and j>=JF) or (x[0]=="F" and j>=JQ) or (x[0]=="G" and j>=JR))
        k("s_barrier")
        if STAMP and j in HJ: ts(k,[1,2,4,5,7][HJ.index(j)],False)
        if j==JF:
            flag(k,56,48); q.append(("f",0))
        if j==JQ:
            k(f"v_xor_b32 v48, s60, v50\nv_cmp_ne_u32 vcc, 0, v48\ns_cbranch_vccz L_p4{par}x")
            poll(k,f"L_p4{par}",12,1,57,48,0)
            for i in range(4):
                k(f"buffer_load_dwordx4 v[{24+4*i}:{27+4*i}], v14, s[4:7], s58 offen sc1"); q.append(("G",i))
                if i<3: k("s_add_u32 s58, s58, 4096")
        if j==JP:
            k("buffer_load_dword v50, v12, s[4:7], s57 offen sc1"); q.append(("F",0))
        WF=E_('WF',1)
        if WF and j>=2 and (j+NW)%2==par and not RW: issueW1(j+NW-2,par)
        upH(min(j+NH-2+HL, SH-1+HR*(j+1)))
        if j==JS: issueS()
        if not WF and j>=2 and (j+NW)%2==par and not RW: issueW1(j+NW-2,par)
        if RW:
            nfree=len([b for b in range(7,16) if b%2==par and b-5<j])
            lim=36 if nfree==(5 if par else 4) else 7*nfree
            tgt=min(lim, int(TR*(j-TJ+1))) if j<15 else 36
            if 3<=j<=11 and (j+4)%2==par: k("s_waitcnt lgkmcnt(0)")
            if tgt>wt[0]: issueT(tgt-wt[0])
            if 2<=j and j+5<=15 and (j+5)%2==par: putW(j+5,par)
        if j==CJ: issueC()
        TJ2=E_("TJ2",11)
        if not RW and j>=TJ2: issueT(-(-rest//(16-TJ2)))
        if j==CK:
            assert CK>J2+1 and CK>CJ and JC>CK
            for i in range(8): k(f"v_add_f32 v{CS+i}, v{CS+i}, v{CS+8+i}")
            for i in range(4): k(f"v_add_f32 v{CS+i}, v{CS+i}, v{CS+4+i}")
            k(f"ds_write_b128 v111, v[{CS}:{CS+3}]\ns_waitcnt lgkmcnt(0)")
        if j==J0: smath(0)
        if j==J1: smath(1)
        if j==J2: sred()
        if j==J2+1:
            for p in range(4): k(f"ds_read_b128 v[{24+4*p}:{27+4*p}], v13 offset:{1024*p}")
            k("s_waitcnt lgkmcnt(2)")
            for i in range(4): k(f"v_add_f32 v{24+i}, v{24+i}, v{28+i}")
            k("s_waitcnt lgkmcnt(0)")
            for i in range(4): k(f"v_add_f32 v{32+i}, v{32+i}, v{36+i}")
            for i in range(4): k(f"v_add_f32 v{40+i}, v{24+i}, v{32+i}")
            k("s_mov_b64 exec, 0xffff\nbuffer_store_dwordx4 v[40:43], v7, s[4:7], s55 offen sc1\ns_mov_b64 exec, -1"); q.append(("P",0))
        if j==JC:
            for p in range(4): k(f"ds_read_b32 v{CS+p}, v110 offset:{1024*p}")
            k(f"s_waitcnt lgkmcnt(0)\nv_add_f32 v{CS}, v{CS}, v{CS+1}\nv_add_f32 v{CS+2}, v{CS+2}, v{CS+3}\nv_add_f32 v{CS}, v{CS}, v{CS+2}")
            k(f"""
            v_cvt_pk_bf16_f32 v9, v{CS}, v{CS}
            v_and_b32 v9, 0xffff0000, v9
            v_sub_f32 v8, v{CS}, v9
            v_cvt_pk_bf16_f32 v10, v8, v8
            v_and_b32 v10, 0xffff0000, v10
            v_sub_f32 v8, v8, v10
            v_cvt_pk_bf16_f32 v16, v9, v10
            v_cvt_pk_bf16_f32 v17, v8, 0
            v_mov_b32 v18, 0
            v_mov_b32 v19, 0
            ds_write_b128 v3, v[16:19]
            s_waitcnt lgkmcnt(0)
            """)
        if j==JR:
            for i in range(8): k(f"v_add_f32 v{24+i}, v{24+i}, v{32+i}")
            for i in range(4): k(f"v_add_f32 v{24+i}, v{24+i}, v{28+i}")
            k(f"""
            v_permlane32_swap_b32 v24, v26
            v_permlane32_swap_b32 v25, v27
            v_add_f32 v24, v24, v26
            v_add_f32 v25, v25, v27
            v_permlane16_swap_b32 v24, v25
            v_add_f32 v40, v24, v25
            v_mov_b32_dpp v41, v40 row_ror:8 row_mask:0xf bank_mask:0xf
            v_mul_f32 v40, 0x3b000000, v40
            v_mul_f32 v41, 0x3b000000, v41
            v_fma_f32 v41, -v40, v40, v41
            v_max_f32 v41, 0, v41
            v_cvt_pk_bf16_f32 v41, v41, v41
            v_and_b32 v41, 0xffff0000, v41
            v_add_f32 v41, 0x3727c5ac, v41
            v_cvt_pk_bf16_f32 v41, v41, v41
            v_and_b32 v41, 0xffff0000, v41
            v_sqrt_f32 v41, v41
            v_cvt_pk_bf16_f32 v44, -v40, -v40
            v_cvt_pk_bf16_f32 v41, v41, v41
            v_and_b32 v47, 0xffff0000, v41
            v_rcp_f32 v46, v47
            v_mov_b32 v45, v44
            v_mul_f32 v46, 0xbfb8aa3b, v46
            s_mov_b32 exec_lo, 0x00ff00ff
            s_mov_b32 exec_hi, 0x00ff00ff
            ds_write_b128 v1, v[44:47]
            s_mov_b64 exec, -1
            s_waitcnt lgkmcnt(0)
            """)
    k('L_parx:')
    assert hh[0]==16
    assert wt[0]==2*NHS
    ts(k,8,False)
    k(f"""
    v_add_u32 v6, {112*1024}, v7
    v_lshrrev_b32 v3, 2, v2
    v_lshlrev_b32 v3, 12, v3
    v_and_b32 v4, 3, v2
    v_lshl_add_u32 v3, v4, 4, v3
    v_add_u32 v4, {65536-1024}, v3
    s_and_b32 s29, s65, 1
    s_lshl_b32 s30, s64, 1
    s_add_u32 s29, s29, s30          ; d block32
    s_lshl_b32 s30, s63, 1
    s_add_u32 s30, s30, s66          ; l block32
    s_lshl_b32 s52, s29, 17
    s_lshl_b32 s53, s30, 6
    s_add_u32 s52, s52, s53
    s_add_u32 s52, s52, {WS_HT}      ; h soffset
    s_lshl_b32 s74, s30, 15
    s_lshl_b32 s53, s29, 6
    s_add_u32 s74, s74, s53
    s_lshl_b32 s53, s65, 11
    s_add_u32 s53, s53, {G2R}
    s_mov_b32 s8, s18
    s_mov_b32 s9, s19
    s_mov_b32 s10, {2048*512*2:#x}
    s_barrier        ; B8
    {TSI+' s[92:93]' if STAMP else ''}
    s_mov_b32 m0, s53
    s_nop 0
    buffer_load_dwordx4 v3, s[4:7], s52 offen sc1 lds
    buffer_load_dwordx4 v4, s[4:7], s52 offen offset:1024 sc1 lds
    v_lshrrev_b32 v3, 5, v2
    v_bfe_u32 v4, v2, 2, 2
    v_lshl_add_u32 v4, v3, 4, v4
    v_lshlrev_b32 v4, 6, v4
    v_bfe_u32 v5, v2, 4, 1
    v_lshl_add_u32 v4, v5, 5, v4
    v_and_b32 v5, 3, v2
    v_lshl_add_u32 v4, v5, 3, v4
    v_add_u32 v4, s53, v4
    v_and_b32 v5, 31, v2
    v_lshlrev_b32 v5, 10, v5
    v_lshl_add_u32 v5, v3, 5, v5
    s_lshl_b32 s29, s65, 14
    s_add_u32 s29, s29, {G2H}
    v_add_u32 v3, s29, v7
    s_lshl_b32 s29, s65, 12
    v_add_u32 v1, s29, v7
    s_barrier        ; B9
    """)
    ts(k,9,False)
    A2=48
    free=[8+8*i for i in range(5)]
    slot={}; q=[]
    nxt=[0]
    def ldB():
        s=nxt[0]
        if s>=NHS or not free: return False
        b=free.pop(0); slot[s]=b
        hgload(k, b, s, NHS)
        q.extend([(s,0),(s,1)]); nxt[0]+=1
        return True
    while ldB(): pass
    for s in range(NHS):
        for lb in range(2):
            k(f"s_waitcnt vmcnt({len(q)-1-q.index((s,lb))})")
            for db in range(2):
                c=A2+16*(db+2*lb); a=HA+8*s+4*db; b=slot[s]+4*lb
                k(f"v_mfma_f32_32x32x16_bf16 v[{c}:{c+15}], v[{a}:{a+3}], v[{b}:{b+3}], {'0' if s==0 else f'v[{c}:{c+15}]'}")
        if s>=1:
            free.append(slot[s-1]); free.append(HA+8*(s-1))
        ldB(); ldB()
    for w in range(4):
        if w<3: k(f"s_cmp_lg_u32 s65, {w}\ns_cbranch_scc1 L4_w{w}")
        for qd in range(4):
            if qd==w: continue
            for j in range(4):
                k(f"ds_write_b128 v3, v[{A2+16*qd+4*j}:{A2+16*qd+4*j+3}] offset:{qd*4096+j*1024}")
        if w:
            for j in range(16): k(f"v_mov_b32 v{A2+j}, v{A2+16*w+j}")
        if w<3: k(f"s_branch L4_red\nL4_w{w}:")
    k("L4_red:")
    HT=8; HF=16; P=112
    for j in range(4): k(f"ds_read_b64_tr_b16 v[{HT+2*j}:{HT+1+2*j}], v4 offset:{j*256}")
    k("s_waitcnt lgkmcnt(0)\ns_barrier        ; B10")
    for p in range(4):
        for j in range(4): k(f"ds_read_b128 v[{P+16*p+4*j}:{P+3+16*p+4*j}], v1 offset:{G2M+p*16384+j*1024}")
    for j in range(8):
        k(f"v_and_b32 v{HF+1+2*j}, 0xffff0000, v{HT+j}\nv_lshlrev_b32 v{HF+2*j}, 16, v{HT+j}")
    def addp(p):
        for j in range(8): k(f"v_pk_add_f32 v[{A2+2*j}:{A2+2*j+1}], v[{A2+2*j}:{A2+2*j+1}], v[{P+16*p+2*j}:{P+1+16*p+2*j}]")
    for p in range(1,4):
        k(f"s_add_u32 s29, s65, {p}\ns_and_b32 s29, s29, 3\ns_lshl_b32 s29, s29, 14\ns_add_u32 s29, s29, {G2H}\nv_add_u32 v3, s29, v1")
        k(f"s_waitcnt lgkmcnt(12)");
        for j in range(4): k(f"ds_read_b128 v[{P+16*(p+3)+4*j}:{P+3+16*(p+3)+4*j}], v3 offset:{j*1024}")
        addp(p-1)
    for p in range(3,7):
        k(f"s_waitcnt lgkmcnt({4*(6-p)})"); addp(p)
    for j in range(8): k(f"v_cvt_pk_bf16_f32 v{64+j}, v{A2+2*j}, v{A2+2*j+1}")
    for j in range(8): k(f"v_lshlrev_b32 v{A2+2*j}, 16, v{64+j}\nv_and_b32 v{A2+2*j+1}, 0xffff0000, v{64+j}")
    for j in range(8): k(f"v_pk_add_f32 v[{A2+2*j}:{A2+2*j+1}], v[{A2+2*j}:{A2+2*j+1}], v[{HF+2*j}:{HF+1+2*j}]")
    for j in range(8): k(f"v_cvt_pk_bf16_f32 v{64+j}, v{A2+2*j}, v{A2+2*j+1}")
    for jj in range(2):
        k(f"buffer_store_dwordx4 v[{64+4*jj}:{67+4*jj}], v5, s[8:11], s74 offen offset:{16*jj} {os.environ.get('OUTM','')}")
    ts(k,3,False)
    flush(k,[1,8,6,3],10,4)

if __name__=="__main__":
    out = sys.argv[1] if len(sys.argv)>1 else "m.s"
    finish(out, [gen_m()])
```

```python
import sys, os
sys.path.insert(0,'gen')
from common import *
from k2 import cmul, direct, rho, LOG2E, INV2PI
E_=lambda n,d: int(os.environ.get(n,str(d)),0)
WS_WT=0x1000000
WS_F1=0x1400000; WS_F2=0x1410000; WS_F3=0x1420000; WS_TAG=0x1430000; WS_F4=0x1440000; WS_SP=0x1450000
WSL=14464; UOFF=7184; NW=E_("NW",7); WB=0
TB=0; TA=33792; TBL=16896; TROW=528
UC=72320; UCC=4640; UCH=4*UCC
KC=109440; KCC=4224
XT=126336; T1=XT+8192; RED=142720
LNB=XT; ROWS=2112; WDS=143360
NH=E_("NH",8 if NW==6 else 6); HS=8192; HB=NW*WSL
MISC=HB+NH*HS; PART=MISC; FS=MISC+4096; AP=MISC+6144
G2M=0; G2H=65536; G2R=131072
PF=160768
LDS=163840
CUM=[2,4,6,8,10,13,15,18,20,23,25,28,30,32,32,32]
def hb(j): return max(j,(CUM[j]-1)>>1)
NM=10; NHS=18
MA=176; HA=112
N1=E_("N1",36); N3=E_("N3",0)
J0=E_("J0",2); J1=E_("J1",2); J2=E_("J2",3); JF=E_("JF",7); JP=E_("JP",10); JQ=E_("JQ",12); JR=E_("JR",14); JC=E_("JC",13)
SL1=E_("SL1",0); SL2=E_("SL2",20); SL3=E_("SL3",8); SLP=E_("SLP",2)
LIMIT=4000
ROT1=E_('ROT1',0); ROT2=E_('ROT2',0); SP1=E_('SP1',6); SP2=E_('SP2',6)
TSI='s_memtime' if E_('CY',0) else 's_memrealtime'
def ts(k,i,drain=True):
    if not STAMP: return
    k(f"{TSI} s[{80+2*i}:{81+2*i}]")
    if drain: k("s_waitcnt lgkmcnt(0)")
def flush(k, idxs, base, wave):
    if STAMP==3:
        DI=E_("DI",0); DWV=E_("DWV",0); DW=E_("DBGWG",-1)
        if DWV!=wave: return
        if DW>=0: k(f"s_cmp_lg_u32 s2, {DW}\ns_cbranch_scc1 L_df{wave}")
        k(f"""s_cmp_lg_u32 s3, {wave}
        s_cbranch_scc1 L_df{wave}
        s_waitcnt lgkmcnt(0)
        s_add_u32 s29, s{80+2*DI}, 6000
        s_mov_b32 s23, 0
        L_dl{wave}:
        s_memrealtime s[30:31]
        s_add_u32 s23, s23, 1
        s_waitcnt lgkmcnt(0)
        s_sub_u32 s30, s30, s29
        s_cmp_gt_u32 s23, 200000
        s_cbranch_scc1 L_df{wave}
        s_cmp_lt_i32 s30, 0
        s_cbranch_scc1 L_dl{wave}
        L_df{wave}:""")
        return
    if STAMP!=2:
        stamp_flush(k,0,11,20,3,vt=8)
        if STAMP and wave==0: k("s_sub_u32 s29, s74, s72\nv_mov_b32 v8, s29\nbuffer_store_dword v8, v9, s[76:79], 0 offen offset:44")
        return
    DW=E_("DBGWG",0)
    k(f"s_cmp_lg_u32 s2, {DW}\ns_cbranch_scc1 L_df{wave}\ns_cmp_lg_u32 s3, {wave}\ns_cbranch_scc1 L_df{wave}")
    k("s_load_dwordx2 s[76:77], s[0:1], 96\ns_mov_b32 s78, 256\ns_mov_b32 s79, 0x20000\nv_mov_b32 v9, 0\ns_waitcnt lgkmcnt(0)")
    for n,i in enumerate(idxs):
        k(f"s_sub_u32 s29, s{80+2*i}, s80\nv_mov_b32 v8, s29\nbuffer_store_dword v8, v9, s[76:79], 0 offen offset:{4*(base+n)}")
    k(f"L_df{wave}:")
def poll(k, lab, voff, n, soff, t, first, sp=6):
    if first: k(f"s_sleep {first}")
    k(f"s_mov_b32 s31, 0\n{lab}:")
    if sp==2 and n==4: k(f"buffer_load_dwordx4 v[{t}:{t+3}], v7, s[4:7], s{soff} offen sc1")
    else:
      for j in range(n):
        if j: k(f"s_add_u32 s30, s{soff}, {(64<<sp)*j}")
        k(f"buffer_load_dword v{t+j}, v{voff}, s[4:7], s{soff if j==0 else 30} offen sc1")
    k("s_add_u32 s31, s31, 1\ns_waitcnt vmcnt(0)")
    for j in range(n): k(f"v_xor_b32 v{t+j}, s60, v{t+j}")
    for j in range(1,n): k(f"v_or_b32 v{t}, v{t}, v{t+j}")
    k(f"""
    v_cmp_ne_u32 vcc, 0, v{t}
    s_cmp_gt_u32 s31, {LIMIT}
    s_cbranch_scc1 {lab}x
    s_cbranch_vccz {lab}x
    s_sleep {SLP}
    s_branch {lab}
    {lab}x:
    """)
def flag(k, soff, t):
    k(f"""
    v_mov_b32 v{t}, s60
    v_mov_b32 v{t+1}, 0
    s_mov_b64 exec, 1
    buffer_store_dword v{t}, v{t+1}, s[4:7], s{soff} offen sc1
    s_mov_b64 exec, -1
    """)
EB=56
def eloads(k):
    k(f"""
    buffer_load_dwordx4 v[{EB}:{EB+3}], v71, s[32:35], s26 offen sc1
    buffer_load_dwordx4 v[{EB+4}:{EB+7}], v70, s[32:35], s26 offen sc1
    buffer_load_dwordx4 v[{EB+8}:{EB+11}], v70, s[32:35], s26 offen offset:32 sc1
    """)
def uprep(k, nafter):
    k(f"s_waitcnt vmcnt({nafter+1})")
    for j in range(6): k(f"v_mov_b32 v{36+j}, v{EB+1+j}")
    k(f"""
    ds_write_b128 v68, v[{EB+2}:{EB+5}] offset:{UCC}
    ds_write_b128 v68, v[{EB+4}:{EB+7}] offset:{3*UCC}
    ds_write_b128 v68, v[36:39]
    ds_write_b128 v68, v[38:41] offset:{2*UCC}
    """)
    for j in range(4):
        k(f"v_lshlrev_b32 v{44+2*j}, 16, v{EB+4+j}\nv_and_b32 v{45+2*j}, 0xffff0000, v{EB+4+j}")
    for j in range(8): k(f"v_mul_f32 v{44+j}, s28, v{44+j}")
    for j in range(4): k(f"v_cvt_pk_bf16_f32 v{52+j}, v{44+2*j}, v{45+2*j}")
    k(f"""
    ds_write_b128 v69, v[52:55] offset:{T1-XT}
    s_waitcnt vmcnt({nafter})
    ds_write_b128 v69, v[{EB+8}:{EB+11}]
    s_waitcnt lgkmcnt(0)
    s_barrier
    """)
def kparams(k):
    k(f"""
    s_lshl_b32 s29, s66, 4
    s_lshr_b32 s27, s27, s29
    s_lshl_b32 s27, s27, 16
    s_lshr_b32 s28, s28, s26
    s_lshl_b32 s28, s28, 16
    v_mov_b32 v33, {LOG2E}
    v_mul_f32 v34, s27, v33
    v_exp_f32 v34, v34
    v_lshlrev_b32 v8, 16, v8
    v_lshlrev_b32 v9, 16, v9
    v_cvt_pk_bf16_f32 v34, v34, v34
    v_and_b32 v34, 0xffff0000, v34
    v_mul_f32 v8, v8, v33
    v_exp_f32 v8, v8
    v_mul_f32 v9, v9, v34
    v_cvt_pk_bf16_f32 v8, v8, v8
    v_and_b32 v8, 0xffff0000, v8
    v_mul_f32 v8, v8, v34
    v_mul_f32 v9, {INV2PI}, v9
    v_mul_f32 v8, 0xbfb8aa3b, v8
    """)
def common_addr(k):
    k(f"""
    v_mov_b32 v24, 0
    v_mov_b32 v25, 0
    v_mov_b32 v26, 0
    v_mov_b32 v27, 0
    s_mul_i32 s29, s3, {UCC}
    s_add_u32 s29, s29, {UC}
    v_add_u32 v28, s29, v7
    s_mul_i32 s29, s65, {KCC}
    s_add_u32 s29, s29, {KC}
    v_add_u32 v29, s29, v7
    s_mov_b64 exec, 0xffffff
    ds_write_b128 v28, v[24:27]
    s_mov_b64 exec, 0x7f
    ds_write_b128 v29, v[24:27]
    s_mov_b64 exec, -1
    s_mul_i32 s29, s66, {TBL}
    s_mul_i32 s31, s25, {TA}
    s_add_u32 s29, s29, s31
    s_and_b32 s31, s3, 1
    s_lshl_b32 s31, s31, 8
    s_add_u32 s29, s29, s31
    v_lshlrev_b32 v30, 2, v2
    v_add_u32 v30, s29, v30
    s_mul_i32 s29, s25, {UCH}
    s_add_u32 s29, s29, {UC+24*16}
    v_and_b32 v3, 255, v0
    v_lshlrev_b32 v69, 4, v3
    v_add_u32 v68, s29, v69
    s_lshl_b32 s29, s25, 12
    s_add_u32 s29, s29, {XT}
    v_add_u32 v69, s29, v69
    v_lshlrev_b32 v70, 6, v3
    v_subrev_u32 v71, 64, v70
    s_lshl_b32 s23, s2, 14
    s_add_u32 s32, s20, s23
    s_addc_u32 s33, s21, 0
    s_mov_b32 s34, 16384
    s_mov_b32 s35, 0x20000
    s_and_b32 s61, s2, 1
    s_lshl_b32 s61, s61, 3
    s_bfe_u32 s23, s2, 0x30003
    s_add_u32 s61, s61, s23          ; rb
    s_bfe_u32 s62, s2, 0x20001
    s_lshl_b32 s62, s62, 2
    s_lshr_b32 s23, s2, 6
    s_add_u32 s62, s62, s23          ; fs
    s_and_b32 s63, s2, 7
    s_lshl_b32 s63, s63, 2
    s_bfe_u32 s23, s2, 0x20003
    s_add_u32 s63, s63, s23          ; tl
    s_lshr_b32 s64, s2, 5            ; td
    s_mul_i32 s67, s64, 112
    s_mul_i32 s23, s65, 28
    s_mul_i32 s29, s25, {NM}
    s_add_u32 s23, s23, s29
    s_add_u32 s67, s67, s23
    s_lshl_b32 s67, s67, 11
    s_add_u32 s67, s67, {WS_WT}
    s_mul_i32 s68, s63, 224
    s_add_u32 s68, s68, s23
    s_lshl_b32 s68, s68, 10
    s_add_u32 s68, s68, {WS_HG}
    """)
def rot2init(k, N):
    if not ROT2: return
    k(f"s_mul_i32 s41, s64, {N}\ns_lshr_b32 s41, s41, 3\ns_lshl_b32 s40, s41, 11\ns_lshl_b32 s41, s41, 10\ns_add_u32 s42, s67, s40\ns_add_u32 s43, s68, s41")
def hgload(k, b, s, N):
    if ROT2:
        if s: k(f"s_add_u32 s41, s41, 1024\ns_cmp_eq_u32 s41, {N*1024}\ns_cselect_b32 s41, 0, s41\ns_add_u32 s43, s68, s41")
        k(f"buffer_load_dwordx4 v[{b}:{b+3}], v7, s[4:7], s43 offen sc1")
        k(f"buffer_load_dwordx4 v[{b+4}:{b+7}], v6, s[4:7], s43 offen sc1")
        return
    if s and s%4==0: k("s_add_u32 s68, s68, 4096")
    k(f"buffer_load_dwordx4 v[{b}:{b+3}], v7, s[4:7], s68 offen offset:{1024*(s&3)} sc1")
    k(f"buffer_load_dwordx4 v[{b+4}:{b+7}], v6, s[4:7], s68 offen offset:{1024*(s&3)} sc1")
def wtload(k, base, i):
    if ROT2:
        N=NM if base==MA else NHS
        if i and i%2==0: k(f"s_add_u32 s40, s40, 2048\ns_cmp_eq_u32 s40, {N*2048}\ns_cselect_b32 s40, 0, s40\ns_add_u32 s42, s67, s40")
        k(f"buffer_load_dwordx4 v[{base+4*i}:{base+4*i+3}], v7, s[4:7], s42 offen offset:{1024*(i&1)} sc1")
        return
    if i and i%4==0: k("s_add_u32 s67, s67, 4096")
    k(f"buffer_load_dwordx4 v[{base+4*i}:{base+4*i+3}], v7, s[4:7], s67 offen offset:{1024*(i&3)} sc1")

def gen_m():
    k = K("sequential_preLN__ssm_conv_s4d__glu_gated_glu__prompt_kernel", 256, 512, LDS, 256)
    k("L_begin:\ns_cmp_ge_u32 s2, 256\ns_cbranch_scc1 L_end")
    ts(k,0,False)
    k(f"""
    s_load_dwordx16 s[36:51], s[0:1], 0
    s_load_dwordx8 s[12:19], s[0:1], 64
    s_load_dwordx2 s[20:21], s[0:1], 104
    v_lshrrev_b32 v1, 6, v0
    v_and_b32 v2, 63, v0
    v_lshlrev_b32 v7, 4, v2
    v_readfirstlane_b32 s3, v1
    v_and_b32 v3, 255, v0
    s_lshl_b32 s24, s2, 9
    v_lshl_add_u32 v4, v3, 1, s24
    v_mov_b32 v5, 0
    s_lshl_b32 s22, s2, 2
    s_and_b32 s65, s3, 3
    s_lshr_b32 s25, s3, 2
    s_lshl_b32 s26, s25, 4
    s_bfe_u32 s66, s3, 0x10001
    s_mov_b32 s6, {WS_SIZE:#x}
    s_mov_b32 s7, 0x20000
    s_mov_b32 s23, {WS_TAG:#x}
    s_cmp_ge_u32 s3, 4
    s_cbranch_scc1 L_help
    """)
    gen_main(k)
    gen_help(k)
    k("L_end:\ns_endpgm\nL_stop:")
    return k

def gen_main(k):
    k(f"""
    s_lshl_b32 s29, s2, 13
    s_lshl_b32 s30, s3, 11
    s_add_u32 s29, s29, s30
    s_mov_b32 s10, {2048*512*2:#x}
    s_mov_b32 s11, 0x20000
    s_waitcnt lgkmcnt(0)
    s_mov_b32 s8, s36
    s_mov_b32 s9, s37
    s_mov_b32 s4, s20
    s_mov_b32 s5, s21
    buffer_load_dwordx4 v[12:15], v7, s[8:11], s29 offen
    buffer_load_dwordx4 v[16:19], v7, s[8:11], s29 offen offset:1024
    global_load_ushort v8, v4, s[38:39]
    global_load_ushort v9, v4, s[40:41]
    buffer_load_dword v10, v5, s[4:7], s23 offen sc1
    s_load_dword s27, s[46:47], s22
    s_load_dword s28, s[48:49], s22
    """)
    common_addr(k)
    X=12; F=36; O=52
    k(f"""
    s_lshl_b32 s24, s3, 2
    s_add_u32 s24, s24, {PF}
    v_mov_b32 v1, s24
    ds_write_b32 v1, v24
    v_mov_b32 v1, 0x3b000000
    s_mul_i32 s24, s3, {2*ROWS}
    s_add_u32 s24, s24, {LNB}
    v_lshlrev_b32 v4, 5, v2
    v_add_u32 v4, s24, v4
    v_bfe_u32 v5, v2, 2, 2
    v_mul_u32_u24 v5, {ROWS}, v5
    v_lshrrev_b32 v6, 4, v2
    v_lshl_add_u32 v5, v6, 5, v5
    v_and_b32 v6, 3, v2
    v_lshl_add_u32 v5, v6, 3, v5
    s_lshl_b32 s24, s3, 9
    s_add_u32 s24, s24, {LNB}
    v_add_u32 v5, s24, v5
    v_lshrrev_b32 v11, 2, v2
    v_lshlrev_b32 v11, 14, v11
    v_lshl_add_u32 v11, v6, 4, v11
    s_lshl_b32 s24, s3, 20
    s_lshl_b32 s29, s2, 6
    s_add_u32 s24, s24, s29
    """)
    for i in range(2):
        k(f"s_waitcnt vmcnt({4-i})")
        if i==0: ts(k,1,False)
        for j in range(4):
            k(f"v_lshlrev_b32 v{F+8*i+2*j}, 16, v{X+4*i+j}\nv_and_b32 v{F+1+8*i+2*j}, 0xffff0000, v{X+4*i+j}")
        f=F+8*i; S,Q=20+2*i,21+2*i
        k(f"v_add_f32 v{S}, v{f}, v{f+1}\nv_mul_f32 v{Q}, v{f}, v{f}\nv_fmac_f32 v{Q}, v{f+1}, v{f+1}")
        for j in range(2,8): k(f"v_add_f32 v{S}, v{S}, v{f+j}\nv_fmac_f32 v{Q}, v{f+j}, v{f+j}")
    for dpp in ("row_shr:1","row_shr:2","row_shr:4","row_shr:8"):
        for r in range(20,24): k(f"v_add_f32_dpp v{r}, v{r}, v{r} {dpp} row_mask:0xf bank_mask:0xf bound_ctrl:1")
    for dpp in ("row_bcast:15 row_mask:0xa","row_bcast:31 row_mask:0xc"):
        for r in range(20,24): k(f"v_add_f32_dpp v{r}, v{r}, v{r} {dpp} bank_mask:0xf")
    for r in range(4): k(f"v_readlane_b32 s{52+r}, v{20+r}, 63")
    for i in range(2):
        M,V,T=24+3*i,25+3*i,26+3*i
        k(f"""
        v_mul_f32 v{M}, s{52+2*i}, v1
        v_mul_f32 v{V}, s{53+2*i}, v1
        v_fma_f32 v{V}, -v{M}, v{M}, v{V}
        v_max_f32 v{V}, 0, v{V}
        v_cvt_pk_bf16_f32 v{T}, v{M}, v{V}
        v_lshlrev_b32 v{M}, 16, v{T}
        v_and_b32 v{V}, 0xffff0000, v{T}
        v_add_f32 v{V}, 0x3727c5ac, v{V}
        v_cvt_pk_bf16_f32 v{V}, v{V}, v{V}
        v_and_b32 v{V}, 0xffff0000, v{V}
        v_sqrt_f32 v{V}, v{V}
        v_cvt_pk_bf16_f32 v{V}, v{V}, v{V}
        v_and_b32 v{V}, 0xffff0000, v{V}
        v_rcp_f32 v{V}, v{V}
        """)
    for i in range(2):
        M,V=24+3*i,25+3*i; f=F+8*i; o=O+8*i
        for j in range(8): k(f"v_sub_f32 v{f+j}, v{f+j}, v{M}")
        for j in range(4): k(f"v_cvt_pk_bf16_f32 v{o+2*j}, v{f+2*j}, v{f+2*j+1}")
        for j in range(4): k(f"v_lshlrev_b32 v{f+2*j}, 16, v{o+2*j}\nv_and_b32 v{f+2*j+1}, 0xffff0000, v{o+2*j}")
        for j in range(8): k(f"v_mul_f32 v{f+j}, v{f+j}, v{V}")
        for j in range(4): k(f"v_cvt_pk_bf16_f32 v{o+2*j}, v{f+2*j}, v{f+2*j+1}\nv_mov_b32 v{o+2*j+1}, v{X+4*i+j}")
        k(f"ds_write_b128 v4, v[{o}:{o+3}] offset:{i*ROWS}\nds_write_b128 v4, v[{o+4}:{o+7}] offset:{i*ROWS+16}")
    k("s_waitcnt lgkmcnt(0)\ns_barrier        ; B1")
    for it in range(4):
        k(f"ds_read_b64_tr_b16 v[{12+4*it}:{13+4*it}], v5 offset:{it*128}")
        k(f"ds_read_b64_tr_b16 v[{14+4*it}:{15+4*it}], v5 offset:{it*128+4*ROWS}")
    for it in range(4):
        k(f"s_waitcnt lgkmcnt({6-2*it})")
        k(f"buffer_store_dwordx4 v[{12+4*it}:{15+4*it}], v11, s[4:7], s24 offen sc1")
        if it<3: k(f"s_add_u32 s24, s24, {16*16384}")
    ts(k,2,False)
    k("s_waitcnt vmcnt(4)\nv_readfirstlane_b32 s60, v10")
    kparams(k)
    k("s_mul_i32 s60, s60, 1664525\ns_add_u32 s60, s60, 1013904223")
    W=36; X0=38; X1=40; T=42; C=44
    direct(k, W, 8, 9, 8, T)
    k(f"v_mov_b32 v{C}, 0x00003f80\nds_write_b32 v30, v{C}")
    k(f"v_cvt_pk_bf16_f32 v{C+1}, v{W}, v{W+1}\nds_write_b32 v30, v{C+1} offset:{TROW}")
    cur=W
    for j in range(2,32):
        nxt = X0 if cur!=X0 else X1
        cmul(k, nxt, cur, W, T)
        c=C+(j&3)
        k(f"v_cvt_pk_bf16_f32 v{c}, v{nxt}, v{nxt+1}\nds_write_b32 v30, v{c} offset:{TROW*j}")
        cur=nxt
    k(f"""
    v_and_b32 v4, 31, v2
    v_mul_u32_u24 v4, {TROW}, v4
    v_lshrrev_b32 v5, 5, v2
    v_lshl_add_u32 v4, v5, 4, v4
    s_mul_i32 s29, s66, {TBL}
    v_add_u32 v4, s29, v4
    s_waitcnt vmcnt(0) lgkmcnt(0)
    s_barrier        ; B2
    """)
    ts(k,3)
    NB=6; KR=112
    def rd(s):
        b=KR+8*(s%NB)
        k(f"ds_read_b128 v[{b}:{b+3}], v4 offset:{TA+32*s}\nds_read_b128 v[{b+4}:{b+7}], v4 offset:{TB+32*s}")
    for s in range(NB-1): rd(s)
    k(f"""
    s_mul_i32 s29, s3, {KCC}
    s_add_u32 s29, s29, {KC+7*16}
    v_add_u32 v5, s29, v7
    v_and_b32 v8, 1, v2
    v_mul_u32_u24 v8, {KCC}, v8
    v_bfe_u32 v9, v2, 1, 3
    v_lshrrev_b32 v10, 4, v2
    v_sub_u32 v9, v9, v10
    v_add_u32 v9, 3, v9
    v_lshl_add_u32 v8, v9, 4, v8
    s_mul_i32 s29, s66, {2*KCC}
    s_and_b32 s69, s3, 1                     ; c-half
    s_lshl_b32 s56, s69, 8
    s_add_u32 s29, s29, s56
    s_add_u32 s29, s29, {KC}
    v_add_u32 v8, s29, v8
    v_and_b32 v9, 3, v2
    v_mul_u32_u24 v11, {UCC}, v9
    v_bfe_u32 v12, v2, 2, 2
    v_lshl_add_u32 v13, v12, 3, v10
    v_lshl_add_u32 v11, v13, 4, v11
    s_mul_i32 s29, s66, {UCH}
    s_sub_u32 s29, s29, s56
    s_add_u32 s29, s29, {UC+16*16}
    v_add_u32 v11, s29, v11
    v_lshlrev_b32 v13, 5, v10
    v_lshl_add_u32 v13, v9, 2, v13
    v_lshl_add_u32 v13, v12, 7, v13
    v_and_b32 v14, 1, v2
    v_cmp_eq_u32 s[58:59], 1, v14
    """)
    D=16
    PE=E_("PE",-1)
    def early():
        k(f"s_cmp_lg_u32 s3, 0\ns_cbranch_scc1 L_pe\nv_lshlrev_b32 v3, {SP1}, v2\ns_mov_b32 s30, {WS_F1:#x}")
        for j in range(4):
            k(f"buffer_load_dword v{52+j}, v3, s[4:7], s30 offen sc1")
            if j<3: k(f"s_add_u32 s30, s30, {64<<SP1}")
        k("L_pe:")
    for s in range(17):
        if s==PE: early()
        if s==16: break
        if s+NB-1<16: rd(s+NB-1)
        k(f"s_waitcnt lgkmcnt({2*(min(15,s+NB-1)-s)})")
        b=KR+8*(s%NB)
        k(f"v_mfma_f32_32x32x16_bf16 v[{D}:{D+15}], v[{b}:{b+3}], v[{b+4}:{b+7}], {'0' if s==0 else f'v[{D}:{D+15}]'}")
    e=lambda r: D+r
    O=32
    k(f"v_cndmask_b32 v48, v{e(11)}, v{e(12)}, s[58:59]\nv_cndmask_b32 v49, v{e(13)}, v{e(14)}, s[58:59]")
    k("s_cmp_eq_u32 s69, 0\ns_cbranch_scc1 L2_a0")
    def grp(idx, pairs):
        o=O+4*idx
        for t,(lo,hi) in enumerate(pairs):
            if t>0 and pairs[t-1]==(lo,hi): k(f"v_mov_b32 v{o+t}, v{o+t-1}")
            else: k(f"v_cvt_pk_bf16_f32 v{o+t}, v{lo}, v{hi}")
        k(f"ds_write_b128 v5, v[{o}:{o+3}] offset:{idx*1024}")
    grp(0,[(e(7),e(6)),(e(5),e(4)),(e(3),e(2)),(e(1),e(0))])
    grp(1,[(e(10),e(10)),(e(9),e(9)),(e(9),e(8)),(e(8),e(8))])
    grp(2,[(e(12),e(12)),(e(12),48),(e(11),e(11)),(e(11),e(11))])
    grp(3,[(e(14),e(14)),(e(14),49),(e(13),e(13)),(e(13),e(13))])
    k("s_branch L2_conv\nL2_a0:")
    k("v_mov_b32 v50, 0")
    k(f"v_mov_b32_dpp v50, v{e(7)} wave_shr:1 row_mask:0xf bank_mask:0xf bound_ctrl:1")
    grp(1,[(e(10),e(9)),(e(9),e(9)),(e(8),e(8)),(e(8),e(8))])
    grp(2,[(e(12),e(12)),(48,e(11)),(e(11),e(11)),(e(11),e(11))])
    grp(3,[(e(14),e(14)),(49,e(13)),(e(13),e(13)),(e(13),e(13))])
    grp(0,[(e(6),e(5)),(e(4),e(3)),(e(2),e(1)),(e(0),50)])
    k(f"""
    L2_conv:
    v_lshlrev_b32 v3, {SP1}, v2
    s_mov_b32 s29, {WS_F1:#x}
    s_cmp_lg_u32 s3, 0
    s_cbranch_scc1 L_p1x
    """)
    if PE>=0:
        k("s_waitcnt vmcnt(0)")
        for j in range(4): k(f"v_xor_b32 v{52+j}, s60, v{52+j}")
        k("v_or_b32 v52, v52, v53\nv_or3_b32 v52, v52, v54, v55\nv_cmp_ne_u32 vcc, 0, v52\ns_cbranch_vccz L_p1x")
    poll(k,"L_p1",3,4,29,52,SL1,SP1)
    k("s_waitcnt lgkmcnt(0)\ns_barrier        ; B3")
    ts(k,4)
    eloads(k)
    AF=[48,112]; BF=[80,144]; ACC=16
    def rdA(buf,g,cl): k(f"ds_read_b128 v[{AF[buf]+4*g}:{AF[buf]+4*g+3}], v8 offset:{512*g+64*cl}")
    def rdB(buf,t,cl): k(f"ds_read_b128 v[{BF[buf]+4*t}:{BF[buf]+4*t+3}], v11 offset:{512*t+(12-4*cl)*16}")
    for g in range(8): rdA(1,g,0)
    uprep(k, 0)
    ts(k,5)
    k("s_setprio 1")
    for t in range(8): rdB(1,t,0)
    first=[True]*8
    for cl in range(4):
        buf=(cl&1)^1
        pend=[]
        if cl<3:
            for g in range(8): pend += [("A",g),("B",g)]
        seq=[(t,g) for t in range(8) for g in range(t+1)]
        issued=0
        for idx,(t,g) in enumerate(seq):
            if g==0:
                if cl==0: k(f"s_waitcnt lgkmcnt({min(15,7-t+issued)})")
                else: k(f"s_waitcnt lgkmcnt({min(15,14-2*t+issued)})")
            a=AF[buf]+4*g; b=BF[buf]+4*(t-g); c=ACC+4*t
            k(f"v_mfma_f32_16x16x32_bf16 v[{c}:{c+3}], v[{a}:{a+3}], v[{b}:{b+3}], {'0' if first[t] else f'v[{c}:{c+3}]'}")
            first[t]=False
            start = 4
            if pend and idx>=start and (idx%2==0 or len(seq)-idx<=len(pend)+2):
                kind,j=pend.pop(0)
                (rdA if kind=="A" else rdB)(buf^1,j,cl+1); issued+=1
        assert not pend
    k(f"""
    s_lshl_b32 s29, s3, 12
    s_add_u32 s29, s29, {RED}
    v_add_u32 v4, s29, v7
    s_xor_b32 s29, s3, 1
    s_lshl_b32 s29, s29, 12
    s_add_u32 s29, s29, {RED}
    v_add_u32 v5, s29, v7
    s_lshl_b32 s29, s3, 11
    s_lshl_b32 s57, s2, 13
    s_add_u32 s57, s57, s29
    s_add_u32 s57, s57, {WS_HT}
    s_add_u32 s29, s29, {XT}
    v_add_u32 v6, s29, v13
    v_add_u32 v9, s29, v7
    """)
    XR=112
    for t in range(4):
        k(f"ds_read_b32 v{XR+4*t}, v6 offset:{512*t}\nds_read_b32 v{XR+1+4*t}, v6 offset:{512*t+16}")
        k(f"ds_read_b32 v{XR+2+4*t}, v6 offset:{512*t+T1-XT}\nds_read_b32 v{XR+3+4*t}, v6 offset:{512*t+16+T1-XT}")
    k("s_cmp_eq_u32 s69, 0\ns_cbranch_scc1 L2_r0")
    for t in range(4): k(f"ds_write_b128 v4, v[{ACC+4*t}:{ACC+4*t+3}] offset:{1024*t}")
    k("s_waitcnt lgkmcnt(0)")
    for j in range(16): k(f"v_mov_b32 v{ACC+j}, v{ACC+16+j}")
    k("s_branch L2_r1\nL2_r0:")
    for t in range(4): k(f"ds_write_b128 v4, v[{ACC+16+4*t}:{ACC+16+4*t+3}] offset:{1024*t}")
    k(f"""
    L2_r1:
    s_lshl_b32 s29, s3, 2
    s_add_u32 s29, s29, {PF}
    v_mov_b32 v8, s29
    v_xor_b32 v10, 4, v8
    ds_write_b32 v8, v8
    s_mov_b32 s31, 0
    L_b5:
    ds_read_b32 v11, v10
    s_add_u32 s31, s31, 1
    s_waitcnt lgkmcnt(0)
    v_cmp_eq_u32 vcc, 0, v11
    s_cmp_gt_u32 s31, 100000
    s_cbranch_scc1 L_b5x
    s_cbranch_vccnz L_b5
    L_b5x:
    """)
    for t in range(4): k(f"ds_read_b128 v[{48+4*t}:{51+4*t}], v5 offset:{1024*t}")
    for t in range(4):
        for hh in range(2):
            i=2*t+hh
            k(f"v_lshlrev_b32 v{64+2*i}, 16, v{XR+4*t+hh}\nv_and_b32 v{65+2*i}, 0xffff0000, v{XR+4*t+hh}")
            k(f"v_lshlrev_b32 v{80+2*i}, 16, v{XR+2+4*t+hh}\nv_and_b32 v{81+2*i}, 0xffff0000, v{XR+2+4*t+hh}")
    for t in range(4):
        k(f"s_waitcnt lgkmcnt({3-t+2*t})")
        a=ACC+4*t
        for r in range(4): k(f"v_add_f32 v{a+r}, v{a+r}, v{48+4*t+r}")
        def rnd(): k(f"v_cvt_pk_bf16_f32 v{a}, v{a}, v{a+1}\nv_cvt_pk_bf16_f32 v{a+2}, v{a+2}, v{a+3}")
        def unp():
            k(f"v_and_b32 v{a+1}, 0xffff0000, v{a}\nv_and_b32 v{a+3}, 0xffff0000, v{a+2}")
            k(f"v_lshlrev_b32 v{a}, 16, v{a}\nv_lshlrev_b32 v{a+2}, 16, v{a+2}")
        rnd(); unp()
        for r in range(4): k(f"v_add_f32 v{a+r}, v{a+r}, v{80+4*t+r}")
        rnd(); unp()
        for r in range(4): k(f"v_add_f32 v{a+r}, v{a+r}, v{64+4*t+r}")
        rnd()
        k(f"ds_write_b32 v6, v{a} offset:{512*t}\nds_write_b32 v6, v{a+2} offset:{512*t+16}")
    k(f"""
    s_waitcnt lgkmcnt(0)
    ds_read_b128 v[48:51], v9
    ds_read_b128 v[52:55], v9 offset:1024
    s_waitcnt lgkmcnt(1)
    buffer_store_dwordx4 v[48:51], v7, s[4:7], s57 offen sc1
    s_waitcnt lgkmcnt(0)
    buffer_store_dwordx4 v[52:55], v7, s[4:7], s57 offen offset:1024 sc1
    """)
    ts(k,6,False)
    rot2init(k, NM)
    MSL=E_("MSL",0)
    NA=4; AW=48; BW=[16,32]; ACC=64
    k(f"""
    v_lshrrev_b32 v3, 4, v2                  ; q
    v_bfe_u32 v4, v2, 2, 2                   ; r
    v_lshl_add_u32 v5, v3, 2, v4             ; row 4q+r
    v_and_b32 v6, 3, v2                      ; c
    v_mul_u32_u24 v8, 224, v5
    v_and_b32 v10, 1, v6
    v_lshl_add_u32 v10, v10, 3, v8
    v_lshrrev_b32 v11, 1, v6
    v_mul_u32_u24 v11, {UOFF}, v11
    s_lshl_b32 s29, s66, 4
    s_add_u32 s29, s29, {WB+96}
    v_add3_u32 v10, v10, v11, s29            ; A mixed
    v_add_u32 v11, {4*WSL}, v10
    v_lshl_add_u32 v8, v6, 3, v8
    s_lshl_b32 s29, s66, 7
    s_add_u32 s29, s29, {WB}
    v_add_u32 v8, s29, v8                    ; A normal
    v_add_u32 v9, {4*WSL}, v8
    v_lshlrev_b32 v1, 8, v5
    v_lshl_add_u32 v1, v6, 3, v1
    v_add_u32 v1, {HB}, v1
    v_and_b32 v5, 7, v5
    s_lshl_b32 s29, s69, 2
    v_xor_b32 v5, s29, v5
    """)
    for lb in range(4):
        k(f"v_xor_b32 v6, {lb}, v5\nv_lshl_add_u32 v{12+lb}, v6, 5, v1")
    k(f"""
    v_and_b32 v1, 15, v2                     ; m
    v_lshlrev_b32 v6, 4, v1
    s_lshl_b32 s29, s66, 11
    s_add_u32 s29, s29, {AP}
    v_add_u32 v4, s29, v6
    v_lshrrev_b32 v5, 3, v1
    v_lshl_add_u32 v5, v5, 7, v6
    s_lshl_b32 s29, s66, 7
    s_add_u32 s29, s29, {AP+96*16}
    v_add_u32 v5, s29, v5
    s_lshl_b32 s29, s69, 10
    s_add_u32 s29, s29, {FS}
    v_add_u32 v6, s29, v6
    v_add_u32 v1, s29, v7
    v_cmp_eq_u32 s[56:57], 0, v3
    s_lshl_b32 s70, s61, 1
    s_add_u32 s70, s70, s69
    s_mul_i32 s70, s70, 224
    s_mul_i32 s29, s62, 7
    s_add_u32 s70, s70, s29
    s_add_u32 s71, s70, 3
    s_lshl_b32 s29, s66, 2
    s_add_u32 s70, s70, s29
    s_lshl_b32 s70, s70, 10
    s_add_u32 s70, s70, {WS_HG}
    s_lshl_b32 s71, s71, 10
    s_lshl_b32 s29, s66, 9
    s_add_u32 s71, s71, s29
    s_add_u32 s71, s71, {WS_HG}
    v_lshlrev_b32 v3, {SP2}, v2
    s_lshl_b32 s29, s2, {SP2}
    s_add_u32 s29, s29, {WS_F2}
    {TSI+' s[82:83]' if STAMP and E_('B6S',0) else ''}
    s_waitcnt vmcnt(0)
    {TSI+' s[84:85]' if STAMP and E_('B6S',0) else ''}
    s_barrier        ; B6
    {TSI+' s[86:87]' if STAMP and E_('B6S',0) else ''}
    s_cmp_lg_u32 s3, 0
    s_cbranch_scc1 L_f2x
    """)
    flag(k,29,48)
    k("L_f2x:")
    if MSL: k(f"s_sleep {MSL}")
    NMA=E_("NMA",10); POLM=E_("POLM",1); TM0=E_("TM0",90); TMS=E_("TMS",2)
    for i in range(NMA): wtload(k, MA, i)
    if POLM:
        k(f"s_cmp_lg_u32 s3, 1\ns_cbranch_scc1 L_p2x\ns_mov_b32 s29, {WS_F2:#x}")
        poll(k,"L_p2",3,4,29,48,SL2,SP2)
    mt=[NMA]
    k("s_barrier        ; B7")
    ts(k,7)
    q=[]
    ZS=32; ZM=40
    FBB=E_("FBB",2)
    def rdA1(t,h=None):
        b=AW+4*(t%NA)
        if t>=119: return
        if h is None: rdA1(t,0); rdA1(t,1); return
        j=t//7; fb=t%7
        if j==16:
            if h: return
            if fb<6: k(f"ds_read_b128 v[{b}:{b+3}], v4 offset:{(fb>>1)*512+(fb&1)*256}")
            else: k(f"ds_read_b128 v[{b}:{b+3}], v5")
            q.append(("A",t)); return
        sl=j%NW
        va = (8 if fb<6 else 10) + (0 if sl<4 else 1)
        off=(sl%4)*WSL + ((fb&1)*UOFF + (fb>>1)*32 if fb<6 else 0)
        k(f"ds_read_b64_tr_b16 v[{b+2*h}:{b+2*h+1}], v{va} offset:{off+h*16*224}")
        q.append(("A",t))
    def rdB1(s,lb,h=None):
        b=BW[s&1]+4*lb
        if h is None: rdB1(s,lb,0); rdB1(s,lb,1); return
        if s==16:
            if h: return
            k(f"ds_read_b64 v[{b}:{b+1}], v6 offset:{lb*256}\nv_mov_b32 v{b+2}, 0\nv_mov_b32 v{b+3}, 0"); q.append(("B",s,lb)); return
        off=(s%NH)*HS
        k(f"ds_read_b64_tr_b16 v[{b+2*h}:{b+2*h+1}], v{12+lb} offset:{off+h*4096}")
        q.append(("B",s,lb))
    k("s_barrier        ; G0")
    if STAMP: k("s_memtime s[72:73]")
    ts(k,8)
    rdB1(0,0); rdA1(0)
    for lb in range(1,4): rdB1(0,lb)
    for t in range(1,NA): rdA1(t)
    waited=[-1]
    def need(tag):
        n=max(idx for idx,x in enumerate(q) if x==tag)
        if n>waited[0]:
            k(f"s_waitcnt lgkmcnt({len(q)-1-n})"); waited[0]=n
    for t in range(119):
        s=t//7; fb=t%7
        a=AW+4*(t%NA)
        for lb in range(4):
            if lb==0: need(("A",t))
            if fb==0:
                need(("B",s,lb))
                if s==16:
                    b=BW[0]+4*lb
                    k(f"v_cndmask_b32 v{b}, 0, v{b}, s[56:57]\nv_cndmask_b32 v{b+1}, 0, v{b+1}, s[56:57]")
            c=ACC+16*fb+4*lb; b=BW[s&1]+4*lb
            k(f"v_mfma_f32_16x16x32_bf16 v[{c}:{c+3}], v[{a}:{a+3}], v[{b}:{b+3}], {'0' if s==0 else f'v[{c}:{c+3}]'}")
            if s<16:
                if fb==FBB and lb==1 and s<15: k("s_barrier")
                if FBB<=fb<FBB+4 and lb in (1,2): rdB1(s+1,fb-FBB,lb-1)
            if s==16 and fb==1:
                k(f"ds_read_b64 v[{ZS+2*lb}:{ZS+2*lb+1}], v6 offset:{lb*256+8}"); q.append(("Z",0))
                if lb==3: k(f"ds_read_b64 v[{ZM}:{ZM+1}], v1 offset:8"); q.append(("Z",0))
            if lb==2 and t>=TM0 and (t-TM0)%TMS==0 and mt[0]<2*NM:
                wtload(k, MA, mt[0]); mt[0]+=1
            if lb==3: rdA1(t+NA,0)
            if lb==0 and t>0: rdA1(t-1+NA,1)
    while mt[0]<2*NM:
        wtload(k, MA, mt[0]); mt[0]+=1
    ts(k,10,False)
    if STAMP: k("s_memtime s[74:75]")
    k(f"""
    v_add_u32 v6, {112*1024}, v7
    v_and_b32 v4, 31, v2
    v_lshlrev_b32 v4, 4, v4
    v_lshrrev_b32 v5, 5, v2
    v_mul_u32_u24 v5, {112*1024}, v5
    v_add_u32 v4, v4, v5
    s_waitcnt lgkmcnt(0)
    """)
    def glu(gs, us, zs, outs):
        for g,z in zip(gs,zs): k(f"v_pk_mul_f32 v[{g}:{g+1}], v[{g}:{g+1}], v[{z}:{z+1}] op_sel_hi:[1,0]")
        for g in gs: k(f"v_exp_f32 v{g}, v{g}\nv_exp_f32 v{g+1}, v{g+1}")
        for g,z in zip(gs,zs): k(f"v_pk_fma_f32 v[{g}:{g+1}], v[{g}:{g+1}], v[{z}:{z+1}], v[{z}:{z+1}] op_sel:[0,1,1] op_sel_hi:[1,1,1]")
        for g in gs: k(f"v_rcp_f32 v{g}, v{g}\nv_rcp_f32 v{g+1}, v{g+1}")
        for g,u in zip(gs,us): k(f"v_pk_mul_f32 v[{g}:{g+1}], v[{g}:{g+1}], v[{u}:{u+1}]")
        for g,o in zip(gs,outs): k(f"v_cvt_pk_bf16_f32 v{o}, v{g}, v{g+1}")
    n=0
    for i in range(3):
        for L in range(2):
            cg=ACC+32*i+8*L; cu=cg+16; o=AW+4*(n&3); n+=1
            glu([cg,cg+2,cg+4,cg+6],[cu,cu+2,cu+4,cu+6],[ZS+4*L,ZS+4*L,ZS+4*L+2,ZS+4*L+2],[o,o+1,o+2,o+3])
            k(f"v_permlane16_swap_b32 v{o}, v{o+2}\nv_permlane16_swap_b32 v{o+1}, v{o+3}")
            k(f"buffer_store_dwordx4 v[{o}:{o+3}], v{7-L}, s[4:7], s70 offen offset:{1024*i} sc1")
        if i==0:
            c=ACC+96
            for r in range(4): k(f"v_permlane32_swap_b32 v{c+r}, v{c+8+r}\nv_permlane32_swap_b32 v{c+4+r}, v{c+12+r}")
            for r in range(4): k(f"v_permlane16_swap_b32 v{c+r}, v{c+4+r}\nv_permlane16_swap_b32 v{c+8+r}, v{c+12+r}")
    c=ACC+96; o=AW+4*(n&3)
    glu([c,c+2,c+4,c+6],[c+8,c+10,c+12,c+14],[ZM]*4,[o,o+1,o+2,o+3])
    k(f"buffer_store_dwordx4 v[{o}:{o+3}], v4, s[4:7], s71 offen sc1")
    k(f"""
    s_setprio 0
    s_lshl_b32 s29, s61, 4
    s_add_u32 s29, s29, s62
    s_lshl_b32 s29, s29, 6
    s_add_u32 s29, s29, {WS_F3}
    s_lshl_b32 s23, s3, 14
    v_add_u32 v5, s23, v7
    v_and_b32 v3, 15, v2
    v_lshlrev_b32 v3, 6, v3
    s_waitcnt vmcnt(0)
    s_barrier        ; B8
    s_cmp_lg_u32 s3, 0
    s_cbranch_scc1 L_p3x
    """)
    flag(k,29,48)
    k(f"s_lshr_b32 s29, s63, 1\ns_lshl_b32 s29, s29, 10\ns_add_u32 s29, s29, {WS_F3}")
    poll(k,"L_p3",3,1,29,48,SL3)
    k("s_barrier        ; B9")
    ts(k,9,False)
    A2=48
    slots=[8+8*i for i in range(5)]+[112+8*i for i in range(5)]
    for s in range(NM): hgload(k, slots[s], s, NM)
    for s in range(NM):
        for lb in range(2):
            k(f"s_waitcnt vmcnt({2*(NM-1-s)+1-lb})")
            for db in range(2):
                c=A2+16*(db+2*lb); a=MA+8*s+4*db; b=slots[s]+4*lb
                k(f"v_mfma_f32_32x32x16_bf16 v[{c}:{c+15}], v[{a}:{a+3}], v[{b}:{b+3}], {'0' if s==0 else f'v[{c}:{c+15}]'}")
    for j in range(16):
        k(f"ds_write_b128 v5, v[{A2+4*j}:{A2+4*j+3}] offset:{G2M+j*1024}")
    k(f"""
    s_waitcnt lgkmcnt(0)
    s_barrier        ; B10
    s_or_b32 s23, s2, s3
    s_cmp_lg_u32 s23, 0
    s_cbranch_scc1 L_mend
    s_mov_b32 s29, {WS_TAG:#x}
    """)
    flag(k,29,48)
    k("L_mend:")
    flush(k,[1,2,3,4,5,6,7,8,10,9],0,0)
    k("s_endpgm")

def gen_help(k):
    VH=100; VW=102
    CS=72; WJ=88
    k(f"""
    L_help:
    v_lshrrev_b32 v12, 3, v2
    v_and_b32 v13, 7, v2
    v_lshlrev_b32 v14, 4, v13
    v_lshl_add_u32 v14, v12, 10, v14
    v_add_u32 v15, {8192-1024}, v14
    s_lshr_b32 s29, s2, 1                    ; kf
    s_and_b32 s30, s2, 1
    s_lshl_b32 s30, s30, 2
    s_add_u32 s30, s30, s65
    s_lshl_b32 s31, s29, 14
    s_lshl_b32 s52, s30, 7
    s_add_u32 s31, s31, s52
    s_lshl_b32 s52, s65, 11
    s_add_u32 s52, s52, {WDS}
    s_mov_b32 m0, s52
    s_mul_i32 s53, s30, 112
    s_add_u32 s53, s53, s29
    s_lshl_b32 s53, s53, 11
    s_add_u32 s53, s53, {WS_WT}
    s_mov_b32 s10, {1792*512*2:#x}
    s_mov_b32 s11, 0x20000
    s_waitcnt lgkmcnt(0)
    s_mov_b32 s8, s16
    s_mov_b32 s9, s17
    s_mov_b32 s4, s20
    s_mov_b32 s5, s21
    s_cmp_ge_u32 s2, 224
    s_cbranch_scc1 L_h0
    buffer_load_dwordx4 v14, s[8:11], s31 offen lds
    buffer_load_dwordx4 v15, s[8:11], s31 offen offset:1024 lds
    L_h0:
    global_load_ushort v8, v4, s[38:39]
    global_load_ushort v9, v4, s[40:41]
    global_load_ushort v10, v4, s[42:43]
    global_load_ushort v11, v4, s[44:45]
    buffer_load_dword v16, v5, s[4:7], s23 offen sc1
    s_load_dword s27, s[46:47], s22
    s_load_dword s28, s[48:49], s22
    s_getpc_b64 s[54:55]
    L_pc:
    s_add_u32 s54, s54, L_begin-L_pc
    s_addc_u32 s55, s55, -1
    s_lshr_b32 s29, s2, 3
    s_lshl_b32 s29, s29, 2
    s_add_u32 s29, s29, s65
    s_lshl_b32 s29, s29, 9
    v_and_b32 v17, 7, v2
    v_lshl_add_u32 v17, v17, 6, s29
    v_min_u32 v17, L_stop-L_begin-4, v17
    global_load_dword v17, v17, s[54:55]
    """)
    common_addr(k)
    k(f"""
    v_lshrrev_b32 v18, 5, v2
    v_bfe_u32 v19, v2, 2, 2
    v_lshl_add_u32 v18, v18, 3, v19
    v_lshlrev_b32 v18, 7, v18
    v_and_b32 v19, 1, v2
    v_lshl_add_u32 v18, v19, 5, v18
    v_bfe_u32 v19, v2, 4, 1
    v_lshl_add_u32 v18, v19, 4, v18
    v_bfe_u32 v19, v2, 1, 1
    v_lshl_add_u32 v18, v19, 3, v18
    v_add_u32 v18, s52, v18
    s_barrier        ; B1
    s_cmp_ge_u32 s2, 224
    s_cbranch_scc1 L_h1
    s_waitcnt vmcnt(6)
    """)
    for db in range(2):
        k(f"ds_read_b64_tr_b16 v[{WJ+4*db}:{WJ+4*db+1}], v18 offset:{64*db}\nds_read_b64_tr_b16 v[{WJ+4*db+2}:{WJ+4*db+3}], v18 offset:{64*db+512}")
    k(f"""
    s_waitcnt lgkmcnt(0)
    buffer_store_dwordx4 v[{WJ}:{WJ+3}], v7, s[4:7], s53 offen sc1
    buffer_store_dwordx4 v[{WJ+4}:{WJ+7}], v7, s[4:7], s53 offen offset:1024 sc1
    s_waitcnt vmcnt(3)
    s_branch L_h2
    L_h1:
    s_waitcnt vmcnt(1) lgkmcnt(0)
    L_h2:
    v_readfirstlane_b32 s60, v16
    """)
    ts(k,1,False)
    kparams(k)
    k("s_mul_i32 s60, s60, 1664525\ns_add_u32 s60, s60, 1013904223")
    Z1=36; Z8=38; V=40; Z2=42; Z4=44; T=46; E=48; X0=50; X1=52; CC=54; C=56
    k("v_sub_f32 v9, 0, v9")
    direct(k, Z1, 8, 9, 1, T)
    direct(k, Z8, 8, 9, 8, T)
    direct(k, V, 8, 9, 256, T)
    k(f"""
    v_add_f32 v34, v34, v34
    v_lshlrev_b32 v10, 16, v10
    v_lshlrev_b32 v11, 16, v11
    v_mul_f32 v{CC}, v10, v34
    v_mul_f32 v{CC+1}, -v11, v34
    """)
    cnt=[0]
    def put(src, rows):
        c=C+(cnt[0]&3); cnt[0]+=1
        k(f"v_cvt_pk_bf16_f32 v{c}, v{src}, v{src+1}")
        for (r,h) in rows: k(f"ds_write_b32 v30, v{c} offset:{TROW*rho(r,h)}")
    put(CC,[(0,0)])
    cmul(k,Z2,Z1,Z1,T)
    cur=CC
    for r in range(1,8):
        nxt = X0 if cur!=X0 else X1
        cmul(k,nxt,cur,Z1,T); put(nxt,[(r,0)]); cur=nxt
    cmul(k,Z4,Z2,Z2,T)
    cmul(k,E,CC,V,T); put(E,[(0,1),(1,1)])
    cur=E
    for rows in ([(2,1)],[(3,1),(4,1),(5,1)],[(6,1)],[(7,1)]):
        nxt = X0 if cur!=X0 else X1
        cmul(k,nxt,cur,Z2,T); put(nxt,rows); cur=nxt
    ecur=E
    for h in (0,1):
        en = CC if ecur==E else E
        cmul(k,en,ecur,V,T); put(en,[(8,h)]); ecur=en
        cmul(k,X0,ecur,Z4,T); put(X0,[(9,h)])
        cmul(k,X1,X0,Z4,T); put(X1,[(10,h)])
    for (r,h) in ((11,0),(11,1),(13,0),(13,1)):
        en = CC if ecur==E else E
        cmul(k,en,ecur,V,T); put(en,[(r,h)]); ecur=en
        cmul(k,X0,ecur,Z8,T); put(X0,[(r+1,h)])
    k(f"""
    s_lshr_b32 s52, s2, 3
    s_min_u32 s53, s52, 27
    s_and_b32 s29, s2, 1
    s_mul_i32 s29, s29, 28
    s_add_u32 s29, s29, s53                  ; t
    s_mul_i32 s30, s29, 4682
    s_lshr_b32 s30, s30, 16                  ; kchunk
    s_mul_i32 s31, s30, 14
    s_sub_u32 s29, s29, s31
    s_cmp_ge_u32 s29, 7
    s_cselect_b32 s8, s14, s12
    s_cselect_b32 s9, s15, s13
    s_cselect_b32 s31, 7, 0
    s_cselect_b32 s53, {1792*4}, 0
    s_sub_u32 s29, s29, s31
    s_bfe_u32 s31, s2, 0x20001
    s_mul_i32 s31, s31, 7
    s_add_u32 s29, s29, s31                  ; cb
    s_lshl_b32 s30, s30, 2
    s_add_u32 s30, s30, s65
    s_mul_i32 s31, s30, {32*3584}
    s_lshl_b32 s54, s29, 7
    s_add_u32 s31, s31, s54                  ; W soffset
    s_mul_i32 s30, s30, {3584*4}
    s_lshl_b32 s29, s29, 8
    s_add_u32 s30, s30, s29
    s_add_u32 s53, s53, s30
    s_add_u32 s53, s53, {WS_CS}
    v_mul_u32_u24 v12, 3584, v12
    v_lshl_add_u32 v12, v13, 4, v12
    v_lshrrev_b32 v14, 4, v2
    v_lshlrev_b32 v14, 3, v14
    v_lshl_add_u32 v13, v13, 5, v14
    s_lshl_b32 s29, s2, {SP1}
    s_add_u32 s29, s29, {WS_F1}
    s_waitcnt vmcnt(0) lgkmcnt(0)
    s_barrier        ; B2
    s_cmp_lg_u32 s3, 4
    s_cbranch_scc1 L_h3
    """)
    flag(k,29,20)
    k("L_h3:")
    ts(k,2,False)
    for i in range(4):
        k(f"buffer_load_dwordx4 v[{CS+4*i}:{CS+4*i+3}], v12, s[8:11], s31 offen")
        if i<3: k(f"s_add_u32 s31, s31, {8*3584}")
    WARM=E_("WARM",2)
    def warm():
        if WARM&2: k("s_bitcmp1_b32 s2, 0\ns_cbranch_scc1 L_nw")
        k(f"s_mov_b32 s29, {8*114688-24*3584:#x}\ns_bitcmp1_b32 s2, 0\ns_cselect_b32 s29, {(-8*114688-24*3584)&0xffffffff:#x}, s29\ns_add_u32 s75, s75, s29")
        for i in range(4):
            k(f"buffer_load_dwordx4 v[{88}:{91}], v12, s[8:11], s75 offen")
            if i<3: k(f"s_add_u32 s75, s75, {8*3584}")
        if WARM&2: k("L_nw:")
    k("s_mov_b32 s75, s31")
    if WARM and not WARM&4: warm()
    rot2init(k, NHS)
    k(f"""
    v_lshrrev_b32 v3, 4, v2
    v_and_b32 v4, 15, v2
    v_lshlrev_b32 v5, 1, v3
    v_xor_b32 v4, v4, v5
    v_lshlrev_b32 v4, 4, v4
    v_lshl_add_u32 v4, v3, 12, v4
    s_lshl_b32 s29, s65, 15
    v_add_u32 v{VH}, s29, v4
    v_xor_b32 v4, 128, v{VH}
    v_add_u32 v{VH+1}, {16384-1024}, v4
    s_lshl_b32 s70, s61, 8
    s_add_u32 s70, s70, {WS_HT}              ; H soffset
    s_mul_i32 s71, s62, 224
    s_mul_i32 s29, s66, 114688
    s_add_u32 s71, s71, s29
    s_lshl_b32 s72, s65, 11
    s_add_u32 s72, s72, {HB}                 ; H lds
    s_and_b32 s29, s65, 1
    s_mul_i32 s73, s29, {UOFF}
    s_mul_i32 s30, s66, {WSL}
    s_add_u32 s73, s73, s30
    s_add_u32 s73, s73, {WB}                 ; W lds
    s_cmp_eq_u32 s29, 0
    s_cselect_b32 s36, s12, s14
    s_cselect_b32 s37, s13, s15
    s_mov_b32 s38, {512*1792*2:#x}
    s_mov_b32 s39, 0x20000
    """)
    for i in range(7):
        k(f"""
        v_add_u32 v6, {64*i}, v2
        v_mul_u32_u24 v5, 4682, v6
        v_lshrrev_b32 v5, 16, v5
        v_mul_u32_u24 v4, 14, v5
        v_sub_u32 v6, v6, v4
        v_mul_u32_u24 v5, 3584, v5
        v_lshl_add_u32 v{VW+i}, v6, 4, v5
        """)
        if i&3: k(f"v_subrev_u32 v{VW+i}, {1024*(i&3)}, v{VW+i}")
    q=[]
    if ROT1:
        k("s_lshr_b32 s59, s2, 6\ns_lshl_b32 s59, s59, 1\ns_bfe_u32 s29, s2, 0x30003\ns_add_u32 s59, s59, s29\ns_and_b32 s59, s59, 7\ns_lshl_b32 s59, s59, 1")
        assert not WARM&4
        k("s_lshl_b32 s75, s59, 17")
    def wso(j):
        if ROT1: k(f"s_add_u32 s31, s59, {j}\ns_and_b32 s31, s31, 15\ns_mul_i32 s31, s31, 114688\ns_add_u32 s31, s31, s71")
        else: k(f"s_add_u32 s31, s71, {j*114688}")
    def issueH(j):
        if j>15 or (E_('NOH',0) and j>=NH): return
        k(f"s_add_u32 m0, s72, {(j%NH)*HS}")
        if ROT1: k(f"s_add_u32 s31, s75, {j*131072}\ns_and_b32 s31, s31, 0x1fffff\ns_add_u32 s31, s31, s70")
        else: k(f"s_add_u32 s31, s70, {j*131072}")
        k(f"buffer_load_dwordx4 v{VH}, s[4:7], s31 offen sc1 lds\nbuffer_load_dwordx4 v{VH+1}, s[4:7], s31 offen offset:1024 sc1 lds")
        q.extend([("H",j)]*2)
    def issueW(j):
        if j>15: return
        k(f"s_add_u32 m0, s73, {(j%NW)*WSL}"); wso(j)
        for i in range(7):
            if i==4: k(f"s_add_u32 m0, s73, {(j%NW)*WSL+4096}")
            k(f"buffer_load_dwordx4 v{VW+i}, s[36:39], s31 offen offset:{1024*(i&3)} lds")
        q.extend([("W",j)]*7)
    def issueW1(b,par):
        if b>15 or (E_('NOW',0) and b>6): return
        o=(b%NW-par)*WSL
        k(f"s_add_u32 m0, s73, {o&0xffffffff:#x}"); wso(b-par)
        for i in range(7):
            if i==4: k(f"s_add_u32 m0, s73, {(o+4096)&0xffffffff:#x}")
            k(f"buffer_load_dwordx4 v{VW+i}, s[36:39], s31 offen offset:{1024*(i&3)} lds")
        q.extend([("V",b)]*7)
    RW=E_("RW",0); NA2=E_("NA2",0); NB6=E_("NB6",4); TR=float(os.environ.get("TR","3.5")); TJ=E_("TJ",3)
    rw=[0]
    def regW(upto):
        while rw[0]<upto:
            n=rw[0]; rw[0]+=1
            if n==4: k("s_cmp_eq_u32 s66, 0\ns_cbranch_scc1 L_rw4")
            for i in range(7):
                k(f"buffer_load_dwordx4 v[{HA+28*n+4*i}:{HA+28*n+4*i+3}], v{VW+i}, s[36:39], s59 offen offset:{1024*(i&3)}")
            if n<4:
                k(f"s_add_u32 s59, s59, {2*114688}"); q.extend([("R",n)]*7)
            else: k("L_rw4:")
    def putW(b,par):
        n=(b-7)>>1
        k(f"v_add_u32 v109, {((b%NW-par)*WSL)&0xffffffff:#x}, v99")
        for i in range(7): k(f"ds_write_b128 v109, v[{HA+28*n+4*i}:{HA+28*n+4*i+3}] offset:{1024*i}")
    if RW:
        assert NW==7
        k(f"s_mul_i32 s59, s66, {(-2*114688)&0xffffffff:#x}\ns_add_u32 s59, s59, s71\ns_add_u32 s59, s59, {8*114688}\nv_add_u32 v99, s73, v7")
        regW(NA2); q.clear()
    wt=[0]
    def issueT(n):
        for _ in range(n):
            if wt[0]<2*NHS:
                wtload(k, HA, wt[0]); q.append(("T",wt[0])); wt[0]+=1
    k("s_barrier        ; B3")
    ts(k,4,False)
    eloads(k)
    uprep(k, 0)
    ts(k,5,False)
    if WARM&4: warm()
    for i in range(4):
        for j in range(4):
            if i==0: k(f"v_lshlrev_b32 v{24+2*j}, 16, v{CS+j}\nv_and_b32 v{25+2*j}, 0xffff0000, v{CS+j}")
            else:
                k(f"v_lshlrev_b32 v32, 16, v{CS+4*i+j}\nv_and_b32 v33, 0xffff0000, v{CS+4*i+j}")
                k(f"v_add_f32 v{24+2*j}, v{24+2*j}, v32\nv_add_f32 v{25+2*j}, v{25+2*j}, v33")
    for i in range(4): k(f"v_permlane32_swap_b32 v{24+i}, v{28+i}")
    for i in range(4): k(f"v_add_f32 v{24+i}, v{24+i}, v{28+i}")
    for i in range(2): k(f"v_permlane16_swap_b32 v{24+i}, v{26+i}")
    for i in range(2): k(f"v_add_f32 v{24+i}, v{24+i}, v{26+i}")
    for i in range(2): k(f"v_add_f32_dpp v{24+i}, v{24+i}, v{24+i} row_ror:8 row_mask:0xf bank_mask:0xf")
    k(f"""
    s_cmp_ge_u32 s52, 28
    s_cbranch_scc1 L_h4
    s_mov_b32 exec_lo, 0x00ff00ff
    s_mov_b32 exec_hi, 0x00ff00ff
    buffer_store_dwordx2 v[24:25], v13, s[4:7], s53 offen sc1
    s_mov_b64 exec, -1
    L_h4:
    """)
    issueW(0); issueW(2)
    if RW: regW(min(NB6,4))
    else: issueT(N1)
    k(f"""
    v_and_b32 v3, 255, v0
    v_lshrrev_b32 v4, 5, v3
    v_lshlrev_b32 v4, 4, v4
    v_and_b32 v5, 15, v3
    v_add_u32 v4, v4, v5
    v_bfe_u32 v5, v3, 4, 1
    v_mul_u32_u24 v5, 112, v5
    v_add_u32 v4, v4, v5
    v_min_u32 v4, 223, v4
    v_lshlrev_b32 v4, 2, v4
    v_add_u32 v110, {PART}, v4
    s_lshl_b32 s29, s65, 10
    s_add_u32 s29, s29, {PART}
    v_add_u32 v111, s29, v7
    v_cmp_le_u32 vcc, 28, v2
    v_mov_b32 v5, {1792*4-28*16}
    v_cndmask_b32 v4, 0, v5, vcc
    v_add_u32 v4, v4, v7
    v_cmp_gt_u32 vcc, 56, v2
    v_mov_b32 v5, 0x7fffff00
    v_cndmask_b32 v4, v5, v4, vcc
    s_mul_i32 s53, s62, 448
    s_mul_i32 s29, s65, {4*3584*4}
    s_add_u32 s53, s53, s29
    s_add_u32 s53, s53, {WS_CS}
    v_lshlrev_b32 v3, 4, v3
    v_add_u32 v3, {AP}, v3
    v_lshrrev_b32 v5, 4, v2                  ; row
    v_and_b32 v15, 15, v2
    v_lshlrev_b32 v12, 6, v15
    v_lshlrev_b32 v13, 4, v15
    v_lshl_add_u32 v6, v5, 12, v13
    s_lshl_b32 s29, s65, 8
    s_add_u32 s29, s29, {PART}
    v_add_u32 v13, s29, v13
    v_lshlrev_b32 v15, 5, v15
    v_and_b32 v1, 1, v5
    v_lshl_add_u32 v15, v1, 4, v15
    v_lshrrev_b32 v1, 1, v5
    v_lshl_add_u32 v15, v1, 9, v15
    s_lshl_b32 s29, s65, 10
    s_add_u32 s29, s29, {PART}
    v_add_u32 v15, s29, v15
    v_and_b32 v1, 7, v2
    v_lshlrev_b32 v14, 4, v1
    v_lshl_add_u32 v14, v5, 10, v14
    v_bfe_u32 v8, v2, 3, 1
    v_lshl_add_u32 v14, v8, 9, v14
    v_lshl_add_u32 v1, v1, 2, v5
    v_lshlrev_b32 v1, 4, v1
    s_lshl_b32 s29, s65, 9
    s_add_u32 s29, s29, {FS}
    v_add_u32 v1, s29, v1
    s_lshl_b32 s54, s62, 17
    s_lshl_b32 s29, s65, 15
    s_add_u32 s54, s54, s29
    s_add_u32 s54, s54, s70
    s_lshl_b32 s29, s61, 4
    s_add_u32 s29, s29, s62
    s_lshl_b32 s56, s29, 6
    s_add_u32 s56, s56, {WS_F4}              ; own F4
    s_lshl_b32 s55, s29, 10
    s_lshl_b32 s29, s65, 8
    s_add_u32 s55, s55, s29
    s_add_u32 s55, s55, {WS_SP}
    s_lshl_b32 s57, s61, 10
    s_add_u32 s57, s57, {WS_F4}              ; F4 row
    s_lshl_b32 s58, s61, 14
    s_lshl_b32 s29, s65, 7
    s_add_u32 s58, s58, s29
    s_add_u32 s58, s58, {WS_SP}
    v_lshlrev_b32 v5, {SP2}, v2
    s_mov_b32 s29, {WS_F2:#x}
    """)
    k(f"s_waitcnt vmcnt({min(63,len(q))})")
    if RW: regW(NB6)
    k("s_barrier        ; B6")
    PF1=E_("PF1",0)
    if not PF1:
        issueW(4)
        if not RW: issueT(N3)
    if NW==7:
        k("s_cmp_lg_u32 s66, 0\ns_cbranch_scc1 L_w6")
        q6=len(q); issueW1(6,0); del q[q6:]
        k("L_w6:")
    if RW: regW(5)
    if not E_("POLM",1):
        k("s_cmp_lg_u32 s3, 4\ns_cbranch_scc1 L_p2x")
        poll(k,"L_p2",5,4,29,48,SL2,SP2)
    k("s_barrier        ; B7")
    assert not (PF1 and NW==7)
    ts(k,7,False)
    S=24; Q=32; RB=[40,44]; T=52
    SH=E_("SH",3); HR=E_("HR",2); JS=E_("JS",0); CJ=E_("CJ",8); CK=E_("CK",12)
    hh=[0]
    def upH(n):
        while hh[0]<=min(n,15): issueH(hh[0]); hh[0]+=1
    def issueS():
        k(f"buffer_load_dwordx4 v[40:43], v6, s[4:7], s54 offen sc1\ns_add_u32 s54, s54, 16384\nbuffer_load_dwordx4 v[44:47], v6, s[4:7], s54 offen sc1")
        q.extend([("S",0),("S",1)])
    upH(SH-1)
    if JS<0: issueS()
    if PF1: issueW(4)
    def issueC():
        for p in range(4):
            k(f"buffer_load_dwordx4 v[{CS+4*p}:{CS+4*p+3}], v4, s[4:7], s53 offen sc1"); q.append(("C",p))
            if p<3: k(f"s_add_u32 s53, s53, {3584*4}")
    def vwait(f):
        n=max(idx for idx,x in enumerate(q) if f(x))
        k(f"s_waitcnt vmcnt({min(63,len(q)-1-n)})")
    def smath(r):
        vwait(lambda x: x==("S",r))
        for d in range(4):
            src=RB[r]+d
            if r==0:
                k(f"v_lshlrev_b32 v{S+2*d}, 16, v{src}\nv_and_b32 v{S+2*d+1}, 0xffff0000, v{src}")
                k(f"v_mul_f32 v{Q+2*d}, v{S+2*d}, v{S+2*d}\nv_mul_f32 v{Q+2*d+1}, v{S+2*d+1}, v{S+2*d+1}")
            else:
                t=T+2*(d&1)
                k(f"v_lshlrev_b32 v{t}, 16, v{src}\nv_and_b32 v{t+1}, 0xffff0000, v{src}")
                k(f"v_add_f32 v{S+2*d}, v{S+2*d}, v{t}\nv_add_f32 v{S+2*d+1}, v{S+2*d+1}, v{t+1}")
                k(f"v_fmac_f32 v{Q+2*d}, v{t}, v{t}\nv_fmac_f32 v{Q+2*d+1}, v{t+1}, v{t+1}")
    def sred():
        for i in range(8): k(f"v_permlane32_swap_b32 v{S+i}, v{Q+i}")
        for i in range(8): k(f"v_add_f32 v{S+i}, v{S+i}, v{Q+i}")
        for i in range(4): k(f"v_permlane16_swap_b32 v{S+i}, v{S+4+i}")
        for i in range(4): k(f"v_add_f32 v{S+i}, v{S+i}, v{S+4+i}")
        k(f"ds_write_b128 v15, v[{S}:{S+3}]\ns_waitcnt lgkmcnt(0)")
    if J0<0: smath(0)
    if J1<0: smath(1)
    if J2<0: sred()
    rest=2*NHS-wt[0]
    HJ=[int(x) for x in os.environ.get("HJ","").split(",") if x]
    HL=E_('HL',1)
    q0=list(q); h0=hh[0]; w0=wt[0]
    k('s_cmp_lg_u32 s66, 0\ns_cbranch_scc1 L_par1')
    for par,j in [(a,b) for a in range(2) for b in range(16)]:
        if j==0:
            q[:]=q0; hh[0]=h0; wt[0]=w0
            if par: k('s_branch L_parx\nL_par1:')
            if NW==7 and par==0:
                i6=max(i for i,x in enumerate(q) if x==('W',4))+1+(0 if RW else N3)
                q[i6:i6]=[('V',6)]*7
        vwait(lambda x: (x[0]=="W" and x[1]+par<=j) or (x[0]=="V" and x[1]<=j) or (x[0]=="H" and x[1]<=j) or (x[0]=="C" and j>=CK) or (x[0]=="P" and j>=JF) or (x[0]=="F" and j>=JQ) or (x[0]=="G" and j>=JR))
        k("s_barrier")
        if STAMP and j in HJ: ts(k,[1,2,4,5,7][HJ.index(j)],False)
        if j==JF:
            flag(k,56,48); q.append(("f",0))
        if j==JQ:
            k(f"v_xor_b32 v48, s60, v50\nv_cmp_ne_u32 vcc, 0, v48\ns_cbranch_vccz L_p4{par}x")
            poll(k,f"L_p4{par}",12,1,57,48,0)
            for i in range(4):
                k(f"buffer_load_dwordx4 v[{24+4*i}:{27+4*i}], v14, s[4:7], s58 offen sc1"); q.append(("G",i))
                if i<3: k("s_add_u32 s58, s58, 4096")
        if j==JP:
            k("buffer_load_dword v50, v12, s[4:7], s57 offen sc1"); q.append(("F",0))
        WF=E_('WF',1)
        if WF and j>=2 and (j+NW)%2==par and not RW: issueW1(j+NW-2,par)
        upH(min(j+NH-2+HL, SH-1+HR*(j+1)))
        if j==JS: issueS()
        if not WF and j>=2 and (j+NW)%2==par and not RW: issueW1(j+NW-2,par)
        if RW:
            nfree=len([b for b in range(7,16) if b%2==par and b-5<j])
            lim=36 if nfree==(5 if par else 4) else 7*nfree
            tgt=min(lim, int(TR*(j-TJ+1))) if j<15 else 36
            if 3<=j<=11 and (j+4)%2==par: k("s_waitcnt lgkmcnt(0)")
            if tgt>wt[0]: issueT(tgt-wt[0])
            if 2<=j and j+5<=15 and (j+5)%2==par: putW(j+5,par)
        if j==CJ: issueC()
        TJ2=E_("TJ2",11)
        if not RW and j>=TJ2: issueT(-(-rest//(16-TJ2)))
        if j==CK:
            assert CK>J2+1 and CK>CJ and JC>CK
            for i in range(8): k(f"v_add_f32 v{CS+i}, v{CS+i}, v{CS+8+i}")
            for i in range(4): k(f"v_add_f32 v{CS+i}, v{CS+i}, v{CS+4+i}")
            k(f"ds_write_b128 v111, v[{CS}:{CS+3}]\ns_waitcnt lgkmcnt(0)")
        if j==J0: smath(0)
        if j==J1: smath(1)
        if j==J2: sred()
        if j==J2+1:
            for p in range(4): k(f"ds_read_b128 v[{24+4*p}:{27+4*p}], v13 offset:{1024*p}")
            k("s_waitcnt lgkmcnt(2)")
            for i in range(4): k(f"v_add_f32 v{24+i}, v{24+i}, v{28+i}")
            k("s_waitcnt lgkmcnt(0)")
            for i in range(4): k(f"v_add_f32 v{32+i}, v{32+i}, v{36+i}")
            for i in range(4): k(f"v_add_f32 v{40+i}, v{24+i}, v{32+i}")
            k("s_mov_b64 exec, 0xffff\nbuffer_store_dwordx4 v[40:43], v7, s[4:7], s55 offen sc1\ns_mov_b64 exec, -1"); q.append(("P",0))
        if j==JC:
            for p in range(4): k(f"ds_read_b32 v{CS+p}, v110 offset:{1024*p}")
            k(f"s_waitcnt lgkmcnt(0)\nv_add_f32 v{CS}, v{CS}, v{CS+1}\nv_add_f32 v{CS+2}, v{CS+2}, v{CS+3}\nv_add_f32 v{CS}, v{CS}, v{CS+2}")
            k(f"""
            v_cvt_pk_bf16_f32 v9, v{CS}, v{CS}
            v_and_b32 v9, 0xffff0000, v9
            v_sub_f32 v8, v{CS}, v9
            v_cvt_pk_bf16_f32 v10, v8, v8
            v_and_b32 v10, 0xffff0000, v10
            v_sub_f32 v8, v8, v10
            v_cvt_pk_bf16_f32 v16, v9, v10
            v_cvt_pk_bf16_f32 v17, v8, 0
            v_mov_b32 v18, 0
            v_mov_b32 v19, 0
            ds_write_b128 v3, v[16:19]
            s_waitcnt lgkmcnt(0)
            """)
        if j==JR:
            for i in range(8): k(f"v_add_f32 v{24+i}, v{24+i}, v{32+i}")
            for i in range(4): k(f"v_add_f32 v{24+i}, v{24+i}, v{28+i}")
            k(f"""
            v_permlane32_swap_b32 v24, v26
            v_permlane32_swap_b32 v25, v27
            v_add_f32 v24, v24, v26
            v_add_f32 v25, v25, v27
            v_permlane16_swap_b32 v24, v25
            v_add_f32 v40, v24, v25
            v_mov_b32_dpp v41, v40 row_ror:8 row_mask:0xf bank_mask:0xf
            v_mul_f32 v40, 0x3b000000, v40
            v_mul_f32 v41, 0x3b000000, v41
            v_fma_f32 v41, -v40, v40, v41
            v_max_f32 v41, 0, v41
            v_cvt_pk_bf16_f32 v41, v41, v41
            v_and_b32 v41, 0xffff0000, v41
            v_add_f32 v41, 0x3727c5ac, v41
            v_cvt_pk_bf16_f32 v41, v41, v41
            v_and_b32 v41, 0xffff0000, v41
            v_sqrt_f32 v41, v41
            v_cvt_pk_bf16_f32 v44, -v40, -v40
            v_cvt_pk_bf16_f32 v41, v41, v41
            v_and_b32 v47, 0xffff0000, v41
            v_rcp_f32 v46, v47
            v_mov_b32 v45, v44
            v_mul_f32 v46, 0xbfb8aa3b, v46
            s_mov_b32 exec_lo, 0x00ff00ff
            s_mov_b32 exec_hi, 0x00ff00ff
            ds_write_b128 v1, v[44:47]
            s_mov_b64 exec, -1
            s_waitcnt lgkmcnt(0)
            """)
    k('L_parx:')
    assert hh[0]==16
    assert wt[0]==2*NHS
    ts(k,8,False)
    k(f"""
    v_add_u32 v6, {112*1024}, v7
    v_lshrrev_b32 v3, 2, v2
    v_lshlrev_b32 v3, 12, v3
    v_and_b32 v4, 3, v2
    v_lshl_add_u32 v3, v4, 4, v3
    v_add_u32 v4, {65536-1024}, v3
    s_and_b32 s29, s65, 1
    s_lshl_b32 s30, s64, 1
    s_add_u32 s29, s29, s30          ; d block32
    s_lshl_b32 s30, s63, 1
    s_add_u32 s30, s30, s66          ; l block32
    s_lshl_b32 s52, s29, 17
    s_lshl_b32 s53, s30, 6
    s_add_u32 s52, s52, s53
    s_add_u32 s52, s52, {WS_HT}      ; h soffset
    s_lshl_b32 s74, s30, 15
    s_lshl_b32 s53, s29, 6
    s_add_u32 s74, s74, s53
    s_lshl_b32 s53, s65, 11
    s_add_u32 s53, s53, {G2R}
    s_mov_b32 s8, s18
    s_mov_b32 s9, s19
    s_mov_b32 s10, {2048*512*2:#x}
    s_barrier        ; B8
    {TSI+' s[92:93]' if STAMP else ''}
    s_mov_b32 m0, s53
    s_nop 0
    buffer_load_dwordx4 v3, s[4:7], s52 offen sc1 lds
    buffer_load_dwordx4 v4, s[4:7], s52 offen offset:1024 sc1 lds
    v_lshrrev_b32 v3, 5, v2
    v_bfe_u32 v4, v2, 2, 2
    v_lshl_add_u32 v4, v3, 4, v4
    v_lshlrev_b32 v4, 6, v4
    v_bfe_u32 v5, v2, 4, 1
    v_lshl_add_u32 v4, v5, 5, v4
    v_and_b32 v5, 3, v2
    v_lshl_add_u32 v4, v5, 3, v4
    v_add_u32 v4, s53, v4
    v_and_b32 v5, 31, v2
    v_lshlrev_b32 v5, 10, v5
    v_lshl_add_u32 v5, v3, 5, v5
    s_lshl_b32 s29, s65, 14
    s_add_u32 s29, s29, {G2H}
    v_add_u32 v3, s29, v7
    s_lshl_b32 s29, s65, 12
    v_add_u32 v1, s29, v7
    s_barrier        ; B9
    """)
    ts(k,9,False)
    A2=48
    free=[8+8*i for i in range(5)]
    slot={}; q=[]
    nxt=[0]
    def ldB():
        s=nxt[0]
        if s>=NHS or not free: return False
        b=free.pop(0); slot[s]=b
        hgload(k, b, s, NHS)
        q.extend([(s,0),(s,1)]); nxt[0]+=1
        return True
    while ldB(): pass
    for s in range(NHS):
        for lb in range(2):
            k(f"s_waitcnt vmcnt({len(q)-1-q.index((s,lb))})")
            for db in range(2):
                c=A2+16*(db+2*lb); a=HA+8*s+4*db; b=slot[s]+4*lb
                k(f"v_mfma_f32_32x32x16_bf16 v[{c}:{c+15}], v[{a}:{a+3}], v[{b}:{b+3}], {'0' if s==0 else f'v[{c}:{c+15}]'}")
        if s>=1:
            free.append(slot[s-1]); free.append(HA+8*(s-1))
        ldB(); ldB()
    for w in range(4):
        if w<3: k(f"s_cmp_lg_u32 s65, {w}\ns_cbranch_scc1 L4_w{w}")
        for qd in range(4):
            if qd==w: continue
            for j in range(4):
                k(f"ds_write_b128 v3, v[{A2+16*qd+4*j}:{A2+16*qd+4*j+3}] offset:{qd*4096+j*1024}")
        if w:
            for j in range(16): k(f"v_mov_b32 v{A2+j}, v{A2+16*w+j}")
        if w<3: k(f"s_branch L4_red\nL4_w{w}:")
    k("L4_red:")
    HT=8; HF=16; P=112
    for j in range(4): k(f"ds_read_b64_tr_b16 v[{HT+2*j}:{HT+1+2*j}], v4 offset:{j*256}")
    k("s_waitcnt lgkmcnt(0)\ns_barrier        ; B10")
    for p in range(4):
        for j in range(4): k(f"ds_read_b128 v[{P+16*p+4*j}:{P+3+16*p+4*j}], v1 offset:{G2M+p*16384+j*1024}")
    for j in range(8):
        k(f"v_and_b32 v{HF+1+2*j}, 0xffff0000, v{HT+j}\nv_lshlrev_b32 v{HF+2*j}, 16, v{HT+j}")
    def addp(p):
        for j in range(8): k(f"v_pk_add_f32 v[{A2+2*j}:{A2+2*j+1}], v[{A2+2*j}:{A2+2*j+1}], v[{P+16*p+2*j}:{P+1+16*p+2*j}]")
    for p in range(1,4):
        k(f"s_add_u32 s29, s65, {p}\ns_and_b32 s29, s29, 3\ns_lshl_b32 s29, s29, 14\ns_add_u32 s29, s29, {G2H}\nv_add_u32 v3, s29, v1")
        k(f"s_waitcnt lgkmcnt(12)");
        for j in range(4): k(f"ds_read_b128 v[{P+16*(p+3)+4*j}:{P+3+16*(p+3)+4*j}], v3 offset:{j*1024}")
        addp(p-1)
    for p in range(3,7):
        k(f"s_waitcnt lgkmcnt({4*(6-p)})"); addp(p)
    for j in range(8): k(f"v_cvt_pk_bf16_f32 v{64+j}, v{A2+2*j}, v{A2+2*j+1}")
    for j in range(8): k(f"v_lshlrev_b32 v{A2+2*j}, 16, v{64+j}\nv_and_b32 v{A2+2*j+1}, 0xffff0000, v{64+j}")
    for j in range(8): k(f"v_pk_add_f32 v[{A2+2*j}:{A2+2*j+1}], v[{A2+2*j}:{A2+2*j+1}], v[{HF+2*j}:{HF+1+2*j}]")
    for j in range(8): k(f"v_cvt_pk_bf16_f32 v{64+j}, v{A2+2*j}, v{A2+2*j+1}")
    for jj in range(2):
        k(f"buffer_store_dwordx4 v[{64+4*jj}:{67+4*jj}], v5, s[8:11], s74 offen offset:{16*jj} {os.environ.get('OUTM','')}")
    ts(k,3,False)
    flush(k,[1,8,6,3],10,4)

if __name__=="__main__":
    out = sys.argv[1] if len(sys.argv)>1 else "m.s"
    finish(out, [gen_m()])
```

```python
import sys, os
sys.path.insert(0,'gen')
from common import *
from k2 import cmul, direct, rho, LOG2E, INV2PI
E_=lambda n,d: int(os.environ.get(n,str(d)),0)
WS_WT=0x1000000
WS_F1=0x1400000; WS_F2=0x1410000; WS_F3=0x1420000; WS_TAG=0x1430000; WS_F4=0x1440000; WS_SP=0x1450000
WSL=14464; UOFF=7184; NW=E_("NW",7); WB=0
TB=0; TA=33792; TBL=16896; TROW=528
UC=72320; UCC=4640; UCH=4*UCC
KC=109440; KCC=4224
XT=126336; T1=XT+8192; RED=142720
LNB=XT; ROWS=2112; WDS=143360
NH=E_("NH",8 if NW==6 else 6); HS=8192; HB=NW*WSL
MISC=HB+NH*HS; PART=MISC; FS=MISC+4096; AP=MISC+6144
G2M=0; G2H=65536; G2R=131072
PF=160768
LDS=163840
CUM=[2,4,6,8,10,13,15,18,20,23,25,28,30,32,32,32]
def hb(j): return max(j,(CUM[j]-1)>>1)
NM=10; NHS=18
MA=176; HA=112
N1=E_("N1",36); N3=E_("N3",0)
J0=E_("J0",2); J1=E_("J1",2); J2=E_("J2",3); JF=E_("JF",7); JP=E_("JP",10); JQ=E_("JQ",12); JR=E_("JR",14); JC=E_("JC",13)
SL1=E_("SL1",0); SL2=E_("SL2",20); SL3=E_("SL3",8); SLP=E_("SLP",2)
LIMIT=4000
ROT1=E_('ROT1',0); ROT2=E_('ROT2',0); SP1=E_('SP1',6); SP2=E_('SP2',6)
TSI='s_memtime' if E_('CY',0) else 's_memrealtime'
def ts(k,i,drain=True):
    if not STAMP: return
    k(f"{TSI} s[{80+2*i}:{81+2*i}]")
    if drain: k("s_waitcnt lgkmcnt(0)")
def flush(k, idxs, base, wave):
    if STAMP==3:
        DI=E_("DI",0); DWV=E_("DWV",0); DW=E_("DBGWG",-1)
        if DWV!=wave: return
        if DW>=0: k(f"s_cmp_lg_u32 s2, {DW}\ns_cbranch_scc1 L_df{wave}")
        k(f"""s_cmp_lg_u32 s3, {wave}
        s_cbranch_scc1 L_df{wave}
        s_waitcnt lgkmcnt(0)
        s_add_u32 s29, s{80+2*DI}, 6000
        s_mov_b32 s23, 0
        L_dl{wave}:
        s_memrealtime s[30:31]
        s_add_u32 s23, s23, 1
        s_waitcnt lgkmcnt(0)
        s_sub_u32 s30, s30, s29
        s_cmp_gt_u32 s23, 200000
        s_cbranch_scc1 L_df{wave}
        s_cmp_lt_i32 s30, 0
        s_cbranch_scc1 L_dl{wave}
        L_df{wave}:""")
        return
    if STAMP!=2:
        stamp_flush(k,0,11,20,3,vt=8)
        if STAMP and wave==0: k("s_sub_u32 s29, s74, s72\nv_mov_b32 v8, s29\nbuffer_store_dword v8, v9, s[76:79], 0 offen offset:44")
        return
    DW=E_("DBGWG",0)
    k(f"s_cmp_lg_u32 s2, {DW}\ns_cbranch_scc1 L_df{wave}\ns_cmp_lg_u32 s3, {wave}\ns_cbranch_scc1 L_df{wave}")
    k("s_load_dwordx2 s[76:77], s[0:1], 96\ns_mov_b32 s78, 256\ns_mov_b32 s79, 0x20000\nv_mov_b32 v9, 0\ns_waitcnt lgkmcnt(0)")
    for n,i in enumerate(idxs):
        k(f"s_sub_u32 s29, s{80+2*i}, s80\nv_mov_b32 v8, s29\nbuffer_store_dword v8, v9, s[76:79], 0 offen offset:{4*(base+n)}")
    k(f"L_df{wave}:")
def poll(k, lab, voff, n, soff, t, first, sp=6):
    if first: k(f"s_sleep {first}")
    k(f"s_mov_b32 s31, 0\n{lab}:")
    if sp==2 and n==4: k(f"buffer_load_dwordx4 v[{t}:{t+3}], v7, s[4:7], s{soff} offen sc1")
    else:
      for j in range(n):
        if j: k(f"s_add_u32 s30, s{soff}, {(64<<sp)*j}")
        k(f"buffer_load_dword v{t+j}, v{voff}, s[4:7], s{soff if j==0 else 30} offen sc1")
    k("s_add_u32 s31, s31, 1\ns_waitcnt vmcnt(0)")
    for j in range(n): k(f"v_xor_b32 v{t+j}, s60, v{t+j}")
    for j in range(1,n): k(f"v_or_b32 v{t}, v{t}, v{t+j}")
    k(f"""
    v_cmp_ne_u32 vcc, 0, v{t}
    s_cmp_gt_u32 s31, {LIMIT}
    s_cbranch_scc1 {lab}x
    s_cbranch_vccz {lab}x
    s_sleep {SLP}
    s_branch {lab}
    {lab}x:
    """)
PW=E_("PW",0); SL3H=E_("SL3H",8); PWO=E_("PWO",1)
def pollw(k, lab, vf, vt, soff, mask, first, recheck):
    if recheck: k(f"s_and_b32 s30, vcc_lo, {mask}\ns_cbranch_scc0 {lab}x")
    if first: k(f"s_sleep {first}")
    k(f"""
    s_mov_b32 s31, 0
    {lab}:
    buffer_load_dword v{vt}, v{vf}, s[4:7], s{soff} offen sc1
    s_add_u32 s31, s31, 1
    s_waitcnt vmcnt(0)
    v_cmp_ne_u32 vcc, s60, v{vt}
    s_cmp_gt_u32 s31, {LIMIT}
    s_cbranch_scc1 {lab}x
    s_and_b32 s30, vcc_lo, {mask}
    s_cbranch_scc0 {lab}x
    s_sleep {SLP}
    s_branch {lab}
    {lab}x:
    """)
def flag(k, soff, t):
    k(f"""
    v_mov_b32 v{t}, s60
    v_mov_b32 v{t+1}, 0
    s_mov_b64 exec, 1
    buffer_store_dword v{t}, v{t+1}, s[4:7], s{soff} offen sc1
    s_mov_b64 exec, -1
    """)
EB=56
def eloads(k):
    k(f"""
    buffer_load_dwordx4 v[{EB}:{EB+3}], v71, s[32:35], s26 offen sc1
    buffer_load_dwordx4 v[{EB+4}:{EB+7}], v70, s[32:35], s26 offen sc1
    buffer_load_dwordx4 v[{EB+8}:{EB+11}], v70, s[32:35], s26 offen offset:32 sc1
    """)
def uprep(k, nafter):
    k(f"s_waitcnt vmcnt({nafter+1})")
    for j in range(6): k(f"v_mov_b32 v{36+j}, v{EB+1+j}")
    k(f"""
    ds_write_b128 v68, v[{EB+2}:{EB+5}] offset:{UCC}
    ds_write_b128 v68, v[{EB+4}:{EB+7}] offset:{3*UCC}
    ds_write_b128 v68, v[36:39]
    ds_write_b128 v68, v[38:41] offset:{2*UCC}
    """)
    for j in range(4):
        k(f"v_lshlrev_b32 v{44+2*j}, 16, v{EB+4+j}\nv_and_b32 v{45+2*j}, 0xffff0000, v{EB+4+j}")
    for j in range(8): k(f"v_mul_f32 v{44+j}, s28, v{44+j}")
    for j in range(4): k(f"v_cvt_pk_bf16_f32 v{52+j}, v{44+2*j}, v{45+2*j}")
    k(f"""
    ds_write_b128 v69, v[52:55] offset:{T1-XT}
    s_waitcnt vmcnt({nafter})
    ds_write_b128 v69, v[{EB+8}:{EB+11}]
    s_waitcnt lgkmcnt(0)
    s_barrier
    """)
def kparams(k):
    k(f"""
    s_lshl_b32 s29, s66, 4
    s_lshr_b32 s27, s27, s29
    s_lshl_b32 s27, s27, 16
    s_lshr_b32 s28, s28, s26
    s_lshl_b32 s28, s28, 16
    v_mov_b32 v33, {LOG2E}
    v_mul_f32 v34, s27, v33
    v_exp_f32 v34, v34
    v_lshlrev_b32 v8, 16, v8
    v_lshlrev_b32 v9, 16, v9
    v_cvt_pk_bf16_f32 v34, v34, v34
    v_and_b32 v34, 0xffff0000, v34
    v_mul_f32 v8, v8, v33
    v_exp_f32 v8, v8
    v_mul_f32 v9, v9, v34
    v_cvt_pk_bf16_f32 v8, v8, v8
    v_and_b32 v8, 0xffff0000, v8
    v_mul_f32 v8, v8, v34
    v_mul_f32 v9, {INV2PI}, v9
    v_mul_f32 v8, 0xbfb8aa3b, v8
    """)
def common_addr(k):
    k(f"""
    v_mov_b32 v24, 0
    v_mov_b32 v25, 0
    v_mov_b32 v26, 0
    v_mov_b32 v27, 0
    s_mul_i32 s29, s3, {UCC}
    s_add_u32 s29, s29, {UC}
    v_add_u32 v28, s29, v7
    s_mul_i32 s29, s65, {KCC}
    s_add_u32 s29, s29, {KC}
    v_add_u32 v29, s29, v7
    s_mov_b64 exec, 0xffffff
    ds_write_b128 v28, v[24:27]
    s_mov_b64 exec, 0x7f
    ds_write_b128 v29, v[24:27]
    s_mov_b64 exec, -1
    s_mul_i32 s29, s66, {TBL}
    s_mul_i32 s31, s25, {TA}
    s_add_u32 s29, s29, s31
    s_and_b32 s31, s3, 1
    s_lshl_b32 s31, s31, 8
    s_add_u32 s29, s29, s31
    v_lshlrev_b32 v30, 2, v2
    v_add_u32 v30, s29, v30
    s_mul_i32 s29, s25, {UCH}
    s_add_u32 s29, s29, {UC+24*16}
    v_and_b32 v3, 255, v0
    v_lshlrev_b32 v69, 4, v3
    v_add_u32 v68, s29, v69
    s_lshl_b32 s29, s25, 12
    s_add_u32 s29, s29, {XT}
    v_add_u32 v69, s29, v69
    v_lshlrev_b32 v70, 6, v3
    v_subrev_u32 v71, 64, v70
    s_lshl_b32 s23, s2, 14
    s_add_u32 s32, s20, s23
    s_addc_u32 s33, s21, 0
    s_mov_b32 s34, 16384
    s_mov_b32 s35, 0x20000
    s_and_b32 s61, s2, 1
    s_lshl_b32 s61, s61, 3
    s_bfe_u32 s23, s2, 0x30003
    s_add_u32 s61, s61, s23          ; rb
    s_bfe_u32 s62, s2, 0x20001
    s_lshl_b32 s62, s62, 2
    s_lshr_b32 s23, s2, 6
    s_add_u32 s62, s62, s23          ; fs
    s_and_b32 s63, s2, 7
    s_lshl_b32 s63, s63, 2
    s_bfe_u32 s23, s2, 0x20003
    s_add_u32 s63, s63, s23          ; tl
    s_lshr_b32 s64, s2, 5            ; td
    s_mul_i32 s67, s64, 112
    s_mul_i32 s23, s65, 28
    s_mul_i32 s29, s25, {NM}
    s_add_u32 s23, s23, s29
    s_add_u32 s67, s67, s23
    s_lshl_b32 s67, s67, 11
    s_add_u32 s67, s67, {WS_WT}
    s_mul_i32 s68, s63, 224
    s_add_u32 s68, s68, s23
    s_lshl_b32 s68, s68, 10
    s_add_u32 s68, s68, {WS_HG}
    """)
def rot2init(k, N):
    if not ROT2: return
    k(f"s_mul_i32 s41, s64, {N}\ns_lshr_b32 s41, s41, 3\ns_lshl_b32 s40, s41, 11\ns_lshl_b32 s41, s41, 10\ns_add_u32 s42, s67, s40\ns_add_u32 s43, s68, s41")
def hgload(k, b, s, N):
    if ROT2:
        if s: k(f"s_add_u32 s41, s41, 1024\ns_cmp_eq_u32 s41, {N*1024}\ns_cselect_b32 s41, 0, s41\ns_add_u32 s43, s68, s41")
        k(f"buffer_load_dwordx4 v[{b}:{b+3}], v7, s[4:7], s43 offen sc1")
        k(f"buffer_load_dwordx4 v[{b+4}:{b+7}], v6, s[4:7], s43 offen sc1")
        return
    if s and s%4==0: k("s_add_u32 s68, s68, 4096")
    k(f"buffer_load_dwordx4 v[{b}:{b+3}], v7, s[4:7], s68 offen offset:{1024*(s&3)} sc1")
    k(f"buffer_load_dwordx4 v[{b+4}:{b+7}], v6, s[4:7], s68 offen offset:{1024*(s&3)} sc1")
def wtload(k, base, i):
    if ROT2:
        N=NM if base==MA else NHS
        if i and i%2==0: k(f"s_add_u32 s40, s40, 2048\ns_cmp_eq_u32 s40, {N*2048}\ns_cselect_b32 s40, 0, s40\ns_add_u32 s42, s67, s40")
        k(f"buffer_load_dwordx4 v[{base+4*i}:{base+4*i+3}], v7, s[4:7], s42 offen offset:{1024*(i&1)} sc1")
        return
    if i and i%4==0: k("s_add_u32 s67, s67, 4096")
    k(f"buffer_load_dwordx4 v[{base+4*i}:{base+4*i+3}], v7, s[4:7], s67 offen offset:{1024*(i&3)} sc1")

def gen_m():
    k = K("sequential_preLN__ssm_conv_s4d__glu_gated_glu__prompt_kernel", 256, 512, LDS, 256)
    k("L_begin:\ns_cmp_ge_u32 s2, 256\ns_cbranch_scc1 L_end")
    ts(k,0,False)
    k(f"""
    s_load_dwordx16 s[36:51], s[0:1], 0
    s_load_dwordx8 s[12:19], s[0:1], 64
    s_load_dwordx2 s[20:21], s[0:1], 104
    v_lshrrev_b32 v1, 6, v0
    v_and_b32 v2, 63, v0
    v_lshlrev_b32 v7, 4, v2
    v_readfirstlane_b32 s3, v1
    v_and_b32 v3, 255, v0
    s_lshl_b32 s24, s2, 9
    v_lshl_add_u32 v4, v3, 1, s24
    v_mov_b32 v5, 0
    s_lshl_b32 s22, s2, 2
    s_and_b32 s65, s3, 3
    s_lshr_b32 s25, s3, 2
    s_lshl_b32 s26, s25, 4
    s_bfe_u32 s66, s3, 0x10001
    s_mov_b32 s6, {WS_SIZE:#x}
    s_mov_b32 s7, 0x20000
    s_mov_b32 s23, {WS_TAG:#x}
    s_cmp_ge_u32 s3, 4
    s_cbranch_scc1 L_help
    """)
    gen_main(k)
    gen_help(k)
    k("L_end:\ns_endpgm\nL_stop:")
    return k

def gen_main(k):
    k(f"""
    s_lshl_b32 s29, s2, 13
    s_lshl_b32 s30, s3, 11
    s_add_u32 s29, s29, s30
    s_mov_b32 s10, {2048*512*2:#x}
    s_mov_b32 s11, 0x20000
    s_waitcnt lgkmcnt(0)
    s_mov_b32 s8, s36
    s_mov_b32 s9, s37
    s_mov_b32 s4, s20
    s_mov_b32 s5, s21
    buffer_load_dwordx4 v[12:15], v7, s[8:11], s29 offen
    buffer_load_dwordx4 v[16:19], v7, s[8:11], s29 offen offset:1024
    global_load_ushort v8, v4, s[38:39]
    global_load_ushort v9, v4, s[40:41]
    buffer_load_dword v10, v5, s[4:7], s23 offen sc1
    s_load_dword s27, s[46:47], s22
    s_load_dword s28, s[48:49], s22
    """)
    common_addr(k)
    X=12; F=36; O=52
    k(f"""
    s_lshl_b32 s24, s3, 2
    s_add_u32 s24, s24, {PF}
    v_mov_b32 v1, s24
    ds_write_b32 v1, v24
    v_mov_b32 v1, 0x3b000000
    s_mul_i32 s24, s3, {2*ROWS}
    s_add_u32 s24, s24, {LNB}
    v_lshlrev_b32 v4, 5, v2
    v_add_u32 v4, s24, v4
    v_bfe_u32 v5, v2, 2, 2
    v_mul_u32_u24 v5, {ROWS}, v5
    v_lshrrev_b32 v6, 4, v2
    v_lshl_add_u32 v5, v6, 5, v5
    v_and_b32 v6, 3, v2
    v_lshl_add_u32 v5, v6, 3, v5
    s_lshl_b32 s24, s3, 9
    s_add_u32 s24, s24, {LNB}
    v_add_u32 v5, s24, v5
    v_lshrrev_b32 v11, 2, v2
    v_lshlrev_b32 v11, 14, v11
    v_lshl_add_u32 v11, v6, 4, v11
    s_lshl_b32 s24, s3, 20
    s_lshl_b32 s29, s2, 6
    s_add_u32 s24, s24, s29
    """)
    for i in range(2):
        k(f"s_waitcnt vmcnt({4-i})")
        if i==0: ts(k,1,False)
        for j in range(4):
            k(f"v_lshlrev_b32 v{F+8*i+2*j}, 16, v{X+4*i+j}\nv_and_b32 v{F+1+8*i+2*j}, 0xffff0000, v{X+4*i+j}")
        f=F+8*i; S,Q=20+2*i,21+2*i
        k(f"v_add_f32 v{S}, v{f}, v{f+1}\nv_mul_f32 v{Q}, v{f}, v{f}\nv_fmac_f32 v{Q}, v{f+1}, v{f+1}")
        for j in range(2,8): k(f"v_add_f32 v{S}, v{S}, v{f+j}\nv_fmac_f32 v{Q}, v{f+j}, v{f+j}")
    for dpp in ("row_shr:1","row_shr:2","row_shr:4","row_shr:8"):
        for r in range(20,24): k(f"v_add_f32_dpp v{r}, v{r}, v{r} {dpp} row_mask:0xf bank_mask:0xf bound_ctrl:1")
    for dpp in ("row_bcast:15 row_mask:0xa","row_bcast:31 row_mask:0xc"):
        for r in range(20,24): k(f"v_add_f32_dpp v{r}, v{r}, v{r} {dpp} bank_mask:0xf")
    for r in range(4): k(f"v_readlane_b32 s{52+r}, v{20+r}, 63")
    for i in range(2):
        M,V,T=24+3*i,25+3*i,26+3*i
        k(f"""
        v_mul_f32 v{M}, s{52+2*i}, v1
        v_mul_f32 v{V}, s{53+2*i}, v1
        v_fma_f32 v{V}, -v{M}, v{M}, v{V}
        v_max_f32 v{V}, 0, v{V}
        v_cvt_pk_bf16_f32 v{T}, v{M}, v{V}
        v_lshlrev_b32 v{M}, 16, v{T}
        v_and_b32 v{V}, 0xffff0000, v{T}
        v_add_f32 v{V}, 0x3727c5ac, v{V}
        v_cvt_pk_bf16_f32 v{V}, v{V}, v{V}
        v_and_b32 v{V}, 0xffff0000, v{V}
        v_sqrt_f32 v{V}, v{V}
        v_cvt_pk_bf16_f32 v{V}, v{V}, v{V}
        v_and_b32 v{V}, 0xffff0000, v{V}
        v_rcp_f32 v{V}, v{V}
        """)
    for i in range(2):
        M,V=24+3*i,25+3*i; f=F+8*i; o=O+8*i
        for j in range(8): k(f"v_sub_f32 v{f+j}, v{f+j}, v{M}")
        for j in range(4): k(f"v_cvt_pk_bf16_f32 v{o+2*j}, v{f+2*j}, v{f+2*j+1}")
        for j in range(4): k(f"v_lshlrev_b32 v{f+2*j}, 16, v{o+2*j}\nv_and_b32 v{f+2*j+1}, 0xffff0000, v{o+2*j}")
        for j in range(8): k(f"v_mul_f32 v{f+j}, v{f+j}, v{V}")
        for j in range(4): k(f"v_cvt_pk_bf16_f32 v{o+2*j}, v{f+2*j}, v{f+2*j+1}\nv_mov_b32 v{o+2*j+1}, v{X+4*i+j}")
        k(f"ds_write_b128 v4, v[{o}:{o+3}] offset:{i*ROWS}\nds_write_b128 v4, v[{o+4}:{o+7}] offset:{i*ROWS+16}")
    k("s_waitcnt lgkmcnt(0)\ns_barrier        ; B1")
    for it in range(4):
        k(f"ds_read_b64_tr_b16 v[{12+4*it}:{13+4*it}], v5 offset:{it*128}")
        k(f"ds_read_b64_tr_b16 v[{14+4*it}:{15+4*it}], v5 offset:{it*128+4*ROWS}")
    for it in range(4):
        k(f"s_waitcnt lgkmcnt({6-2*it})")
        k(f"buffer_store_dwordx4 v[{12+4*it}:{15+4*it}], v11, s[4:7], s24 offen sc1")
        if it<3: k(f"s_add_u32 s24, s24, {16*16384}")
    ts(k,2,False)
    k("s_waitcnt vmcnt(4)\nv_readfirstlane_b32 s60, v10")
    kparams(k)
    k("s_mul_i32 s60, s60, 1664525\ns_add_u32 s60, s60, 1013904223")
    W=36; X0=38; X1=40; T=42; C=44
    direct(k, W, 8, 9, 8, T)
    k(f"v_mov_b32 v{C}, 0x00003f80\nds_write_b32 v30, v{C}")
    k(f"v_cvt_pk_bf16_f32 v{C+1}, v{W}, v{W+1}\nds_write_b32 v30, v{C+1} offset:{TROW}")
    cur=W
    for j in range(2,32):
        nxt = X0 if cur!=X0 else X1
        cmul(k, nxt, cur, W, T)
        c=C+(j&3)
        k(f"v_cvt_pk_bf16_f32 v{c}, v{nxt}, v{nxt+1}\nds_write_b32 v30, v{c} offset:{TROW*j}")
        cur=nxt
    k(f"""
    v_and_b32 v4, 31, v2
    v_mul_u32_u24 v4, {TROW}, v4
    v_lshrrev_b32 v5, 5, v2
    v_lshl_add_u32 v4, v5, 4, v4
    s_mul_i32 s29, s66, {TBL}
    v_add_u32 v4, s29, v4
    s_waitcnt vmcnt(0) lgkmcnt(0)
    s_barrier        ; B2
    """)
    ts(k,3)
    NB=6; KR=112
    def rd(s):
        b=KR+8*(s%NB)
        k(f"ds_read_b128 v[{b}:{b+3}], v4 offset:{TA+32*s}\nds_read_b128 v[{b+4}:{b+7}], v4 offset:{TB+32*s}")
    for s in range(NB-1): rd(s)
    k(f"""
    s_mul_i32 s29, s3, {KCC}
    s_add_u32 s29, s29, {KC+7*16}
    v_add_u32 v5, s29, v7
    v_and_b32 v8, 1, v2
    v_mul_u32_u24 v8, {KCC}, v8
    v_bfe_u32 v9, v2, 1, 3
    v_lshrrev_b32 v10, 4, v2
    v_sub_u32 v9, v9, v10
    v_add_u32 v9, 3, v9
    v_lshl_add_u32 v8, v9, 4, v8
    s_mul_i32 s29, s66, {2*KCC}
    s_and_b32 s69, s3, 1                     ; c-half
    s_lshl_b32 s56, s69, 8
    s_add_u32 s29, s29, s56
    s_add_u32 s29, s29, {KC}
    v_add_u32 v8, s29, v8
    v_and_b32 v9, 3, v2
    v_mul_u32_u24 v11, {UCC}, v9
    v_bfe_u32 v12, v2, 2, 2
    v_lshl_add_u32 v13, v12, 3, v10
    v_lshl_add_u32 v11, v13, 4, v11
    s_mul_i32 s29, s66, {UCH}
    s_sub_u32 s29, s29, s56
    s_add_u32 s29, s29, {UC+16*16}
    v_add_u32 v11, s29, v11
    v_lshlrev_b32 v13, 5, v10
    v_lshl_add_u32 v13, v9, 2, v13
    v_lshl_add_u32 v13, v12, 7, v13
    v_and_b32 v14, 1, v2
    v_cmp_eq_u32 s[58:59], 1, v14
    """)
    D=16
    PE=E_("PE",-1)
    def early():
        k(f"s_cmp_lg_u32 s3, 0\ns_cbranch_scc1 L_pe\nv_lshlrev_b32 v3, {SP1}, v2\ns_mov_b32 s30, {WS_F1:#x}")
        for j in range(4):
            k(f"buffer_load_dword v{52+j}, v3, s[4:7], s30 offen sc1")
            if j<3: k(f"s_add_u32 s30, s30, {64<<SP1}")
        k("L_pe:")
    for s in range(17):
        if s==PE: early()
        if s==16: break
        if s+NB-1<16: rd(s+NB-1)
        k(f"s_waitcnt lgkmcnt({2*(min(15,s+NB-1)-s)})")
        b=KR+8*(s%NB)
        k(f"v_mfma_f32_32x32x16_bf16 v[{D}:{D+15}], v[{b}:{b+3}], v[{b+4}:{b+7}], {'0' if s==0 else f'v[{D}:{D+15}]'}")
    e=lambda r: D+r
    O=32
    k(f"v_cndmask_b32 v48, v{e(11)}, v{e(12)}, s[58:59]\nv_cndmask_b32 v49, v{e(13)}, v{e(14)}, s[58:59]")
    k("s_cmp_eq_u32 s69, 0\ns_cbranch_scc1 L2_a0")
    def grp(idx, pairs):
        o=O+4*idx
        for t,(lo,hi) in enumerate(pairs):
            if t>0 and pairs[t-1]==(lo,hi): k(f"v_mov_b32 v{o+t}, v{o+t-1}")
            else: k(f"v_cvt_pk_bf16_f32 v{o+t}, v{lo}, v{hi}")
        k(f"ds_write_b128 v5, v[{o}:{o+3}] offset:{idx*1024}")
    grp(0,[(e(7),e(6)),(e(5),e(4)),(e(3),e(2)),(e(1),e(0))])
    grp(1,[(e(10),e(10)),(e(9),e(9)),(e(9),e(8)),(e(8),e(8))])
    grp(2,[(e(12),e(12)),(e(12),48),(e(11),e(11)),(e(11),e(11))])
    grp(3,[(e(14),e(14)),(e(14),49),(e(13),e(13)),(e(13),e(13))])
    k("s_branch L2_conv\nL2_a0:")
    k("v_mov_b32 v50, 0")
    k(f"v_mov_b32_dpp v50, v{e(7)} wave_shr:1 row_mask:0xf bank_mask:0xf bound_ctrl:1")
    grp(1,[(e(10),e(9)),(e(9),e(9)),(e(8),e(8)),(e(8),e(8))])
    grp(2,[(e(12),e(12)),(48,e(11)),(e(11),e(11)),(e(11),e(11))])
    grp(3,[(e(14),e(14)),(49,e(13)),(e(13),e(13)),(e(13),e(13))])
    grp(0,[(e(6),e(5)),(e(4),e(3)),(e(2),e(1)),(e(0),50)])
    k(f"""
    L2_conv:
    v_lshlrev_b32 v3, {SP1}, v2
    s_mov_b32 s29, {WS_F1:#x}
    s_cmp_lg_u32 s3, 0
    s_cbranch_scc1 L_p1x
    """)
    if PE>=0:
        k("s_waitcnt vmcnt(0)")
        for j in range(4): k(f"v_xor_b32 v{52+j}, s60, v{52+j}")
        k("v_or_b32 v52, v52, v53\nv_or3_b32 v52, v52, v54, v55\nv_cmp_ne_u32 vcc, 0, v52\ns_cbranch_vccz L_p1x")
    poll(k,"L_p1",3,4,29,52,SL1,SP1)
    k("s_waitcnt lgkmcnt(0)\ns_barrier        ; B3")
    ts(k,4)
    eloads(k)
    AF=[48,112]; BF=[80,144]; ACC=16
    def rdA(buf,g,cl): k(f"ds_read_b128 v[{AF[buf]+4*g}:{AF[buf]+4*g+3}], v8 offset:{512*g+64*cl}")
    def rdB(buf,t,cl): k(f"ds_read_b128 v[{BF[buf]+4*t}:{BF[buf]+4*t+3}], v11 offset:{512*t+(12-4*cl)*16}")
    for g in range(8): rdA(1,g,0)
    uprep(k, 0)
    ts(k,5)
    k("s_setprio 1")
    for t in range(8): rdB(1,t,0)
    first=[True]*8
    for cl in range(4):
        buf=(cl&1)^1
        pend=[]
        if cl<3:
            for g in range(8): pend += [("A",g),("B",g)]
        seq=[(t,g) for t in range(8) for g in range(t+1)]
        issued=0
        for idx,(t,g) in enumerate(seq):
            if g==0:
                if cl==0: k(f"s_waitcnt lgkmcnt({min(15,7-t+issued)})")
                else: k(f"s_waitcnt lgkmcnt({min(15,14-2*t+issued)})")
            a=AF[buf]+4*g; b=BF[buf]+4*(t-g); c=ACC+4*t
            k(f"v_mfma_f32_16x16x32_bf16 v[{c}:{c+3}], v[{a}:{a+3}], v[{b}:{b+3}], {'0' if first[t] else f'v[{c}:{c+3}]'}")
            first[t]=False
            start = 4
            if pend and idx>=start and (idx%2==0 or len(seq)-idx<=len(pend)+2):
                kind,j=pend.pop(0)
                (rdA if kind=="A" else rdB)(buf^1,j,cl+1); issued+=1
        assert not pend
    k(f"""
    s_lshl_b32 s29, s3, 12
    s_add_u32 s29, s29, {RED}
    v_add_u32 v4, s29, v7
    s_xor_b32 s29, s3, 1
    s_lshl_b32 s29, s29, 12
    s_add_u32 s29, s29, {RED}
    v_add_u32 v5, s29, v7
    s_lshl_b32 s29, s3, 11
    s_lshl_b32 s57, s2, 13
    s_add_u32 s57, s57, s29
    s_add_u32 s57, s57, {WS_HT}
    s_add_u32 s29, s29, {XT}
    v_add_u32 v6, s29, v13
    v_add_u32 v9, s29, v7
    """)
    XR=112
    for t in range(4):
        k(f"ds_read_b32 v{XR+4*t}, v6 offset:{512*t}\nds_read_b32 v{XR+1+4*t}, v6 offset:{512*t+16}")
        k(f"ds_read_b32 v{XR+2+4*t}, v6 offset:{512*t+T1-XT}\nds_read_b32 v{XR+3+4*t}, v6 offset:{512*t+16+T1-XT}")
    k("s_cmp_eq_u32 s69, 0\ns_cbranch_scc1 L2_r0")
    for t in range(4): k(f"ds_write_b128 v4, v[{ACC+4*t}:{ACC+4*t+3}] offset:{1024*t}")
    k("s_waitcnt lgkmcnt(0)")
    for j in range(16): k(f"v_mov_b32 v{ACC+j}, v{ACC+16+j}")
    k("s_branch L2_r1\nL2_r0:")
    for t in range(4): k(f"ds_write_b128 v4, v[{ACC+16+4*t}:{ACC+16+4*t+3}] offset:{1024*t}")
    k(f"""
    L2_r1:
    s_lshl_b32 s29, s3, 2
    s_add_u32 s29, s29, {PF}
    v_mov_b32 v8, s29
    v_xor_b32 v10, 4, v8
    ds_write_b32 v8, v8
    s_mov_b32 s31, 0
    L_b5:
    ds_read_b32 v11, v10
    s_add_u32 s31, s31, 1
    s_waitcnt lgkmcnt(0)
    v_cmp_eq_u32 vcc, 0, v11
    s_cmp_gt_u32 s31, 100000
    s_cbranch_scc1 L_b5x
    s_cbranch_vccnz L_b5
    L_b5x:
    """)
    for t in range(4): k(f"ds_read_b128 v[{48+4*t}:{51+4*t}], v5 offset:{1024*t}")
    for t in range(4):
        for hh in range(2):
            i=2*t+hh
            k(f"v_lshlrev_b32 v{64+2*i}, 16, v{XR+4*t+hh}\nv_and_b32 v{65+2*i}, 0xffff0000, v{XR+4*t+hh}")
            k(f"v_lshlrev_b32 v{80+2*i}, 16, v{XR+2+4*t+hh}\nv_and_b32 v{81+2*i}, 0xffff0000, v{XR+2+4*t+hh}")
    for t in range(4):
        k(f"s_waitcnt lgkmcnt({3-t+2*t})")
        a=ACC+4*t
        for r in range(4): k(f"v_add_f32 v{a+r}, v{a+r}, v{48+4*t+r}")
        def rnd(): k(f"v_cvt_pk_bf16_f32 v{a}, v{a}, v{a+1}\nv_cvt_pk_bf16_f32 v{a+2}, v{a+2}, v{a+3}")
        def unp():
            k(f"v_and_b32 v{a+1}, 0xffff0000, v{a}\nv_and_b32 v{a+3}, 0xffff0000, v{a+2}")
            k(f"v_lshlrev_b32 v{a}, 16, v{a}\nv_lshlrev_b32 v{a+2}, 16, v{a+2}")
        rnd(); unp()
        for r in range(4): k(f"v_add_f32 v{a+r}, v{a+r}, v{80+4*t+r}")
        rnd(); unp()
        for r in range(4): k(f"v_add_f32 v{a+r}, v{a+r}, v{64+4*t+r}")
        rnd()
        k(f"ds_write_b32 v6, v{a} offset:{512*t}\nds_write_b32 v6, v{a+2} offset:{512*t+16}")
    k(f"""
    s_waitcnt lgkmcnt(0)
    ds_read_b128 v[48:51], v9
    ds_read_b128 v[52:55], v9 offset:1024
    s_waitcnt lgkmcnt(1)
    buffer_store_dwordx4 v[48:51], v7, s[4:7], s57 offen sc1
    s_waitcnt lgkmcnt(0)
    buffer_store_dwordx4 v[52:55], v7, s[4:7], s57 offen offset:1024 sc1
    """)
    ts(k,6,False)
    rot2init(k, NM)
    MSL=E_("MSL",0)
    NA=4; AW=48; BW=[16,32]; ACC=64
    k(f"""
    v_lshrrev_b32 v3, 4, v2                  ; q
    v_bfe_u32 v4, v2, 2, 2                   ; r
    v_lshl_add_u32 v5, v3, 2, v4             ; row 4q+r
    v_and_b32 v6, 3, v2                      ; c
    v_mul_u32_u24 v8, 224, v5
    v_and_b32 v10, 1, v6
    v_lshl_add_u32 v10, v10, 3, v8
    v_lshrrev_b32 v11, 1, v6
    v_mul_u32_u24 v11, {UOFF}, v11
    s_lshl_b32 s29, s66, 4
    s_add_u32 s29, s29, {WB+96}
    v_add3_u32 v10, v10, v11, s29            ; A mixed
    v_add_u32 v11, {4*WSL}, v10
    v_lshl_add_u32 v8, v6, 3, v8
    s_lshl_b32 s29, s66, 7
    s_add_u32 s29, s29, {WB}
    v_add_u32 v8, s29, v8                    ; A normal
    v_add_u32 v9, {4*WSL}, v8
    v_lshlrev_b32 v1, 8, v5
    v_lshl_add_u32 v1, v6, 3, v1
    v_add_u32 v1, {HB}, v1
    v_and_b32 v5, 7, v5
    s_lshl_b32 s29, s69, 2
    v_xor_b32 v5, s29, v5
    """)
    for lb in range(4):
        k(f"v_xor_b32 v6, {lb}, v5\nv_lshl_add_u32 v{12+lb}, v6, 5, v1")
    k(f"""
    v_and_b32 v1, 15, v2                     ; m
    v_lshlrev_b32 v6, 4, v1
    s_lshl_b32 s29, s66, 11
    s_add_u32 s29, s29, {AP}
    v_add_u32 v4, s29, v6
    v_lshrrev_b32 v5, 3, v1
    v_lshl_add_u32 v5, v5, 7, v6
    s_lshl_b32 s29, s66, 7
    s_add_u32 s29, s29, {AP+96*16}
    v_add_u32 v5, s29, v5
    s_lshl_b32 s29, s69, 10
    s_add_u32 s29, s29, {FS}
    v_add_u32 v6, s29, v6
    v_add_u32 v1, s29, v7
    v_cmp_eq_u32 s[56:57], 0, v3
    s_lshl_b32 s70, s61, 1
    s_add_u32 s70, s70, s69
    s_mul_i32 s70, s70, 224
    s_mul_i32 s29, s62, 7
    s_add_u32 s70, s70, s29
    s_add_u32 s71, s70, 3
    s_lshl_b32 s29, s66, 2
    s_add_u32 s70, s70, s29
    s_lshl_b32 s70, s70, 10
    s_add_u32 s70, s70, {WS_HG}
    s_lshl_b32 s71, s71, 10
    s_lshl_b32 s29, s66, 9
    s_add_u32 s71, s71, s29
    s_add_u32 s71, s71, {WS_HG}
    v_lshlrev_b32 v3, {SP2}, v2
    s_lshl_b32 s29, s2, {SP2}
    s_add_u32 s29, s29, {WS_F2}
    {TSI+' s[82:83]' if STAMP and E_('B6S',0) else ''}
    s_waitcnt vmcnt(0)
    {TSI+' s[84:85]' if STAMP and E_('B6S',0) else ''}
    s_barrier        ; B6
    {TSI+' s[86:87]' if STAMP and E_('B6S',0) else ''}
    s_cmp_lg_u32 s3, 0
    s_cbranch_scc1 L_f2x
    """)
    flag(k,29,48)
    k("L_f2x:")
    if MSL: k(f"s_sleep {MSL}")
    NMA=E_("NMA",10); POLM=E_("POLM",1); TM0=E_("TM0",90); TMS=E_("TMS",2)
    for i in range(NMA): wtload(k, MA, i)
    if POLM:
        k(f"s_cmp_lg_u32 s3, 1\ns_cbranch_scc1 L_p2x\ns_mov_b32 s29, {WS_F2:#x}")
        poll(k,"L_p2",3,4,29,48,SL2,SP2)
    mt=[NMA]
    k("s_barrier        ; B7")
    ts(k,7)
    q=[]
    ZS=32; ZM=40
    FBB=E_("FBB",2)
    def rdA1(t,h=None):
        b=AW+4*(t%NA)
        if t>=119: return
        if h is None: rdA1(t,0); rdA1(t,1); return
        j=t//7; fb=t%7
        if j==16:
            if h: return
            if fb<6: k(f"ds_read_b128 v[{b}:{b+3}], v4 offset:{(fb>>1)*512+(fb&1)*256}")
            else: k(f"ds_read_b128 v[{b}:{b+3}], v5")
            q.append(("A",t)); return
        sl=j%NW
        va = (8 if fb<6 else 10) + (0 if sl<4 else 1)
        off=(sl%4)*WSL + ((fb&1)*UOFF + (fb>>1)*32 if fb<6 else 0)
        k(f"ds_read_b64_tr_b16 v[{b+2*h}:{b+2*h+1}], v{va} offset:{off+h*16*224}")
        q.append(("A",t))
    def rdB1(s,lb,h=None):
        b=BW[s&1]+4*lb
        if h is None: rdB1(s,lb,0); rdB1(s,lb,1); return
        if s==16:
            if h: return
            k(f"ds_read_b64 v[{b}:{b+1}], v6 offset:{lb*256}\nv_mov_b32 v{b+2}, 0\nv_mov_b32 v{b+3}, 0"); q.append(("B",s,lb)); return
        off=(s%NH)*HS
        k(f"ds_read_b64_tr_b16 v[{b+2*h}:{b+2*h+1}], v{12+lb} offset:{off+h*4096}")
        q.append(("B",s,lb))
    k("s_barrier        ; G0")
    if STAMP: k("s_memtime s[72:73]")
    ts(k,8)
    rdB1(0,0); rdA1(0)
    for lb in range(1,4): rdB1(0,lb)
    for t in range(1,NA): rdA1(t)
    waited=[-1]
    def need(tag):
        n=max(idx for idx,x in enumerate(q) if x==tag)
        if n>waited[0]:
            k(f"s_waitcnt lgkmcnt({len(q)-1-n})"); waited[0]=n
    for t in range(119):
        s=t//7; fb=t%7
        a=AW+4*(t%NA)
        for lb in range(4):
            if lb==0: need(("A",t))
            if fb==0:
                need(("B",s,lb))
                if s==16:
                    b=BW[0]+4*lb
                    k(f"v_cndmask_b32 v{b}, 0, v{b}, s[56:57]\nv_cndmask_b32 v{b+1}, 0, v{b+1}, s[56:57]")
            c=ACC+16*fb+4*lb; b=BW[s&1]+4*lb
            k(f"v_mfma_f32_16x16x32_bf16 v[{c}:{c+3}], v[{a}:{a+3}], v[{b}:{b+3}], {'0' if s==0 else f'v[{c}:{c+3}]'}")
            if s<16:
                if fb==FBB and lb==1 and s<15: k("s_barrier")
                if FBB<=fb<FBB+4 and lb in (1,2): rdB1(s+1,fb-FBB,lb-1)
            if s==16 and fb==1:
                k(f"ds_read_b64 v[{ZS+2*lb}:{ZS+2*lb+1}], v6 offset:{lb*256+8}"); q.append(("Z",0))
                if lb==3: k(f"ds_read_b64 v[{ZM}:{ZM+1}], v1 offset:8"); q.append(("Z",0))
            if lb==2 and t>=TM0 and (t-TM0)%TMS==0 and mt[0]<2*NM:
                wtload(k, MA, mt[0]); mt[0]+=1
            if lb==3: rdA1(t+NA,0)
            if lb==0 and t>0: rdA1(t-1+NA,1)
    while mt[0]<2*NM:
        wtload(k, MA, mt[0]); mt[0]+=1
    ts(k,10,False)
    if STAMP: k("s_memtime s[74:75]")
    k(f"""
    v_add_u32 v6, {112*1024}, v7
    v_and_b32 v4, 31, v2
    v_lshlrev_b32 v4, 4, v4
    v_lshrrev_b32 v5, 5, v2
    v_mul_u32_u24 v5, {112*1024}, v5
    v_add_u32 v4, v4, v5
    s_waitcnt lgkmcnt(0)
    """)
    def glu(gs, us, zs, outs):
        for g,z in zip(gs,zs): k(f"v_pk_mul_f32 v[{g}:{g+1}], v[{g}:{g+1}], v[{z}:{z+1}] op_sel_hi:[1,0]")
        for g in gs: k(f"v_exp_f32 v{g}, v{g}\nv_exp_f32 v{g+1}, v{g+1}")
        for g,z in zip(gs,zs): k(f"v_pk_fma_f32 v[{g}:{g+1}], v[{g}:{g+1}], v[{z}:{z+1}], v[{z}:{z+1}] op_sel:[0,1,1] op_sel_hi:[1,1,1]")
        for g in gs: k(f"v_rcp_f32 v{g}, v{g}\nv_rcp_f32 v{g+1}, v{g+1}")
        for g,u in zip(gs,us): k(f"v_pk_mul_f32 v[{g}:{g+1}], v[{g}:{g+1}], v[{u}:{u+1}]")
        for g,o in zip(gs,outs): k(f"v_cvt_pk_bf16_f32 v{o}, v{g}, v{g+1}")
    n=0
    for i in range(3):
        for L in range(2):
            cg=ACC+32*i+8*L; cu=cg+16; o=AW+4*(n&3); n+=1
            glu([cg,cg+2,cg+4,cg+6],[cu,cu+2,cu+4,cu+6],[ZS+4*L,ZS+4*L,ZS+4*L+2,ZS+4*L+2],[o,o+1,o+2,o+3])
            k(f"v_permlane16_swap_b32 v{o}, v{o+2}\nv_permlane16_swap_b32 v{o+1}, v{o+3}")
            k(f"buffer_store_dwordx4 v[{o}:{o+3}], v{7-L}, s[4:7], s70 offen offset:{1024*i} sc1")
        if i==0:
            c=ACC+96
            for r in range(4): k(f"v_permlane32_swap_b32 v{c+r}, v{c+8+r}\nv_permlane32_swap_b32 v{c+4+r}, v{c+12+r}")
            for r in range(4): k(f"v_permlane16_swap_b32 v{c+r}, v{c+4+r}\nv_permlane16_swap_b32 v{c+8+r}, v{c+12+r}")
    c=ACC+96; o=AW+4*(n&3)
    glu([c,c+2,c+4,c+6],[c+8,c+10,c+12,c+14],[ZM]*4,[o,o+1,o+2,o+3])
    k(f"buffer_store_dwordx4 v[{o}:{o+3}], v4, s[4:7], s71 offen sc1")
    k(f"""
    s_setprio 0
    s_lshl_b32 s29, s61, 4
    s_add_u32 s29, s29, s62
    s_lshl_b32 s29, s29, 6
    s_add_u32 s29, s29, {WS_F3}
    s_lshl_b32 s23, s3, 14
    v_add_u32 v5, s23, v7
    v_and_b32 v3, 15, v2
    v_lshlrev_b32 v3, 6, v3
    s_waitcnt vmcnt(0)
    s_barrier        ; B8
    s_cmp_lg_u32 s3, 0
    s_cbranch_scc1 {'L_nf3' if PW else 'L_p3x'}
    """)
    flag(k,29,48)
    if PW:
        k(f"""L_nf3:
        s_lshr_b32 s29, s63, 1
        s_lshl_b32 s29, s29, 10
        s_lshl_b32 s23, s65, 8
        s_add_u32 s29, s29, s23
        s_add_u32 s29, s29, {WS_F3}
        v_and_b32 v3, 3, v2
        v_lshlrev_b32 v3, 6, v3
        """)
        pollw(k,"L_p3",3,48,29,1 if PW==1 else 3,SL3,False)
    else:
        k(f"s_lshr_b32 s29, s63, 1\ns_lshl_b32 s29, s29, 10\ns_add_u32 s29, s29, {WS_F3}")
        poll(k,"L_p3",3,1,29,48,SL3)
        k("s_barrier        ; B9")
    ts(k,9,False)
    A2=48
    slots=[8+8*i for i in range(5)]+[112+8*i for i in range(5)]
    for s in range(NM):
        if PW==1 and s==7: pollw(k,"L_p3b",3,48,29,2,0,True)
        hgload(k, slots[s], s, NM)
    for s in range(NM):
        for lb in range(2):
            k(f"s_waitcnt vmcnt({2*(NM-1-s)+1-lb})")
            for db in range(2):
                c=A2+16*(db+2*lb); a=MA+8*s+4*db; b=slots[s]+4*lb
                k(f"v_mfma_f32_32x32x16_bf16 v[{c}:{c+15}], v[{a}:{a+3}], v[{b}:{b+3}], {'0' if s==0 else f'v[{c}:{c+15}]'}")
    for j in range(16):
        k(f"ds_write_b128 v5, v[{A2+4*j}:{A2+4*j+3}] offset:{G2M+j*1024}")
    k(f"""
    s_waitcnt lgkmcnt(0)
    s_barrier        ; B10
    s_or_b32 s23, s2, s3
    s_cmp_lg_u32 s23, 0
    s_cbranch_scc1 L_mend
    s_mov_b32 s29, {WS_TAG:#x}
    """)
    flag(k,29,48)
    k("L_mend:")
    flush(k,[1,2,3,4,5,6,7,8,10,9],0,0)
    k("s_endpgm")

def gen_help(k):
    VH=100; VW=102
    CS=72; WJ=88
    k(f"""
    L_help:
    v_lshrrev_b32 v12, 3, v2
    v_and_b32 v13, 7, v2
    v_lshlrev_b32 v14, 4, v13
    v_lshl_add_u32 v14, v12, 10, v14
    v_add_u32 v15, {8192-1024}, v14
    s_lshr_b32 s29, s2, 1                    ; kf
    s_and_b32 s30, s2, 1
    s_lshl_b32 s30, s30, 2
    s_add_u32 s30, s30, s65
    s_lshl_b32 s31, s29, 14
    s_lshl_b32 s52, s30, 7
    s_add_u32 s31, s31, s52
    s_lshl_b32 s52, s65, 11
    s_add_u32 s52, s52, {WDS}
    s_mov_b32 m0, s52
    s_mul_i32 s53, s30, 112
    s_add_u32 s53, s53, s29
    s_lshl_b32 s53, s53, 11
    s_add_u32 s53, s53, {WS_WT}
    s_mov_b32 s10, {1792*512*2:#x}
    s_mov_b32 s11, 0x20000
    s_waitcnt lgkmcnt(0)
    s_mov_b32 s8, s16
    s_mov_b32 s9, s17
    s_mov_b32 s4, s20
    s_mov_b32 s5, s21
    s_cmp_ge_u32 s2, 224
    s_cbranch_scc1 L_h0
    buffer_load_dwordx4 v14, s[8:11], s31 offen lds
    buffer_load_dwordx4 v15, s[8:11], s31 offen offset:1024 lds
    L_h0:
    global_load_ushort v8, v4, s[38:39]
    global_load_ushort v9, v4, s[40:41]
    global_load_ushort v10, v4, s[42:43]
    global_load_ushort v11, v4, s[44:45]
    buffer_load_dword v16, v5, s[4:7], s23 offen sc1
    s_load_dword s27, s[46:47], s22
    s_load_dword s28, s[48:49], s22
    s_getpc_b64 s[54:55]
    L_pc:
    s_add_u32 s54, s54, L_begin-L_pc
    s_addc_u32 s55, s55, -1
    s_lshr_b32 s29, s2, 3
    s_lshl_b32 s29, s29, 2
    s_add_u32 s29, s29, s65
    s_lshl_b32 s29, s29, 9
    v_and_b32 v17, 7, v2
    v_lshl_add_u32 v17, v17, 6, s29
    v_min_u32 v17, L_stop-L_begin-4, v17
    global_load_dword v17, v17, s[54:55]
    """)
    common_addr(k)
    k(f"""
    v_lshrrev_b32 v18, 5, v2
    v_bfe_u32 v19, v2, 2, 2
    v_lshl_add_u32 v18, v18, 3, v19
    v_lshlrev_b32 v18, 7, v18
    v_and_b32 v19, 1, v2
    v_lshl_add_u32 v18, v19, 5, v18
    v_bfe_u32 v19, v2, 4, 1
    v_lshl_add_u32 v18, v19, 4, v18
    v_bfe_u32 v19, v2, 1, 1
    v_lshl_add_u32 v18, v19, 3, v18
    v_add_u32 v18, s52, v18
    s_barrier        ; B1
    s_cmp_ge_u32 s2, 224
    s_cbranch_scc1 L_h1
    s_waitcnt vmcnt(6)
    """)
    for db in range(2):
        k(f"ds_read_b64_tr_b16 v[{WJ+4*db}:{WJ+4*db+1}], v18 offset:{64*db}\nds_read_b64_tr_b16 v[{WJ+4*db+2}:{WJ+4*db+3}], v18 offset:{64*db+512}")
    k(f"""
    s_waitcnt lgkmcnt(0)
    buffer_store_dwordx4 v[{WJ}:{WJ+3}], v7, s[4:7], s53 offen sc1
    buffer_store_dwordx4 v[{WJ+4}:{WJ+7}], v7, s[4:7], s53 offen offset:1024 sc1
    s_waitcnt vmcnt(3)
    s_branch L_h2
    L_h1:
    s_waitcnt vmcnt(1) lgkmcnt(0)
    L_h2:
    v_readfirstlane_b32 s60, v16
    """)
    ts(k,1,False)
    kparams(k)
    k("s_mul_i32 s60, s60, 1664525\ns_add_u32 s60, s60, 1013904223")
    Z1=36; Z8=38; V=40; Z2=42; Z4=44; T=46; E=48; X0=50; X1=52; CC=54; C=56
    k("v_sub_f32 v9, 0, v9")
    direct(k, Z1, 8, 9, 1, T)
    direct(k, Z8, 8, 9, 8, T)
    direct(k, V, 8, 9, 256, T)
    k(f"""
    v_add_f32 v34, v34, v34
    v_lshlrev_b32 v10, 16, v10
    v_lshlrev_b32 v11, 16, v11
    v_mul_f32 v{CC}, v10, v34
    v_mul_f32 v{CC+1}, -v11, v34
    """)
    cnt=[0]
    def put(src, rows):
        c=C+(cnt[0]&3); cnt[0]+=1
        k(f"v_cvt_pk_bf16_f32 v{c}, v{src}, v{src+1}")
        for (r,h) in rows: k(f"ds_write_b32 v30, v{c} offset:{TROW*rho(r,h)}")
    put(CC,[(0,0)])
    cmul(k,Z2,Z1,Z1,T)
    cur=CC
    for r in range(1,8):
        nxt = X0 if cur!=X0 else X1
        cmul(k,nxt,cur,Z1,T); put(nxt,[(r,0)]); cur=nxt
    cmul(k,Z4,Z2,Z2,T)
    cmul(k,E,CC,V,T); put(E,[(0,1),(1,1)])
    cur=E
    for rows in ([(2,1)],[(3,1),(4,1),(5,1)],[(6,1)],[(7,1)]):
        nxt = X0 if cur!=X0 else X1
        cmul(k,nxt,cur,Z2,T); put(nxt,rows); cur=nxt
    ecur=E
    for h in (0,1):
        en = CC if ecur==E else E
        cmul(k,en,ecur,V,T); put(en,[(8,h)]); ecur=en
        cmul(k,X0,ecur,Z4,T); put(X0,[(9,h)])
        cmul(k,X1,X0,Z4,T); put(X1,[(10,h)])
    for (r,h) in ((11,0),(11,1),(13,0),(13,1)):
        en = CC if ecur==E else E
        cmul(k,en,ecur,V,T); put(en,[(r,h)]); ecur=en
        cmul(k,X0,ecur,Z8,T); put(X0,[(r+1,h)])
    k(f"""
    s_lshr_b32 s52, s2, 3
    s_min_u32 s53, s52, 27
    s_and_b32 s29, s2, 1
    s_mul_i32 s29, s29, 28
    s_add_u32 s29, s29, s53                  ; t
    s_mul_i32 s30, s29, 4682
    s_lshr_b32 s30, s30, 16                  ; kchunk
    s_mul_i32 s31, s30, 14
    s_sub_u32 s29, s29, s31
    s_cmp_ge_u32 s29, 7
    s_cselect_b32 s8, s14, s12
    s_cselect_b32 s9, s15, s13
    s_cselect_b32 s31, 7, 0
    s_cselect_b32 s53, {1792*4}, 0
    s_sub_u32 s29, s29, s31
    s_bfe_u32 s31, s2, 0x20001
    s_mul_i32 s31, s31, 7
    s_add_u32 s29, s29, s31                  ; cb
    s_lshl_b32 s30, s30, 2
    s_add_u32 s30, s30, s65
    s_mul_i32 s31, s30, {32*3584}
    s_lshl_b32 s54, s29, 7
    s_add_u32 s31, s31, s54                  ; W soffset
    s_mul_i32 s30, s30, {3584*4}
    s_lshl_b32 s29, s29, 8
    s_add_u32 s30, s30, s29
    s_add_u32 s53, s53, s30
    s_add_u32 s53, s53, {WS_CS}
    v_mul_u32_u24 v12, 3584, v12
    v_lshl_add_u32 v12, v13, 4, v12
    v_lshrrev_b32 v14, 4, v2
    v_lshlrev_b32 v14, 3, v14
    v_lshl_add_u32 v13, v13, 5, v14
    s_lshl_b32 s29, s2, {SP1}
    s_add_u32 s29, s29, {WS_F1}
    s_waitcnt vmcnt(0) lgkmcnt(0)
    s_barrier        ; B2
    s_cmp_lg_u32 s3, 4
    s_cbranch_scc1 L_h3
    """)
    flag(k,29,20)
    k("L_h3:")
    ts(k,2,False)
    for i in range(4):
        k(f"buffer_load_dwordx4 v[{CS+4*i}:{CS+4*i+3}], v12, s[8:11], s31 offen")
        if i<3: k(f"s_add_u32 s31, s31, {8*3584}")
    WARM=E_("WARM",2)
    def warm():
        if WARM&2: k("s_bitcmp1_b32 s2, 0\ns_cbranch_scc1 L_nw")
        k(f"s_mov_b32 s29, {8*114688-24*3584:#x}\ns_bitcmp1_b32 s2, 0\ns_cselect_b32 s29, {(-8*114688-24*3584)&0xffffffff:#x}, s29\ns_add_u32 s75, s75, s29")
        for i in range(4):
            k(f"buffer_load_dwordx4 v[{88}:{91}], v12, s[8:11], s75 offen")
            if i<3: k(f"s_add_u32 s75, s75, {8*3584}")
        if WARM&2: k("L_nw:")
    k("s_mov_b32 s75, s31")
    if WARM and not WARM&4: warm()
    rot2init(k, NHS)
    k(f"""
    v_lshrrev_b32 v3, 4, v2
    v_and_b32 v4, 15, v2
    v_lshlrev_b32 v5, 1, v3
    v_xor_b32 v4, v4, v5
    v_lshlrev_b32 v4, 4, v4
    v_lshl_add_u32 v4, v3, 12, v4
    s_lshl_b32 s29, s65, 15
    v_add_u32 v{VH}, s29, v4
    v_xor_b32 v4, 128, v{VH}
    v_add_u32 v{VH+1}, {16384-1024}, v4
    s_lshl_b32 s70, s61, 8
    s_add_u32 s70, s70, {WS_HT}              ; H soffset
    s_mul_i32 s71, s62, 224
    s_mul_i32 s29, s66, 114688
    s_add_u32 s71, s71, s29
    s_lshl_b32 s72, s65, 11
    s_add_u32 s72, s72, {HB}                 ; H lds
    s_and_b32 s29, s65, 1
    s_mul_i32 s73, s29, {UOFF}
    s_mul_i32 s30, s66, {WSL}
    s_add_u32 s73, s73, s30
    s_add_u32 s73, s73, {WB}                 ; W lds
    s_cmp_eq_u32 s29, 0
    s_cselect_b32 s36, s12, s14
    s_cselect_b32 s37, s13, s15
    s_mov_b32 s38, {512*1792*2:#x}
    s_mov_b32 s39, 0x20000
    """)
    for i in range(7):
        k(f"""
        v_add_u32 v6, {64*i}, v2
        v_mul_u32_u24 v5, 4682, v6
        v_lshrrev_b32 v5, 16, v5
        v_mul_u32_u24 v4, 14, v5
        v_sub_u32 v6, v6, v4
        v_mul_u32_u24 v5, 3584, v5
        v_lshl_add_u32 v{VW+i}, v6, 4, v5
        """)
        if i&3: k(f"v_subrev_u32 v{VW+i}, {1024*(i&3)}, v{VW+i}")
    q=[]
    if ROT1:
        k("s_lshr_b32 s59, s2, 6\ns_lshl_b32 s59, s59, 1\ns_bfe_u32 s29, s2, 0x30003\ns_add_u32 s59, s59, s29\ns_and_b32 s59, s59, 7\ns_lshl_b32 s59, s59, 1")
        assert not WARM&4
        k("s_lshl_b32 s75, s59, 17")
    def wso(j):
        if ROT1: k(f"s_add_u32 s31, s59, {j}\ns_and_b32 s31, s31, 15\ns_mul_i32 s31, s31, 114688\ns_add_u32 s31, s31, s71")
        else: k(f"s_add_u32 s31, s71, {j*114688}")
    def issueH(j):
        if j>15 or (E_('NOH',0) and j>=NH): return
        k(f"s_add_u32 m0, s72, {(j%NH)*HS}")
        if ROT1: k(f"s_add_u32 s31, s75, {j*131072}\ns_and_b32 s31, s31, 0x1fffff\ns_add_u32 s31, s31, s70")
        else: k(f"s_add_u32 s31, s70, {j*131072}")
        k(f"buffer_load_dwordx4 v{VH}, s[4:7], s31 offen sc1 lds\nbuffer_load_dwordx4 v{VH+1}, s[4:7], s31 offen offset:1024 sc1 lds")
        q.extend([("H",j)]*2)
    def issueW(j):
        if j>15: return
        k(f"s_add_u32 m0, s73, {(j%NW)*WSL}"); wso(j)
        for i in range(7):
            if i==4: k(f"s_add_u32 m0, s73, {(j%NW)*WSL+4096}")
            k(f"buffer_load_dwordx4 v{VW+i}, s[36:39], s31 offen offset:{1024*(i&3)} lds")
        q.extend([("W",j)]*7)
    def issueW1(b,par):
        if b>15 or (E_('NOW',0) and b>6): return
        o=(b%NW-par)*WSL
        k(f"s_add_u32 m0, s73, {o&0xffffffff:#x}"); wso(b-par)
        for i in range(7):
            if i==4: k(f"s_add_u32 m0, s73, {(o+4096)&0xffffffff:#x}")
            k(f"buffer_load_dwordx4 v{VW+i}, s[36:39], s31 offen offset:{1024*(i&3)} lds")
        q.extend([("V",b)]*7)
    RW=E_("RW",0); NA2=E_("NA2",0); NB6=E_("NB6",4); TR=float(os.environ.get("TR","3.5")); TJ=E_("TJ",3)
    rw=[0]
    def regW(upto):
        while rw[0]<upto:
            n=rw[0]; rw[0]+=1
            if n==4: k("s_cmp_eq_u32 s66, 0\ns_cbranch_scc1 L_rw4")
            for i in range(7):
                k(f"buffer_load_dwordx4 v[{HA+28*n+4*i}:{HA+28*n+4*i+3}], v{VW+i}, s[36:39], s59 offen offset:{1024*(i&3)}")
            if n<4:
                k(f"s_add_u32 s59, s59, {2*114688}"); q.extend([("R",n)]*7)
            else: k("L_rw4:")
    def putW(b,par):
        n=(b-7)>>1
        k(f"v_add_u32 v109, {((b%NW-par)*WSL)&0xffffffff:#x}, v99")
        for i in range(7): k(f"ds_write_b128 v109, v[{HA+28*n+4*i}:{HA+28*n+4*i+3}] offset:{1024*i}")
    if RW:
        assert NW==7
        k(f"s_mul_i32 s59, s66, {(-2*114688)&0xffffffff:#x}\ns_add_u32 s59, s59, s71\ns_add_u32 s59, s59, {8*114688}\nv_add_u32 v99, s73, v7")
        regW(NA2); q.clear()
    wt=[0]
    def issueT(n):
        for _ in range(n):
            if wt[0]<2*NHS:
                wtload(k, HA, wt[0]); q.append(("T",wt[0])); wt[0]+=1
    k("s_barrier        ; B3")
    ts(k,4,False)
    eloads(k)
    uprep(k, 0)
    ts(k,5,False)
    if WARM&4: warm()
    for i in range(4):
        for j in range(4):
            if i==0: k(f"v_lshlrev_b32 v{24+2*j}, 16, v{CS+j}\nv_and_b32 v{25+2*j}, 0xffff0000, v{CS+j}")
            else:
                k(f"v_lshlrev_b32 v32, 16, v{CS+4*i+j}\nv_and_b32 v33, 0xffff0000, v{CS+4*i+j}")
                k(f"v_add_f32 v{24+2*j}, v{24+2*j}, v32\nv_add_f32 v{25+2*j}, v{25+2*j}, v33")
    for i in range(4): k(f"v_permlane32_swap_b32 v{24+i}, v{28+i}")
    for i in range(4): k(f"v_add_f32 v{24+i}, v{24+i}, v{28+i}")
    for i in range(2): k(f"v_permlane16_swap_b32 v{24+i}, v{26+i}")
    for i in range(2): k(f"v_add_f32 v{24+i}, v{24+i}, v{26+i}")
    for i in range(2): k(f"v_add_f32_dpp v{24+i}, v{24+i}, v{24+i} row_ror:8 row_mask:0xf bank_mask:0xf")
    k(f"""
    s_cmp_ge_u32 s52, 28
    s_cbranch_scc1 L_h4
    s_mov_b32 exec_lo, 0x00ff00ff
    s_mov_b32 exec_hi, 0x00ff00ff
    buffer_store_dwordx2 v[24:25], v13, s[4:7], s53 offen sc1
    s_mov_b64 exec, -1
    L_h4:
    """)
    issueW(0); issueW(2)
    if RW: regW(min(NB6,4))
    else: issueT(N1)
    k(f"""
    v_and_b32 v3, 255, v0
    v_lshrrev_b32 v4, 5, v3
    v_lshlrev_b32 v4, 4, v4
    v_and_b32 v5, 15, v3
    v_add_u32 v4, v4, v5
    v_bfe_u32 v5, v3, 4, 1
    v_mul_u32_u24 v5, 112, v5
    v_add_u32 v4, v4, v5
    v_min_u32 v4, 223, v4
    v_lshlrev_b32 v4, 2, v4
    v_add_u32 v110, {PART}, v4
    s_lshl_b32 s29, s65, 10
    s_add_u32 s29, s29, {PART}
    v_add_u32 v111, s29, v7
    v_cmp_le_u32 vcc, 28, v2
    v_mov_b32 v5, {1792*4-28*16}
    v_cndmask_b32 v4, 0, v5, vcc
    v_add_u32 v4, v4, v7
    v_cmp_gt_u32 vcc, 56, v2
    v_mov_b32 v5, 0x7fffff00
    v_cndmask_b32 v4, v5, v4, vcc
    s_mul_i32 s53, s62, 448
    s_mul_i32 s29, s65, {4*3584*4}
    s_add_u32 s53, s53, s29
    s_add_u32 s53, s53, {WS_CS}
    v_lshlrev_b32 v3, 4, v3
    v_add_u32 v3, {AP}, v3
    v_lshrrev_b32 v5, 4, v2                  ; row
    v_and_b32 v15, 15, v2
    v_lshlrev_b32 v12, 6, v15
    v_lshlrev_b32 v13, 4, v15
    v_lshl_add_u32 v6, v5, 12, v13
    s_lshl_b32 s29, s65, 8
    s_add_u32 s29, s29, {PART}
    v_add_u32 v13, s29, v13
    v_lshlrev_b32 v15, 5, v15
    v_and_b32 v1, 1, v5
    v_lshl_add_u32 v15, v1, 4, v15
    v_lshrrev_b32 v1, 1, v5
    v_lshl_add_u32 v15, v1, 9, v15
    s_lshl_b32 s29, s65, 10
    s_add_u32 s29, s29, {PART}
    v_add_u32 v15, s29, v15
    v_and_b32 v1, 7, v2
    v_lshlrev_b32 v14, 4, v1
    v_lshl_add_u32 v14, v5, 10, v14
    v_bfe_u32 v8, v2, 3, 1
    v_lshl_add_u32 v14, v8, 9, v14
    v_lshl_add_u32 v1, v1, 2, v5
    v_lshlrev_b32 v1, 4, v1
    s_lshl_b32 s29, s65, 9
    s_add_u32 s29, s29, {FS}
    v_add_u32 v1, s29, v1
    s_lshl_b32 s54, s62, 17
    s_lshl_b32 s29, s65, 15
    s_add_u32 s54, s54, s29
    s_add_u32 s54, s54, s70
    s_lshl_b32 s29, s61, 4
    s_add_u32 s29, s29, s62
    s_lshl_b32 s56, s29, 6
    s_add_u32 s56, s56, {WS_F4}              ; own F4
    s_lshl_b32 s55, s29, 10
    s_lshl_b32 s29, s65, 8
    s_add_u32 s55, s55, s29
    s_add_u32 s55, s55, {WS_SP}
    s_lshl_b32 s57, s61, 10
    s_add_u32 s57, s57, {WS_F4}              ; F4 row
    s_lshl_b32 s58, s61, 14
    s_lshl_b32 s29, s65, 7
    s_add_u32 s58, s58, s29
    s_add_u32 s58, s58, {WS_SP}
    v_lshlrev_b32 v5, {SP2}, v2
    s_mov_b32 s29, {WS_F2:#x}
    """)
    k(f"s_waitcnt vmcnt({min(63,len(q))})")
    if RW: regW(NB6)
    k("s_barrier        ; B6")
    PF1=E_("PF1",0)
    if not PF1:
        issueW(4)
        if not RW: issueT(N3)
    if NW==7:
        k("s_cmp_lg_u32 s66, 0\ns_cbranch_scc1 L_w6")
        q6=len(q); issueW1(6,0); del q[q6:]
        k("L_w6:")
    if RW: regW(5)
    if not E_("POLM",1):
        k("s_cmp_lg_u32 s3, 4\ns_cbranch_scc1 L_p2x")
        poll(k,"L_p2",5,4,29,48,SL2,SP2)
    k("s_barrier        ; B7")
    assert not (PF1 and NW==7)
    ts(k,7,False)
    S=24; Q=32; RB=[40,44]; T=52
    SH=E_("SH",3); HR=E_("HR",2); JS=E_("JS",0); CJ=E_("CJ",8); CK=E_("CK",12)
    hh=[0]
    def upH(n):
        while hh[0]<=min(n,15): issueH(hh[0]); hh[0]+=1
    def issueS():
        k(f"buffer_load_dwordx4 v[40:43], v6, s[4:7], s54 offen sc1\ns_add_u32 s54, s54, 16384\nbuffer_load_dwordx4 v[44:47], v6, s[4:7], s54 offen sc1")
        q.extend([("S",0),("S",1)])
    upH(SH-1)
    if JS<0: issueS()
    if PF1: issueW(4)
    def issueC():
        for p in range(4):
            k(f"buffer_load_dwordx4 v[{CS+4*p}:{CS+4*p+3}], v4, s[4:7], s53 offen sc1"); q.append(("C",p))
            if p<3: k(f"s_add_u32 s53, s53, {3584*4}")
    def vwait(f):
        n=max(idx for idx,x in enumerate(q) if f(x))
        k(f"s_waitcnt vmcnt({min(63,len(q)-1-n)})")
    def smath(r):
        vwait(lambda x: x==("S",r))
        for d in range(4):
            src=RB[r]+d
            if r==0:
                k(f"v_lshlrev_b32 v{S+2*d}, 16, v{src}\nv_and_b32 v{S+2*d+1}, 0xffff0000, v{src}")
                k(f"v_mul_f32 v{Q+2*d}, v{S+2*d}, v{S+2*d}\nv_mul_f32 v{Q+2*d+1}, v{S+2*d+1}, v{S+2*d+1}")
            else:
                t=T+2*(d&1)
                k(f"v_lshlrev_b32 v{t}, 16, v{src}\nv_and_b32 v{t+1}, 0xffff0000, v{src}")
                k(f"v_add_f32 v{S+2*d}, v{S+2*d}, v{t}\nv_add_f32 v{S+2*d+1}, v{S+2*d+1}, v{t+1}")
                k(f"v_fmac_f32 v{Q+2*d}, v{t}, v{t}\nv_fmac_f32 v{Q+2*d+1}, v{t+1}, v{t+1}")
    def sred():
        for i in range(8): k(f"v_permlane32_swap_b32 v{S+i}, v{Q+i}")
        for i in range(8): k(f"v_add_f32 v{S+i}, v{S+i}, v{Q+i}")
        for i in range(4): k(f"v_permlane16_swap_b32 v{S+i}, v{S+4+i}")
        for i in range(4): k(f"v_add_f32 v{S+i}, v{S+i}, v{S+4+i}")
        k(f"ds_write_b128 v15, v[{S}:{S+3}]\ns_waitcnt lgkmcnt(0)")
    if J0<0: smath(0)
    if J1<0: smath(1)
    if J2<0: sred()
    rest=2*NHS-wt[0]
    HJ=[int(x) for x in os.environ.get("HJ","").split(",") if x]
    HL=E_('HL',1)
    q0=list(q); h0=hh[0]; w0=wt[0]
    k('s_cmp_lg_u32 s66, 0\ns_cbranch_scc1 L_par1')
    for par,j in [(a,b) for a in range(2) for b in range(16)]:
        if j==0:
            q[:]=q0; hh[0]=h0; wt[0]=w0
            if par: k('s_branch L_parx\nL_par1:')
            if NW==7 and par==0:
                i6=max(i for i,x in enumerate(q) if x==('W',4))+1+(0 if RW else N3)
                q[i6:i6]=[('V',6)]*7
        vwait(lambda x: (x[0]=="W" and x[1]+par<=j) or (x[0]=="V" and x[1]<=j) or (x[0]=="H" and x[1]<=j) or (x[0]=="C" and j>=CK) or (x[0]=="P" and j>=JF) or (x[0]=="F" and j>=JQ) or (x[0]=="G" and j>=JR))
        k("s_barrier")
        if STAMP and j in HJ: ts(k,[1,2,4,5,7][HJ.index(j)],False)
        if j==JF:
            flag(k,56,48); q.append(("f",0))
        if j==JQ:
            k(f"v_xor_b32 v48, s60, v50\nv_cmp_ne_u32 vcc, 0, v48\ns_cbranch_vccz L_p4{par}x")
            poll(k,f"L_p4{par}",12,1,57,48,0)
            for i in range(4):
                k(f"buffer_load_dwordx4 v[{24+4*i}:{27+4*i}], v14, s[4:7], s58 offen sc1"); q.append(("G",i))
                if i<3: k("s_add_u32 s58, s58, 4096")
        if j==JP:
            k("buffer_load_dword v50, v12, s[4:7], s57 offen sc1"); q.append(("F",0))
        WF=E_('WF',1)
        if WF and j>=2 and (j+NW)%2==par and not RW: issueW1(j+NW-2,par)
        upH(min(j+NH-2+HL, SH-1+HR*(j+1)))
        if j==JS: issueS()
        if not WF and j>=2 and (j+NW)%2==par and not RW: issueW1(j+NW-2,par)
        if RW:
            nfree=len([b for b in range(7,16) if b%2==par and b-5<j])
            lim=36 if nfree==(5 if par else 4) else 7*nfree
            tgt=min(lim, int(TR*(j-TJ+1))) if j<15 else 36
            if 3<=j<=11 and (j+4)%2==par: k("s_waitcnt lgkmcnt(0)")
            if tgt>wt[0]: issueT(tgt-wt[0])
            if 2<=j and j+5<=15 and (j+5)%2==par: putW(j+5,par)
        if j==CJ: issueC()
        TJ2=E_("TJ2",11)
        if not RW and j>=TJ2: issueT(-(-rest//(16-TJ2)))
        if j==CK:
            assert CK>J2+1 and CK>CJ and JC>CK
            for i in range(8): k(f"v_add_f32 v{CS+i}, v{CS+i}, v{CS+8+i}")
            for i in range(4): k(f"v_add_f32 v{CS+i}, v{CS+i}, v{CS+4+i}")
            k(f"ds_write_b128 v111, v[{CS}:{CS+3}]\ns_waitcnt lgkmcnt(0)")
        if j==J0: smath(0)
        if j==J1: smath(1)
        if j==J2: sred()
        if j==J2+1:
            for p in range(4): k(f"ds_read_b128 v[{24+4*p}:{27+4*p}], v13 offset:{1024*p}")
            k("s_waitcnt lgkmcnt(2)")
            for i in range(4): k(f"v_add_f32 v{24+i}, v{24+i}, v{28+i}")
            k("s_waitcnt lgkmcnt(0)")
            for i in range(4): k(f"v_add_f32 v{32+i}, v{32+i}, v{36+i}")
            for i in range(4): k(f"v_add_f32 v{40+i}, v{24+i}, v{32+i}")
            k("s_mov_b64 exec, 0xffff\nbuffer_store_dwordx4 v[40:43], v7, s[4:7], s55 offen sc1\ns_mov_b64 exec, -1"); q.append(("P",0))
        if j==JC:
            for p in range(4): k(f"ds_read_b32 v{CS+p}, v110 offset:{1024*p}")
            k(f"s_waitcnt lgkmcnt(0)\nv_add_f32 v{CS}, v{CS}, v{CS+1}\nv_add_f32 v{CS+2}, v{CS+2}, v{CS+3}\nv_add_f32 v{CS}, v{CS}, v{CS+2}")
            k(f"""
            v_cvt_pk_bf16_f32 v9, v{CS}, v{CS}
            v_and_b32 v9, 0xffff0000, v9
            v_sub_f32 v8, v{CS}, v9
            v_cvt_pk_bf16_f32 v10, v8, v8
            v_and_b32 v10, 0xffff0000, v10
            v_sub_f32 v8, v8, v10
            v_cvt_pk_bf16_f32 v16, v9, v10
            v_cvt_pk_bf16_f32 v17, v8, 0
            v_mov_b32 v18, 0
            v_mov_b32 v19, 0
            ds_write_b128 v3, v[16:19]
            s_waitcnt lgkmcnt(0)
            """)
        if j==JR:
            for i in range(8): k(f"v_add_f32 v{24+i}, v{24+i}, v{32+i}")
            for i in range(4): k(f"v_add_f32 v{24+i}, v{24+i}, v{28+i}")
            k(f"""
            v_permlane32_swap_b32 v24, v26
            v_permlane32_swap_b32 v25, v27
            v_add_f32 v24, v24, v26
            v_add_f32 v25, v25, v27
            v_permlane16_swap_b32 v24, v25
            v_add_f32 v40, v24, v25
            v_mov_b32_dpp v41, v40 row_ror:8 row_mask:0xf bank_mask:0xf
            v_mul_f32 v40, 0x3b000000, v40
            v_mul_f32 v41, 0x3b000000, v41
            v_fma_f32 v41, -v40, v40, v41
            v_max_f32 v41, 0, v41
            v_cvt_pk_bf16_f32 v41, v41, v41
            v_and_b32 v41, 0xffff0000, v41
            v_add_f32 v41, 0x3727c5ac, v41
            v_cvt_pk_bf16_f32 v41, v41, v41
            v_and_b32 v41, 0xffff0000, v41
            v_sqrt_f32 v41, v41
            v_cvt_pk_bf16_f32 v44, -v40, -v40
            v_cvt_pk_bf16_f32 v41, v41, v41
            v_and_b32 v47, 0xffff0000, v41
            v_rcp_f32 v46, v47
            v_mov_b32 v45, v44
            v_mul_f32 v46, 0xbfb8aa3b, v46
            s_mov_b32 exec_lo, 0x00ff00ff
            s_mov_b32 exec_hi, 0x00ff00ff
            ds_write_b128 v1, v[44:47]
            s_mov_b64 exec, -1
            s_waitcnt lgkmcnt(0)
            """)
    k('L_parx:')
    assert hh[0]==16
    assert wt[0]==2*NHS
    ts(k,8,False)
    k(f"""
    v_add_u32 v6, {112*1024}, v7
    v_lshrrev_b32 v3, 2, v2
    v_lshlrev_b32 v3, 12, v3
    v_and_b32 v4, 3, v2
    v_lshl_add_u32 v3, v4, 4, v3
    v_add_u32 v4, {65536-1024}, v3
    s_and_b32 s29, s65, 1
    s_lshl_b32 s30, s64, 1
    s_add_u32 s29, s29, s30          ; d block32
    s_lshl_b32 s30, s63, 1
    s_add_u32 s30, s30, s66          ; l block32
    s_lshl_b32 s52, s29, 17
    s_lshl_b32 s53, s30, 6
    s_add_u32 s52, s52, s53
    s_add_u32 s52, s52, {WS_HT}      ; h soffset
    s_lshl_b32 s74, s30, 15
    s_lshl_b32 s53, s29, 6
    s_add_u32 s74, s74, s53
    s_lshl_b32 s53, s65, 11
    s_add_u32 s53, s53, {G2R}
    s_mov_b32 s8, s18
    s_mov_b32 s9, s19
    s_mov_b32 s10, {2048*512*2:#x}
    s_barrier        ; B8
    {TSI+' s[92:93]' if STAMP else ''}
    s_mov_b32 m0, s53
    s_nop 0
    buffer_load_dwordx4 v3, s[4:7], s52 offen sc1 lds
    buffer_load_dwordx4 v4, s[4:7], s52 offen offset:1024 sc1 lds
    v_lshrrev_b32 v3, 5, v2
    v_bfe_u32 v4, v2, 2, 2
    v_lshl_add_u32 v4, v3, 4, v4
    v_lshlrev_b32 v4, 6, v4
    v_bfe_u32 v5, v2, 4, 1
    v_lshl_add_u32 v4, v5, 5, v4
    v_and_b32 v5, 3, v2
    v_lshl_add_u32 v4, v5, 3, v4
    v_add_u32 v4, s53, v4
    v_and_b32 v5, 31, v2
    v_lshlrev_b32 v5, 10, v5
    v_lshl_add_u32 v5, v3, 5, v5
    s_lshl_b32 s29, s65, 14
    s_add_u32 s29, s29, {G2H}
    v_add_u32 v3, s29, v7
    s_lshl_b32 s29, s65, 12
    v_add_u32 v1, s29, v7
    """)
    if PW:
        k(f"""
        s_lshr_b32 s29, s63, 1
        s_lshl_b32 s29, s29, 10
        s_lshl_b32 s23, s65, 8
        s_add_u32 s29, s29, s23
        s_add_u32 s29, s29, {WS_F3}
        v_and_b32 v0, 3, v2
        v_lshlrev_b32 v0, 6, v0
        """)
        pollw(k,"L_p3h",0,2,29,(8 if PWO else 2) if PW==1 else 14,SL3H,False)
    else: k("s_barrier        ; B9")
    ts(k,9,False)
    A2=48
    free=[8+8*i for i in range(5)]
    slot={}; q=[]
    nxt=[0]
    ORD=list(range(NHS))
    if PW==1 and PWO: ORD=list(range(11,18))+list(range(4,11))+list(range(4))
    CHK=({7:4,14:2} if PWO else {4:4,11:8}) if PW==1 else {}
    cur=[0]
    def ldB():
        if nxt[0]>=NHS or not free: return False
        s=ORD[nxt[0]]
        b=free.pop(0); slot[s]=b
        if nxt[0] in CHK: pollw(k,f"L_p3h{nxt[0]}",0,2,29,CHK[nxt[0]],0,True)
        if PW:
            g=s>>2
            if g!=cur[0]:
                d=(g-cur[0])*4096
                k(f"s_add_u32 s68, s68, {d}" if d>0 else f"s_sub_u32 s68, s68, {-d}")
                cur[0]=g
            k(f"buffer_load_dwordx4 v[{b}:{b+3}], v7, s[4:7], s68 offen offset:{1024*(s&3)} sc1")
            k(f"buffer_load_dwordx4 v[{b+4}:{b+7}], v6, s[4:7], s68 offen offset:{1024*(s&3)} sc1")
        else: hgload(k, b, s, NHS)
        q.extend([(s,0),(s,1)]); nxt[0]+=1
        return True
    while ldB(): pass
    for n,s in enumerate(ORD):
        for lb in range(2):
            k(f"s_waitcnt vmcnt({len(q)-1-q.index((s,lb))})")
            for db in range(2):
                c=A2+16*(db+2*lb); a=HA+8*s+4*db; b=slot[s]+4*lb
                k(f"v_mfma_f32_32x32x16_bf16 v[{c}:{c+15}], v[{a}:{a+3}], v[{b}:{b+3}], {'0' if n==0 else f'v[{c}:{c+15}]'}")
        if n>=1:
            free.append(slot[ORD[n-1]]); free.append(HA+8*ORD[n-1])
        ldB(); ldB()
    for w in range(4):
        if w<3: k(f"s_cmp_lg_u32 s65, {w}\ns_cbranch_scc1 L4_w{w}")
        for qd in range(4):
            if qd==w: continue
            for j in range(4):
                k(f"ds_write_b128 v3, v[{A2+16*qd+4*j}:{A2+16*qd+4*j+3}] offset:{qd*4096+j*1024}")
        if w:
            for j in range(16): k(f"v_mov_b32 v{A2+j}, v{A2+16*w+j}")
        if w<3: k(f"s_branch L4_red\nL4_w{w}:")
    k("L4_red:")
    HT=8; HF=16; P=112
    for j in range(4): k(f"ds_read_b64_tr_b16 v[{HT+2*j}:{HT+1+2*j}], v4 offset:{j*256}")
    k("s_waitcnt lgkmcnt(0)\ns_barrier        ; B10")
    for p in range(4):
        for j in range(4): k(f"ds_read_b128 v[{P+16*p+4*j}:{P+3+16*p+4*j}], v1 offset:{G2M+p*16384+j*1024}")
    for j in range(8):
        k(f"v_and_b32 v{HF+1+2*j}, 0xffff0000, v{HT+j}\nv_lshlrev_b32 v{HF+2*j}, 16, v{HT+j}")
    def addp(p):
        for j in range(8): k(f"v_pk_add_f32 v[{A2+2*j}:{A2+2*j+1}], v[{A2+2*j}:{A2+2*j+1}], v[{P+16*p+2*j}:{P+1+16*p+2*j}]")
    for p in range(1,4):
        k(f"s_add_u32 s29, s65, {p}\ns_and_b32 s29, s29, 3\ns_lshl_b32 s29, s29, 14\ns_add_u32 s29, s29, {G2H}\nv_add_u32 v3, s29, v1")
        k(f"s_waitcnt lgkmcnt(12)");
        for j in range(4): k(f"ds_read_b128 v[{P+16*(p+3)+4*j}:{P+3+16*(p+3)+4*j}], v3 offset:{j*1024}")
        addp(p-1)
    for p in range(3,7):
        k(f"s_waitcnt lgkmcnt({4*(6-p)})"); addp(p)
    for j in range(8): k(f"v_cvt_pk_bf16_f32 v{64+j}, v{A2+2*j}, v{A2+2*j+1}")
    for j in range(8): k(f"v_lshlrev_b32 v{A2+2*j}, 16, v{64+j}\nv_and_b32 v{A2+2*j+1}, 0xffff0000, v{64+j}")
    for j in range(8): k(f"v_pk_add_f32 v[{A2+2*j}:{A2+2*j+1}], v[{A2+2*j}:{A2+2*j+1}], v[{HF+2*j}:{HF+1+2*j}]")
    for j in range(8): k(f"v_cvt_pk_bf16_f32 v{64+j}, v{A2+2*j}, v{A2+2*j+1}")
    for jj in range(2):
        k(f"buffer_store_dwordx4 v[{64+4*jj}:{67+4*jj}], v5, s[8:11], s74 offen offset:{16*jj} {os.environ.get('OUTM','')}")
    ts(k,3,False)
    flush(k,[1,8,6,3],10,4)

if __name__=="__main__":
    out = sys.argv[1] if len(sys.argv)>1 else "m.s"
    finish(out, [gen_m()])
```

```python
import sys, os
sys.path.insert(0,'gen')
from common import *
from k2 import cmul, direct, rho, LOG2E, INV2PI
E_=lambda n,d: int(os.environ.get(n,str(d)),0)
WS_WT=0x1000000
WS_F1=0x1400000; WS_F2=0x1410000; WS_F3=0x1420000; WS_TAG=0x1430000; WS_F4=0x1440000; WS_SP=0x1450000
WSL=14464; UOFF=7184; NW=E_("NW",7); WB=0
TB=0; TA=33792; TBL=16896; TROW=528
UC=72320; UCC=4640; UCH=4*UCC
KC=109440; KCC=4224
XT=126336; T1=XT+8192; RED=142720
LNB=XT; ROWS=2112; WDS=143360
NH=E_("NH",8 if NW==6 else 6); HS=8192; HB=NW*WSL
MISC=HB+NH*HS; PART=MISC; FS=MISC+4096; AP=MISC+6144
G2M=0; G2H=65536; G2R=131072
PF=160768
LDS=163840
CUM=[2,4,6,8,10,13,15,18,20,23,25,28,30,32,32,32]
def hb(j): return max(j,(CUM[j]-1)>>1)
NM=10; NHS=18
MA=176; HA=112
N1=E_("N1",36); N3=E_("N3",0)
J0=E_("J0",2); J1=E_("J1",2); J2=E_("J2",3); JF=E_("JF",7); JP=E_("JP",10); JQ=E_("JQ",12); JR=E_("JR",14); JC=E_("JC",13)
SL1=E_("SL1",0); SL2=E_("SL2",20); SL3=E_("SL3",8); SLP=E_("SLP",2)
LIMIT=4000
ROT1=E_('ROT1',0); ROT2=E_('ROT2',0); SP1=E_('SP1',6); SP2=E_('SP2',6)
TSI='s_memtime' if E_('CY',0) else 's_memrealtime'
def ts(k,i,drain=True):
    if not STAMP: return
    k(f"{TSI} s[{80+2*i}:{81+2*i}]")
    if drain: k("s_waitcnt lgkmcnt(0)")
def flush(k, idxs, base, wave):
    if STAMP==3:
        DI=E_("DI",0); DWV=E_("DWV",0); DW=E_("DBGWG",-1)
        if DWV!=wave: return
        if DW>=0: k(f"s_cmp_lg_u32 s2, {DW}\ns_cbranch_scc1 L_df{wave}")
        k(f"""s_cmp_lg_u32 s3, {wave}
        s_cbranch_scc1 L_df{wave}
        s_waitcnt lgkmcnt(0)
        s_add_u32 s29, s{80+2*DI}, 6000
        s_mov_b32 s23, 0
        L_dl{wave}:
        s_memrealtime s[30:31]
        s_add_u32 s23, s23, 1
        s_waitcnt lgkmcnt(0)
        s_sub_u32 s30, s30, s29
        s_cmp_gt_u32 s23, 200000
        s_cbranch_scc1 L_df{wave}
        s_cmp_lt_i32 s30, 0
        s_cbranch_scc1 L_dl{wave}
        L_df{wave}:""")
        return
    if STAMP!=2:
        stamp_flush(k,0,11,20,3,vt=8)
        if STAMP and wave==0: k("s_sub_u32 s29, s74, s72\nv_mov_b32 v8, s29\nbuffer_store_dword v8, v9, s[76:79], 0 offen offset:44")
        return
    DW=E_("DBGWG",0)
    k(f"s_cmp_lg_u32 s2, {DW}\ns_cbranch_scc1 L_df{wave}\ns_cmp_lg_u32 s3, {wave}\ns_cbranch_scc1 L_df{wave}")
    k("s_load_dwordx2 s[76:77], s[0:1], 96\ns_mov_b32 s78, 256\ns_mov_b32 s79, 0x20000\nv_mov_b32 v9, 0\ns_waitcnt lgkmcnt(0)")
    for n,i in enumerate(idxs):
        k(f"s_sub_u32 s29, s{80+2*i}, s80\nv_mov_b32 v8, s29\nbuffer_store_dword v8, v9, s[76:79], 0 offen offset:{4*(base+n)}")
    k(f"L_df{wave}:")
def poll(k, lab, voff, n, soff, t, first, sp=6):
    if first: k(f"s_sleep {first}")
    k(f"s_mov_b32 s31, 0\n{lab}:")
    if sp==2 and n==4: k(f"buffer_load_dwordx4 v[{t}:{t+3}], v7, s[4:7], s{soff} offen sc1")
    else:
      for j in range(n):
        if j: k(f"s_add_u32 s30, s{soff}, {(64<<sp)*j}")
        k(f"buffer_load_dword v{t+j}, v{voff}, s[4:7], s{soff if j==0 else 30} offen sc1")
    k("s_add_u32 s31, s31, 1\ns_waitcnt vmcnt(0)")
    for j in range(n): k(f"v_xor_b32 v{t+j}, s60, v{t+j}")
    for j in range(1,n): k(f"v_or_b32 v{t}, v{t}, v{t+j}")
    k(f"""
    v_cmp_ne_u32 vcc, 0, v{t}
    s_cmp_gt_u32 s31, {LIMIT}
    s_cbranch_scc1 {lab}x
    s_cbranch_vccz {lab}x
    s_sleep {SLP}
    s_branch {lab}
    {lab}x:
    """)
PW=E_("PW",2); SL3H=E_("SL3H",8); PWO=E_("PWO",1); FW=E_("FW",0); NP=E_("NP",0); SLQ=E_("SLQ",3)
FSH=8 if FW==6 else 6
def f3addr(k, vf):
    k(f"""
    s_lshr_b32 s29, s63, 1
    s_lshl_b32 s29, s29, {FSH+4}
    s_lshl_b32 s23, s65, {FSH+2}
    s_add_u32 s29, s29, s23
    s_add_u32 s29, s29, {WS_F3}
    v_and_b32 v{vf}, 3, v2
    v_lshlrev_b32 v{vf}, {FSH}, v{vf}
    """)
    if FW: k(f"""
    s_and_b32 s23, s63, 1
    s_lshl_b32 s23, s23, {FW+1}
    s_add_u32 s29, s29, s23
    v_bfe_u32 v48, v2, 2, 1
    v_lshl_add_u32 v{vf}, v48, {FW}, v{vf}
    """)
def pollw(k, lab, vf, vt, soff, mask, first, recheck):
    if recheck: k(f"s_and_b32 s30, vcc_lo, {mask}\ns_cbranch_scc0 {lab}x")
    if FW: mask|=mask<<4
    if first: k(f"s_sleep {first}")
    if NP and not recheck:
        for i in range(NP):
            k(f"buffer_load_dword v{48+i}, v{vf}, s[4:7], s{soff} offen sc1")
            if i<NP-1: k(f"s_sleep {SLQ}")
        for i in range(NP):
            k(f"s_waitcnt vmcnt({NP-1-i})\nv_cmp_ne_u32 vcc, s60, v{48+i}\ns_and_b32 s30, vcc_lo, {mask}\ns_cbranch_scc0 {lab}x")
    k(f"""
    s_mov_b32 s31, 0
    {lab}:
    buffer_load_dword v{vt}, v{vf}, s[4:7], s{soff} offen sc1
    s_add_u32 s31, s31, 1
    s_waitcnt vmcnt(0)
    v_cmp_ne_u32 vcc, s60, v{vt}
    s_cmp_gt_u32 s31, {LIMIT}
    s_cbranch_scc1 {lab}x
    s_and_b32 s30, vcc_lo, {mask}
    s_cbranch_scc0 {lab}x
    s_sleep {SLP}
    s_branch {lab}
    {lab}x:
    """)
def flag(k, soff, t):
    k(f"""
    v_mov_b32 v{t}, s60
    v_mov_b32 v{t+1}, 0
    s_mov_b64 exec, 1
    buffer_store_dword v{t}, v{t+1}, s[4:7], s{soff} offen sc1
    s_mov_b64 exec, -1
    """)
EB=56
def eloads(k):
    k(f"""
    buffer_load_dwordx4 v[{EB}:{EB+3}], v71, s[32:35], s26 offen sc1
    buffer_load_dwordx4 v[{EB+4}:{EB+7}], v70, s[32:35], s26 offen sc1
    buffer_load_dwordx4 v[{EB+8}:{EB+11}], v70, s[32:35], s26 offen offset:32 sc1
    """)
def uprep(k, nafter):
    k(f"s_waitcnt vmcnt({nafter+1})")
    for j in range(6): k(f"v_mov_b32 v{36+j}, v{EB+1+j}")
    k(f"""
    ds_write_b128 v68, v[{EB+2}:{EB+5}] offset:{UCC}
    ds_write_b128 v68, v[{EB+4}:{EB+7}] offset:{3*UCC}
    ds_write_b128 v68, v[36:39]
    ds_write_b128 v68, v[38:41] offset:{2*UCC}
    """)
    for j in range(4):
        k(f"v_lshlrev_b32 v{44+2*j}, 16, v{EB+4+j}\nv_and_b32 v{45+2*j}, 0xffff0000, v{EB+4+j}")
    for j in range(8): k(f"v_mul_f32 v{44+j}, s28, v{44+j}")
    for j in range(4): k(f"v_cvt_pk_bf16_f32 v{52+j}, v{44+2*j}, v{45+2*j}")
    k(f"""
    ds_write_b128 v69, v[52:55] offset:{T1-XT}
    s_waitcnt vmcnt({nafter})
    ds_write_b128 v69, v[{EB+8}:{EB+11}]
    s_waitcnt lgkmcnt(0)
    s_barrier
    """)
def kparams(k):
    k(f"""
    s_lshl_b32 s29, s66, 4
    s_lshr_b32 s27, s27, s29
    s_lshl_b32 s27, s27, 16
    s_lshr_b32 s28, s28, s26
    s_lshl_b32 s28, s28, 16
    v_mov_b32 v33, {LOG2E}
    v_mul_f32 v34, s27, v33
    v_exp_f32 v34, v34
    v_lshlrev_b32 v8, 16, v8
    v_lshlrev_b32 v9, 16, v9
    v_cvt_pk_bf16_f32 v34, v34, v34
    v_and_b32 v34, 0xffff0000, v34
    v_mul_f32 v8, v8, v33
    v_exp_f32 v8, v8
    v_mul_f32 v9, v9, v34
    v_cvt_pk_bf16_f32 v8, v8, v8
    v_and_b32 v8, 0xffff0000, v8
    v_mul_f32 v8, v8, v34
    v_mul_f32 v9, {INV2PI}, v9
    v_mul_f32 v8, 0xbfb8aa3b, v8
    """)
def common_addr(k):
    k(f"""
    v_mov_b32 v24, 0
    v_mov_b32 v25, 0
    v_mov_b32 v26, 0
    v_mov_b32 v27, 0
    s_mul_i32 s29, s3, {UCC}
    s_add_u32 s29, s29, {UC}
    v_add_u32 v28, s29, v7
    s_mul_i32 s29, s65, {KCC}
    s_add_u32 s29, s29, {KC}
    v_add_u32 v29, s29, v7
    s_mov_b64 exec, 0xffffff
    ds_write_b128 v28, v[24:27]
    s_mov_b64 exec, 0x7f
    ds_write_b128 v29, v[24:27]
    s_mov_b64 exec, -1
    s_mul_i32 s29, s66, {TBL}
    s_mul_i32 s31, s25, {TA}
    s_add_u32 s29, s29, s31
    s_and_b32 s31, s3, 1
    s_lshl_b32 s31, s31, 8
    s_add_u32 s29, s29, s31
    v_lshlrev_b32 v30, 2, v2
    v_add_u32 v30, s29, v30
    s_mul_i32 s29, s25, {UCH}
    s_add_u32 s29, s29, {UC+24*16}
    v_and_b32 v3, 255, v0
    v_lshlrev_b32 v69, 4, v3
    v_add_u32 v68, s29, v69
    s_lshl_b32 s29, s25, 12
    s_add_u32 s29, s29, {XT}
    v_add_u32 v69, s29, v69
    v_lshlrev_b32 v70, 6, v3
    v_subrev_u32 v71, 64, v70
    s_lshl_b32 s23, s2, 14
    s_add_u32 s32, s20, s23
    s_addc_u32 s33, s21, 0
    s_mov_b32 s34, 16384
    s_mov_b32 s35, 0x20000
    s_and_b32 s61, s2, 1
    s_lshl_b32 s61, s61, 3
    s_bfe_u32 s23, s2, 0x30003
    s_add_u32 s61, s61, s23          ; rb
    s_bfe_u32 s62, s2, 0x20001
    s_lshl_b32 s62, s62, 2
    s_lshr_b32 s23, s2, 6
    s_add_u32 s62, s62, s23          ; fs
    s_and_b32 s63, s2, 7
    s_lshl_b32 s63, s63, 2
    s_bfe_u32 s23, s2, 0x20003
    s_add_u32 s63, s63, s23          ; tl
    s_lshr_b32 s64, s2, 5            ; td
    s_mul_i32 s67, s64, 112
    s_mul_i32 s23, s65, 28
    s_mul_i32 s29, s25, {NM}
    s_add_u32 s23, s23, s29
    s_add_u32 s67, s67, s23
    s_lshl_b32 s67, s67, 11
    s_add_u32 s67, s67, {WS_WT}
    s_mul_i32 s68, s63, 224
    s_add_u32 s68, s68, s23
    s_lshl_b32 s68, s68, 10
    s_add_u32 s68, s68, {WS_HG}
    """)
def rot2init(k, N):
    if not ROT2: return
    k(f"s_mul_i32 s41, s64, {N}\ns_lshr_b32 s41, s41, 3\ns_lshl_b32 s40, s41, 11\ns_lshl_b32 s41, s41, 10\ns_add_u32 s42, s67, s40\ns_add_u32 s43, s68, s41")
def hgload(k, b, s, N):
    if ROT2:
        if s: k(f"s_add_u32 s41, s41, 1024\ns_cmp_eq_u32 s41, {N*1024}\ns_cselect_b32 s41, 0, s41\ns_add_u32 s43, s68, s41")
        k(f"buffer_load_dwordx4 v[{b}:{b+3}], v7, s[4:7], s43 offen sc1")
        k(f"buffer_load_dwordx4 v[{b+4}:{b+7}], v6, s[4:7], s43 offen sc1")
        return
    if s and s%4==0: k("s_add_u32 s68, s68, 4096")
    k(f"buffer_load_dwordx4 v[{b}:{b+3}], v7, s[4:7], s68 offen offset:{1024*(s&3)} sc1")
    k(f"buffer_load_dwordx4 v[{b+4}:{b+7}], v6, s[4:7], s68 offen offset:{1024*(s&3)} sc1")
def wtload(k, base, i):
    if ROT2:
        N=NM if base==MA else NHS
        if i and i%2==0: k(f"s_add_u32 s40, s40, 2048\ns_cmp_eq_u32 s40, {N*2048}\ns_cselect_b32 s40, 0, s40\ns_add_u32 s42, s67, s40")
        k(f"buffer_load_dwordx4 v[{base+4*i}:{base+4*i+3}], v7, s[4:7], s42 offen offset:{1024*(i&1)} sc1")
        return
    if i and i%4==0: k("s_add_u32 s67, s67, 4096")
    k(f"buffer_load_dwordx4 v[{base+4*i}:{base+4*i+3}], v7, s[4:7], s67 offen offset:{1024*(i&3)} sc1")

def gen_m():
    k = K("sequential_preLN__ssm_conv_s4d__glu_gated_glu__prompt_kernel", 256, 512, LDS, 256)
    k("L_begin:\ns_cmp_ge_u32 s2, 256\ns_cbranch_scc1 L_end")
    ts(k,0,False)
    k(f"""
    s_load_dwordx16 s[36:51], s[0:1], 0
    s_load_dwordx8 s[12:19], s[0:1], 64
    s_load_dwordx2 s[20:21], s[0:1], 104
    v_lshrrev_b32 v1, 6, v0
    v_and_b32 v2, 63, v0
    v_lshlrev_b32 v7, 4, v2
    v_readfirstlane_b32 s3, v1
    v_and_b32 v3, 255, v0
    s_lshl_b32 s24, s2, 9
    v_lshl_add_u32 v4, v3, 1, s24
    v_mov_b32 v5, 0
    s_lshl_b32 s22, s2, 2
    s_and_b32 s65, s3, 3
    s_lshr_b32 s25, s3, 2
    s_lshl_b32 s26, s25, 4
    s_bfe_u32 s66, s3, 0x10001
    s_mov_b32 s6, {WS_SIZE:#x}
    s_mov_b32 s7, 0x20000
    s_mov_b32 s23, {WS_TAG:#x}
    s_cmp_ge_u32 s3, 4
    s_cbranch_scc1 L_help
    """)
    gen_main(k)
    gen_help(k)
    k("L_end:\ns_endpgm\nL_stop:")
    return k

def gen_main(k):
    k(f"""
    s_lshl_b32 s29, s2, 13
    s_lshl_b32 s30, s3, 11
    s_add_u32 s29, s29, s30
    s_mov_b32 s10, {2048*512*2:#x}
    s_mov_b32 s11, 0x20000
    s_waitcnt lgkmcnt(0)
    s_mov_b32 s8, s36
    s_mov_b32 s9, s37
    s_mov_b32 s4, s20
    s_mov_b32 s5, s21
    buffer_load_dwordx4 v[12:15], v7, s[8:11], s29 offen
    buffer_load_dwordx4 v[16:19], v7, s[8:11], s29 offen offset:1024
    global_load_ushort v8, v4, s[38:39]
    global_load_ushort v9, v4, s[40:41]
    buffer_load_dword v10, v5, s[4:7], s23 offen sc1
    s_load_dword s27, s[46:47], s22
    s_load_dword s28, s[48:49], s22
    """)
    common_addr(k)
    X=12; F=36; O=52
    k(f"""
    s_lshl_b32 s24, s3, 2
    s_add_u32 s24, s24, {PF}
    v_mov_b32 v1, s24
    ds_write_b32 v1, v24
    v_mov_b32 v1, 0x3b000000
    s_mul_i32 s24, s3, {2*ROWS}
    s_add_u32 s24, s24, {LNB}
    v_lshlrev_b32 v4, 5, v2
    v_add_u32 v4, s24, v4
    v_bfe_u32 v5, v2, 2, 2
    v_mul_u32_u24 v5, {ROWS}, v5
    v_lshrrev_b32 v6, 4, v2
    v_lshl_add_u32 v5, v6, 5, v5
    v_and_b32 v6, 3, v2
    v_lshl_add_u32 v5, v6, 3, v5
    s_lshl_b32 s24, s3, 9
    s_add_u32 s24, s24, {LNB}
    v_add_u32 v5, s24, v5
    v_lshrrev_b32 v11, 2, v2
    v_lshlrev_b32 v11, 14, v11
    v_lshl_add_u32 v11, v6, 4, v11
    s_lshl_b32 s24, s3, 20
    s_lshl_b32 s29, s2, 6
    s_add_u32 s24, s24, s29
    """)
    for i in range(2):
        k(f"s_waitcnt vmcnt({4-i})")
        if i==0: ts(k,1,False)
        for j in range(4):
            k(f"v_lshlrev_b32 v{F+8*i+2*j}, 16, v{X+4*i+j}\nv_and_b32 v{F+1+8*i+2*j}, 0xffff0000, v{X+4*i+j}")
        f=F+8*i; S,Q=20+2*i,21+2*i
        k(f"v_add_f32 v{S}, v{f}, v{f+1}\nv_mul_f32 v{Q}, v{f}, v{f}\nv_fmac_f32 v{Q}, v{f+1}, v{f+1}")
        for j in range(2,8): k(f"v_add_f32 v{S}, v{S}, v{f+j}\nv_fmac_f32 v{Q}, v{f+j}, v{f+j}")
    for dpp in ("row_shr:1","row_shr:2","row_shr:4","row_shr:8"):
        for r in range(20,24): k(f"v_add_f32_dpp v{r}, v{r}, v{r} {dpp} row_mask:0xf bank_mask:0xf bound_ctrl:1")
    for dpp in ("row_bcast:15 row_mask:0xa","row_bcast:31 row_mask:0xc"):
        for r in range(20,24): k(f"v_add_f32_dpp v{r}, v{r}, v{r} {dpp} bank_mask:0xf")
    for r in range(4): k(f"v_readlane_b32 s{52+r}, v{20+r}, 63")
    for i in range(2):
        M,V,T=24+3*i,25+3*i,26+3*i
        k(f"""
        v_mul_f32 v{M}, s{52+2*i}, v1
        v_mul_f32 v{V}, s{53+2*i}, v1
        v_fma_f32 v{V}, -v{M}, v{M}, v{V}
        v_max_f32 v{V}, 0, v{V}
        v_cvt_pk_bf16_f32 v{T}, v{M}, v{V}
        v_lshlrev_b32 v{M}, 16, v{T}
        v_and_b32 v{V}, 0xffff0000, v{T}
        v_add_f32 v{V}, 0x3727c5ac, v{V}
        v_cvt_pk_bf16_f32 v{V}, v{V}, v{V}
        v_and_b32 v{V}, 0xffff0000, v{V}
        v_sqrt_f32 v{V}, v{V}
        v_cvt_pk_bf16_f32 v{V}, v{V}, v{V}
        v_and_b32 v{V}, 0xffff0000, v{V}
        v_rcp_f32 v{V}, v{V}
        """)
    for i in range(2):
        M,V=24+3*i,25+3*i; f=F+8*i; o=O+8*i
        for j in range(8): k(f"v_sub_f32 v{f+j}, v{f+j}, v{M}")
        for j in range(4): k(f"v_cvt_pk_bf16_f32 v{o+2*j}, v{f+2*j}, v{f+2*j+1}")
        for j in range(4): k(f"v_lshlrev_b32 v{f+2*j}, 16, v{o+2*j}\nv_and_b32 v{f+2*j+1}, 0xffff0000, v{o+2*j}")
        for j in range(8): k(f"v_mul_f32 v{f+j}, v{f+j}, v{V}")
        for j in range(4): k(f"v_cvt_pk_bf16_f32 v{o+2*j}, v{f+2*j}, v{f+2*j+1}\nv_mov_b32 v{o+2*j+1}, v{X+4*i+j}")
        k(f"ds_write_b128 v4, v[{o}:{o+3}] offset:{i*ROWS}\nds_write_b128 v4, v[{o+4}:{o+7}] offset:{i*ROWS+16}")
    k("s_waitcnt lgkmcnt(0)\ns_barrier        ; B1")
    for it in range(4):
        k(f"ds_read_b64_tr_b16 v[{12+4*it}:{13+4*it}], v5 offset:{it*128}")
        k(f"ds_read_b64_tr_b16 v[{14+4*it}:{15+4*it}], v5 offset:{it*128+4*ROWS}")
    for it in range(4):
        k(f"s_waitcnt lgkmcnt({6-2*it})")
        k(f"buffer_store_dwordx4 v[{12+4*it}:{15+4*it}], v11, s[4:7], s24 offen sc1")
        if it<3: k(f"s_add_u32 s24, s24, {16*16384}")
    ts(k,2,False)
    k("s_waitcnt vmcnt(4)\nv_readfirstlane_b32 s60, v10")
    kparams(k)
    k("s_mul_i32 s60, s60, 1664525\ns_add_u32 s60, s60, 1013904223")
    W=36; X0=38; X1=40; T=42; C=44
    direct(k, W, 8, 9, 8, T)
    k(f"v_mov_b32 v{C}, 0x00003f80\nds_write_b32 v30, v{C}")
    k(f"v_cvt_pk_bf16_f32 v{C+1}, v{W}, v{W+1}\nds_write_b32 v30, v{C+1} offset:{TROW}")
    cur=W
    for j in range(2,32):
        nxt = X0 if cur!=X0 else X1
        cmul(k, nxt, cur, W, T)
        c=C+(j&3)
        k(f"v_cvt_pk_bf16_f32 v{c}, v{nxt}, v{nxt+1}\nds_write_b32 v30, v{c} offset:{TROW*j}")
        cur=nxt
    k(f"""
    v_and_b32 v4, 31, v2
    v_mul_u32_u24 v4, {TROW}, v4
    v_lshrrev_b32 v5, 5, v2
    v_lshl_add_u32 v4, v5, 4, v4
    s_mul_i32 s29, s66, {TBL}
    v_add_u32 v4, s29, v4
    s_waitcnt vmcnt(0) lgkmcnt(0)
    s_barrier        ; B2
    """)
    ts(k,3)
    NB=6; KR=112
    def rd(s):
        b=KR+8*(s%NB)
        k(f"ds_read_b128 v[{b}:{b+3}], v4 offset:{TA+32*s}\nds_read_b128 v[{b+4}:{b+7}], v4 offset:{TB+32*s}")
    for s in range(NB-1): rd(s)
    k(f"""
    s_mul_i32 s29, s3, {KCC}
    s_add_u32 s29, s29, {KC+7*16}
    v_add_u32 v5, s29, v7
    v_and_b32 v8, 1, v2
    v_mul_u32_u24 v8, {KCC}, v8
    v_bfe_u32 v9, v2, 1, 3
    v_lshrrev_b32 v10, 4, v2
    v_sub_u32 v9, v9, v10
    v_add_u32 v9, 3, v9
    v_lshl_add_u32 v8, v9, 4, v8
    s_mul_i32 s29, s66, {2*KCC}
    s_and_b32 s69, s3, 1                     ; c-half
    s_lshl_b32 s56, s69, 8
    s_add_u32 s29, s29, s56
    s_add_u32 s29, s29, {KC}
    v_add_u32 v8, s29, v8
    v_and_b32 v9, 3, v2
    v_mul_u32_u24 v11, {UCC}, v9
    v_bfe_u32 v12, v2, 2, 2
    v_lshl_add_u32 v13, v12, 3, v10
    v_lshl_add_u32 v11, v13, 4, v11
    s_mul_i32 s29, s66, {UCH}
    s_sub_u32 s29, s29, s56
    s_add_u32 s29, s29, {UC+16*16}
    v_add_u32 v11, s29, v11
    v_lshlrev_b32 v13, 5, v10
    v_lshl_add_u32 v13, v9, 2, v13
    v_lshl_add_u32 v13, v12, 7, v13
    v_and_b32 v14, 1, v2
    v_cmp_eq_u32 s[58:59], 1, v14
    """)
    D=16
    PE=E_("PE",-1)
    def early():
        k(f"s_cmp_lg_u32 s3, 0\ns_cbranch_scc1 L_pe\nv_lshlrev_b32 v3, {SP1}, v2\ns_mov_b32 s30, {WS_F1:#x}")
        for j in range(4):
            k(f"buffer_load_dword v{52+j}, v3, s[4:7], s30 offen sc1")
            if j<3: k(f"s_add_u32 s30, s30, {64<<SP1}")
        k("L_pe:")
    for s in range(17):
        if s==PE: early()
        if s==16: break
        if s+NB-1<16: rd(s+NB-1)
        k(f"s_waitcnt lgkmcnt({2*(min(15,s+NB-1)-s)})")
        b=KR+8*(s%NB)
        k(f"v_mfma_f32_32x32x16_bf16 v[{D}:{D+15}], v[{b}:{b+3}], v[{b+4}:{b+7}], {'0' if s==0 else f'v[{D}:{D+15}]'}")
    e=lambda r: D+r
    O=32
    k(f"v_cndmask_b32 v48, v{e(11)}, v{e(12)}, s[58:59]\nv_cndmask_b32 v49, v{e(13)}, v{e(14)}, s[58:59]")
    k("s_cmp_eq_u32 s69, 0\ns_cbranch_scc1 L2_a0")
    def grp(idx, pairs):
        o=O+4*idx
        for t,(lo,hi) in enumerate(pairs):
            if t>0 and pairs[t-1]==(lo,hi): k(f"v_mov_b32 v{o+t}, v{o+t-1}")
            else: k(f"v_cvt_pk_bf16_f32 v{o+t}, v{lo}, v{hi}")
        k(f"ds_write_b128 v5, v[{o}:{o+3}] offset:{idx*1024}")
    grp(0,[(e(7),e(6)),(e(5),e(4)),(e(3),e(2)),(e(1),e(0))])
    grp(1,[(e(10),e(10)),(e(9),e(9)),(e(9),e(8)),(e(8),e(8))])
    grp(2,[(e(12),e(12)),(e(12),48),(e(11),e(11)),(e(11),e(11))])
    grp(3,[(e(14),e(14)),(e(14),49),(e(13),e(13)),(e(13),e(13))])
    k("s_branch L2_conv\nL2_a0:")
    k("v_mov_b32 v50, 0")
    k(f"v_mov_b32_dpp v50, v{e(7)} wave_shr:1 row_mask:0xf bank_mask:0xf bound_ctrl:1")
    grp(1,[(e(10),e(9)),(e(9),e(9)),(e(8),e(8)),(e(8),e(8))])
    grp(2,[(e(12),e(12)),(48,e(11)),(e(11),e(11)),(e(11),e(11))])
    grp(3,[(e(14),e(14)),(49,e(13)),(e(13),e(13)),(e(13),e(13))])
    grp(0,[(e(6),e(5)),(e(4),e(3)),(e(2),e(1)),(e(0),50)])
    k(f"""
    L2_conv:
    v_lshlrev_b32 v3, {SP1}, v2
    s_mov_b32 s29, {WS_F1:#x}
    s_cmp_lg_u32 s3, 0
    s_cbranch_scc1 L_p1x
    """)
    if PE>=0:
        k("s_waitcnt vmcnt(0)")
        for j in range(4): k(f"v_xor_b32 v{52+j}, s60, v{52+j}")
        k("v_or_b32 v52, v52, v53\nv_or3_b32 v52, v52, v54, v55\nv_cmp_ne_u32 vcc, 0, v52\ns_cbranch_vccz L_p1x")
    poll(k,"L_p1",3,4,29,52,SL1,SP1)
    k("s_waitcnt lgkmcnt(0)\ns_barrier        ; B3")
    ts(k,4)
    eloads(k)
    AF=[48,112]; BF=[80,144]; ACC=16
    def rdA(buf,g,cl): k(f"ds_read_b128 v[{AF[buf]+4*g}:{AF[buf]+4*g+3}], v8 offset:{512*g+64*cl}")
    def rdB(buf,t,cl): k(f"ds_read_b128 v[{BF[buf]+4*t}:{BF[buf]+4*t+3}], v11 offset:{512*t+(12-4*cl)*16}")
    for g in range(8): rdA(1,g,0)
    uprep(k, 0)
    ts(k,5)
    k("s_setprio 1")
    for t in range(8): rdB(1,t,0)
    first=[True]*8
    for cl in range(4):
        buf=(cl&1)^1
        pend=[]
        if cl<3:
            for g in range(8): pend += [("A",g),("B",g)]
        seq=[(t,g) for t in range(8) for g in range(t+1)]
        issued=0
        for idx,(t,g) in enumerate(seq):
            if g==0:
                if cl==0: k(f"s_waitcnt lgkmcnt({min(15,7-t+issued)})")
                else: k(f"s_waitcnt lgkmcnt({min(15,14-2*t+issued)})")
            a=AF[buf]+4*g; b=BF[buf]+4*(t-g); c=ACC+4*t
            k(f"v_mfma_f32_16x16x32_bf16 v[{c}:{c+3}], v[{a}:{a+3}], v[{b}:{b+3}], {'0' if first[t] else f'v[{c}:{c+3}]'}")
            first[t]=False
            start = 4
            if pend and idx>=start and (idx%2==0 or len(seq)-idx<=len(pend)+2):
                kind,j=pend.pop(0)
                (rdA if kind=="A" else rdB)(buf^1,j,cl+1); issued+=1
        assert not pend
    k(f"""
    s_lshl_b32 s29, s3, 12
    s_add_u32 s29, s29, {RED}
    v_add_u32 v4, s29, v7
    s_xor_b32 s29, s3, 1
    s_lshl_b32 s29, s29, 12
    s_add_u32 s29, s29, {RED}
    v_add_u32 v5, s29, v7
    s_lshl_b32 s29, s3, 11
    s_lshl_b32 s57, s2, 13
    s_add_u32 s57, s57, s29
    s_add_u32 s57, s57, {WS_HT}
    s_add_u32 s29, s29, {XT}
    v_add_u32 v6, s29, v13
    v_add_u32 v9, s29, v7
    """)
    XR=112
    for t in range(4):
        k(f"ds_read_b32 v{XR+4*t}, v6 offset:{512*t}\nds_read_b32 v{XR+1+4*t}, v6 offset:{512*t+16}")
        k(f"ds_read_b32 v{XR+2+4*t}, v6 offset:{512*t+T1-XT}\nds_read_b32 v{XR+3+4*t}, v6 offset:{512*t+16+T1-XT}")
    k("s_cmp_eq_u32 s69, 0\ns_cbranch_scc1 L2_r0")
    for t in range(4): k(f"ds_write_b128 v4, v[{ACC+4*t}:{ACC+4*t+3}] offset:{1024*t}")
    k("s_waitcnt lgkmcnt(0)")
    for j in range(16): k(f"v_mov_b32 v{ACC+j}, v{ACC+16+j}")
    k("s_branch L2_r1\nL2_r0:")
    for t in range(4): k(f"ds_write_b128 v4, v[{ACC+16+4*t}:{ACC+16+4*t+3}] offset:{1024*t}")
    k(f"""
    L2_r1:
    s_lshl_b32 s29, s3, 2
    s_add_u32 s29, s29, {PF}
    v_mov_b32 v8, s29
    v_xor_b32 v10, 4, v8
    ds_write_b32 v8, v8
    s_mov_b32 s31, 0
    L_b5:
    ds_read_b32 v11, v10
    s_add_u32 s31, s31, 1
    s_waitcnt lgkmcnt(0)
    v_cmp_eq_u32 vcc, 0, v11
    s_cmp_gt_u32 s31, 100000
    s_cbranch_scc1 L_b5x
    s_cbranch_vccnz L_b5
    L_b5x:
    """)
    for t in range(4): k(f"ds_read_b128 v[{48+4*t}:{51+4*t}], v5 offset:{1024*t}")
    for t in range(4):
        for hh in range(2):
            i=2*t+hh
            k(f"v_lshlrev_b32 v{64+2*i}, 16, v{XR+4*t+hh}\nv_and_b32 v{65+2*i}, 0xffff0000, v{XR+4*t+hh}")
            k(f"v_lshlrev_b32 v{80+2*i}, 16, v{XR+2+4*t+hh}\nv_and_b32 v{81+2*i}, 0xffff0000, v{XR+2+4*t+hh}")
    for t in range(4):
        k(f"s_waitcnt lgkmcnt({3-t+2*t})")
        a=ACC+4*t
        for r in range(4): k(f"v_add_f32 v{a+r}, v{a+r}, v{48+4*t+r}")
        def rnd(): k(f"v_cvt_pk_bf16_f32 v{a}, v{a}, v{a+1}\nv_cvt_pk_bf16_f32 v{a+2}, v{a+2}, v{a+3}")
        def unp():
            k(f"v_and_b32 v{a+1}, 0xffff0000, v{a}\nv_and_b32 v{a+3}, 0xffff0000, v{a+2}")
            k(f"v_lshlrev_b32 v{a}, 16, v{a}\nv_lshlrev_b32 v{a+2}, 16, v{a+2}")
        rnd(); unp()
        for r in range(4): k(f"v_add_f32 v{a+r}, v{a+r}, v{80+4*t+r}")
        rnd(); unp()
        for r in range(4): k(f"v_add_f32 v{a+r}, v{a+r}, v{64+4*t+r}")
        rnd()
        k(f"ds_write_b32 v6, v{a} offset:{512*t}\nds_write_b32 v6, v{a+2} offset:{512*t+16}")
    k(f"""
    s_waitcnt lgkmcnt(0)
    ds_read_b128 v[48:51], v9
    ds_read_b128 v[52:55], v9 offset:1024
    s_waitcnt lgkmcnt(1)
    buffer_store_dwordx4 v[48:51], v7, s[4:7], s57 offen sc1
    s_waitcnt lgkmcnt(0)
    buffer_store_dwordx4 v[52:55], v7, s[4:7], s57 offen offset:1024 sc1
    """)
    ts(k,6,False)
    rot2init(k, NM)
    MSL=E_("MSL",0)
    NA=4; AW=48; BW=[16,32]; ACC=64
    k(f"""
    v_lshrrev_b32 v3, 4, v2                  ; q
    v_bfe_u32 v4, v2, 2, 2                   ; r
    v_lshl_add_u32 v5, v3, 2, v4             ; row 4q+r
    v_and_b32 v6, 3, v2                      ; c
    v_mul_u32_u24 v8, 224, v5
    v_and_b32 v10, 1, v6
    v_lshl_add_u32 v10, v10, 3, v8
    v_lshrrev_b32 v11, 1, v6
    v_mul_u32_u24 v11, {UOFF}, v11
    s_lshl_b32 s29, s66, 4
    s_add_u32 s29, s29, {WB+96}
    v_add3_u32 v10, v10, v11, s29            ; A mixed
    v_add_u32 v11, {4*WSL}, v10
    v_lshl_add_u32 v8, v6, 3, v8
    s_lshl_b32 s29, s66, 7
    s_add_u32 s29, s29, {WB}
    v_add_u32 v8, s29, v8                    ; A normal
    v_add_u32 v9, {4*WSL}, v8
    v_lshlrev_b32 v1, 8, v5
    v_lshl_add_u32 v1, v6, 3, v1
    v_add_u32 v1, {HB}, v1
    v_and_b32 v5, 7, v5
    s_lshl_b32 s29, s69, 2
    v_xor_b32 v5, s29, v5
    """)
    for lb in range(4):
        k(f"v_xor_b32 v6, {lb}, v5\nv_lshl_add_u32 v{12+lb}, v6, 5, v1")
    k(f"""
    v_and_b32 v1, 15, v2                     ; m
    v_lshlrev_b32 v6, 4, v1
    s_lshl_b32 s29, s66, 11
    s_add_u32 s29, s29, {AP}
    v_add_u32 v4, s29, v6
    v_lshrrev_b32 v5, 3, v1
    v_lshl_add_u32 v5, v5, 7, v6
    s_lshl_b32 s29, s66, 7
    s_add_u32 s29, s29, {AP+96*16}
    v_add_u32 v5, s29, v5
    s_lshl_b32 s29, s69, 10
    s_add_u32 s29, s29, {FS}
    v_add_u32 v6, s29, v6
    v_add_u32 v1, s29, v7
    v_cmp_eq_u32 s[56:57], 0, v3
    s_lshl_b32 s70, s61, 1
    s_add_u32 s70, s70, s69
    s_mul_i32 s70, s70, 224
    s_mul_i32 s29, s62, 7
    s_add_u32 s70, s70, s29
    s_add_u32 s71, s70, 3
    s_lshl_b32 s29, s66, 2
    s_add_u32 s70, s70, s29
    s_lshl_b32 s70, s70, 10
    s_add_u32 s70, s70, {WS_HG}
    s_lshl_b32 s71, s71, 10
    s_lshl_b32 s29, s66, 9
    s_add_u32 s71, s71, s29
    s_add_u32 s71, s71, {WS_HG}
    v_lshlrev_b32 v3, {SP2}, v2
    s_lshl_b32 s29, s2, {SP2}
    s_add_u32 s29, s29, {WS_F2}
    {TSI+' s[82:83]' if STAMP and E_('B6S',0) else ''}
    s_waitcnt vmcnt(0)
    {TSI+' s[84:85]' if STAMP and E_('B6S',0) else ''}
    s_barrier        ; B6
    {TSI+' s[86:87]' if STAMP and E_('B6S',0) else ''}
    s_cmp_lg_u32 s3, 0
    s_cbranch_scc1 L_f2x
    """)
    flag(k,29,48)
    k("L_f2x:")
    if MSL: k(f"s_sleep {MSL}")
    NMA=E_("NMA",10); POLM=E_("POLM",1); TM0=E_("TM0",90); TMS=E_("TMS",2)
    for i in range(NMA): wtload(k, MA, i)
    if POLM:
        k(f"s_cmp_lg_u32 s3, 1\ns_cbranch_scc1 L_p2x\ns_mov_b32 s29, {WS_F2:#x}")
        poll(k,"L_p2",3,4,29,48,SL2,SP2)
    mt=[NMA]
    k("s_barrier        ; B7")
    ts(k,7)
    q=[]
    ZS=32; ZM=40
    FBB=E_("FBB",2)
    def rdA1(t,h=None):
        b=AW+4*(t%NA)
        if t>=119: return
        if h is None: rdA1(t,0); rdA1(t,1); return
        j=t//7; fb=t%7
        if j==16:
            if h: return
            if fb<6: k(f"ds_read_b128 v[{b}:{b+3}], v4 offset:{(fb>>1)*512+(fb&1)*256}")
            else: k(f"ds_read_b128 v[{b}:{b+3}], v5")
            q.append(("A",t)); return
        sl=j%NW
        va = (8 if fb<6 else 10) + (0 if sl<4 else 1)
        off=(sl%4)*WSL + ((fb&1)*UOFF + (fb>>1)*32 if fb<6 else 0)
        k(f"ds_read_b64_tr_b16 v[{b+2*h}:{b+2*h+1}], v{va} offset:{off+h*16*224}")
        q.append(("A",t))
    def rdB1(s,lb,h=None):
        b=BW[s&1]+4*lb
        if h is None: rdB1(s,lb,0); rdB1(s,lb,1); return
        if s==16:
            if h: return
            k(f"ds_read_b64 v[{b}:{b+1}], v6 offset:{lb*256}\nv_mov_b32 v{b+2}, 0\nv_mov_b32 v{b+3}, 0"); q.append(("B",s,lb)); return
        off=(s%NH)*HS
        k(f"ds_read_b64_tr_b16 v[{b+2*h}:{b+2*h+1}], v{12+lb} offset:{off+h*4096}")
        q.append(("B",s,lb))
    k("s_barrier        ; G0")
    if STAMP: k("s_memtime s[72:73]")
    ts(k,8)
    rdB1(0,0); rdA1(0)
    for lb in range(1,4): rdB1(0,lb)
    for t in range(1,NA): rdA1(t)
    waited=[-1]
    def need(tag):
        n=max(idx for idx,x in enumerate(q) if x==tag)
        if n>waited[0]:
            k(f"s_waitcnt lgkmcnt({len(q)-1-n})"); waited[0]=n
    for t in range(119):
        s=t//7; fb=t%7
        a=AW+4*(t%NA)
        for lb in range(4):
            if lb==0: need(("A",t))
            if fb==0:
                need(("B",s,lb))
                if s==16:
                    b=BW[0]+4*lb
                    k(f"v_cndmask_b32 v{b}, 0, v{b}, s[56:57]\nv_cndmask_b32 v{b+1}, 0, v{b+1}, s[56:57]")
            c=ACC+16*fb+4*lb; b=BW[s&1]+4*lb
            k(f"v_mfma_f32_16x16x32_bf16 v[{c}:{c+3}], v[{a}:{a+3}], v[{b}:{b+3}], {'0' if s==0 else f'v[{c}:{c+3}]'}")
            if s<16:
                if fb==FBB and lb==1 and s<15: k("s_barrier")
                if FBB<=fb<FBB+4 and lb in (1,2): rdB1(s+1,fb-FBB,lb-1)
            if s==16 and fb==1:
                k(f"ds_read_b64 v[{ZS+2*lb}:{ZS+2*lb+1}], v6 offset:{lb*256+8}"); q.append(("Z",0))
                if lb==3: k(f"ds_read_b64 v[{ZM}:{ZM+1}], v1 offset:8"); q.append(("Z",0))
            if lb==2 and t>=TM0 and (t-TM0)%TMS==0 and mt[0]<2*NM:
                wtload(k, MA, mt[0]); mt[0]+=1
            if lb==3: rdA1(t+NA,0)
            if lb==0 and t>0: rdA1(t-1+NA,1)
    while mt[0]<2*NM:
        wtload(k, MA, mt[0]); mt[0]+=1
    ts(k,10,False)
    if STAMP: k("s_memtime s[74:75]")
    k(f"""
    v_add_u32 v6, {112*1024}, v7
    v_and_b32 v4, 31, v2
    v_lshlrev_b32 v4, 4, v4
    v_lshrrev_b32 v5, 5, v2
    v_mul_u32_u24 v5, {112*1024}, v5
    v_add_u32 v4, v4, v5
    s_waitcnt lgkmcnt(0)
    """)
    def glu(gs, us, zs, outs):
        for g,z in zip(gs,zs): k(f"v_pk_mul_f32 v[{g}:{g+1}], v[{g}:{g+1}], v[{z}:{z+1}] op_sel_hi:[1,0]")
        for g in gs: k(f"v_exp_f32 v{g}, v{g}\nv_exp_f32 v{g+1}, v{g+1}")
        for g,z in zip(gs,zs): k(f"v_pk_fma_f32 v[{g}:{g+1}], v[{g}:{g+1}], v[{z}:{z+1}], v[{z}:{z+1}] op_sel:[0,1,1] op_sel_hi:[1,1,1]")
        for g in gs: k(f"v_rcp_f32 v{g}, v{g}\nv_rcp_f32 v{g+1}, v{g+1}")
        for g,u in zip(gs,us): k(f"v_pk_mul_f32 v[{g}:{g+1}], v[{g}:{g+1}], v[{u}:{u+1}]")
        for g,o in zip(gs,outs): k(f"v_cvt_pk_bf16_f32 v{o}, v{g}, v{g+1}")
    n=0
    for i in range(3):
        for L in range(2):
            cg=ACC+32*i+8*L; cu=cg+16; o=AW+4*(n&3); n+=1
            glu([cg,cg+2,cg+4,cg+6],[cu,cu+2,cu+4,cu+6],[ZS+4*L,ZS+4*L,ZS+4*L+2,ZS+4*L+2],[o,o+1,o+2,o+3])
            k(f"v_permlane16_swap_b32 v{o}, v{o+2}\nv_permlane16_swap_b32 v{o+1}, v{o+3}")
            k(f"buffer_store_dwordx4 v[{o}:{o+3}], v{7-L}, s[4:7], s70 offen offset:{1024*i} sc1")
        if i==0:
            c=ACC+96
            for r in range(4): k(f"v_permlane32_swap_b32 v{c+r}, v{c+8+r}\nv_permlane32_swap_b32 v{c+4+r}, v{c+12+r}")
            for r in range(4): k(f"v_permlane16_swap_b32 v{c+r}, v{c+4+r}\nv_permlane16_swap_b32 v{c+8+r}, v{c+12+r}")
    c=ACC+96; o=AW+4*(n&3)
    glu([c,c+2,c+4,c+6],[c+8,c+10,c+12,c+14],[ZM]*4,[o,o+1,o+2,o+3])
    k(f"buffer_store_dwordx4 v[{o}:{o+3}], v4, s[4:7], s71 offen sc1")
    k(f"""
    s_setprio 0
    s_lshl_b32 s29, s61, 4
    s_add_u32 s29, s29, s62
    s_lshl_b32 s29, s29, {FSH}
    s_add_u32 s29, s29, {WS_F3}
    s_lshl_b32 s23, s3, 14
    v_add_u32 v5, s23, v7
    v_and_b32 v3, 15, v2
    v_lshlrev_b32 v3, 6, v3
    """)
    if FW:
        k(f"s_lshl_b32 s23, s69, 1\ns_add_u32 s23, s23, s66\ns_lshl_b32 s23, s23, {FW}\ns_add_u32 s29, s29, s23\nv_mov_b32 v48, s60\nv_mov_b32 v49, 0\ns_mov_b64 exec, 1\ns_waitcnt vmcnt(0)")
        k("buffer_store_dword v48, v49, s[4:7], s29 offen sc1\ns_mov_b64 exec, -1\ns_barrier        ; B8")
    else:
        k(f"""
        s_waitcnt vmcnt(0)
        s_barrier        ; B8
        s_cmp_lg_u32 s3, 0
        s_cbranch_scc1 {'L_nf3' if PW else 'L_p3x'}
        """)
        flag(k,29,48)
    if PW:
        k("L_nf3:")
        f3addr(k,3)
        pollw(k,"L_p3",3,48,29,1 if PW==1 else 3,SL3,False)
    else:
        k(f"s_lshr_b32 s29, s63, 1\ns_lshl_b32 s29, s29, 10\ns_add_u32 s29, s29, {WS_F3}")
        poll(k,"L_p3",3,1,29,48,SL3)
        k("s_barrier        ; B9")
    ts(k,9,False)
    A2=48
    slots=[8+8*i for i in range(5)]+[112+8*i for i in range(5)]
    for s in range(NM):
        if PW==1 and s==7: pollw(k,"L_p3b",3,48,29,2,0,True)
        hgload(k, slots[s], s, NM)
    for s in range(NM):
        for lb in range(2):
            k(f"s_waitcnt vmcnt({2*(NM-1-s)+1-lb})")
            for db in range(2):
                c=A2+16*(db+2*lb); a=MA+8*s+4*db; b=slots[s]+4*lb
                k(f"v_mfma_f32_32x32x16_bf16 v[{c}:{c+15}], v[{a}:{a+3}], v[{b}:{b+3}], {'0' if s==0 else f'v[{c}:{c+15}]'}")
    for j in range(16):
        k(f"ds_write_b128 v5, v[{A2+4*j}:{A2+4*j+3}] offset:{G2M+j*1024}")
    k(f"""
    s_waitcnt lgkmcnt(0)
    s_barrier        ; B10
    s_or_b32 s23, s2, s3
    s_cmp_lg_u32 s23, 0
    s_cbranch_scc1 L_mend
    s_mov_b32 s29, {WS_TAG:#x}
    """)
    flag(k,29,48)
    k("L_mend:")
    flush(k,[1,2,3,4,5,6,7,8,10,9],0,0)
    k("s_endpgm")

def gen_help(k):
    VH=100; VW=102
    CS=72; WJ=88
    k(f"""
    L_help:
    v_lshrrev_b32 v12, 3, v2
    v_and_b32 v13, 7, v2
    v_lshlrev_b32 v14, 4, v13
    v_lshl_add_u32 v14, v12, 10, v14
    v_add_u32 v15, {8192-1024}, v14
    s_lshr_b32 s29, s2, 1                    ; kf
    s_and_b32 s30, s2, 1
    s_lshl_b32 s30, s30, 2
    s_add_u32 s30, s30, s65
    s_lshl_b32 s31, s29, 14
    s_lshl_b32 s52, s30, 7
    s_add_u32 s31, s31, s52
    s_lshl_b32 s52, s65, 11
    s_add_u32 s52, s52, {WDS}
    s_mov_b32 m0, s52
    s_mul_i32 s53, s30, 112
    s_add_u32 s53, s53, s29
    s_lshl_b32 s53, s53, 11
    s_add_u32 s53, s53, {WS_WT}
    s_mov_b32 s10, {1792*512*2:#x}
    s_mov_b32 s11, 0x20000
    s_waitcnt lgkmcnt(0)
    s_mov_b32 s8, s16
    s_mov_b32 s9, s17
    s_mov_b32 s4, s20
    s_mov_b32 s5, s21
    s_cmp_ge_u32 s2, 224
    s_cbranch_scc1 L_h0
    buffer_load_dwordx4 v14, s[8:11], s31 offen lds
    buffer_load_dwordx4 v15, s[8:11], s31 offen offset:1024 lds
    L_h0:
    global_load_ushort v8, v4, s[38:39]
    global_load_ushort v9, v4, s[40:41]
    global_load_ushort v10, v4, s[42:43]
    global_load_ushort v11, v4, s[44:45]
    buffer_load_dword v16, v5, s[4:7], s23 offen sc1
    s_load_dword s27, s[46:47], s22
    s_load_dword s28, s[48:49], s22
    s_getpc_b64 s[54:55]
    L_pc:
    s_add_u32 s54, s54, L_begin-L_pc
    s_addc_u32 s55, s55, -1
    s_lshr_b32 s29, s2, 3
    s_lshl_b32 s29, s29, 2
    s_add_u32 s29, s29, s65
    s_lshl_b32 s29, s29, 9
    v_and_b32 v17, 7, v2
    v_lshl_add_u32 v17, v17, 6, s29
    v_min_u32 v17, L_stop-L_begin-4, v17
    global_load_dword v17, v17, s[54:55]
    """)
    common_addr(k)
    k(f"""
    v_lshrrev_b32 v18, 5, v2
    v_bfe_u32 v19, v2, 2, 2
    v_lshl_add_u32 v18, v18, 3, v19
    v_lshlrev_b32 v18, 7, v18
    v_and_b32 v19, 1, v2
    v_lshl_add_u32 v18, v19, 5, v18
    v_bfe_u32 v19, v2, 4, 1
    v_lshl_add_u32 v18, v19, 4, v18
    v_bfe_u32 v19, v2, 1, 1
    v_lshl_add_u32 v18, v19, 3, v18
    v_add_u32 v18, s52, v18
    s_barrier        ; B1
    s_cmp_ge_u32 s2, 224
    s_cbranch_scc1 L_h1
    s_waitcnt vmcnt(6)
    """)
    for db in range(2):
        k(f"ds_read_b64_tr_b16 v[{WJ+4*db}:{WJ+4*db+1}], v18 offset:{64*db}\nds_read_b64_tr_b16 v[{WJ+4*db+2}:{WJ+4*db+3}], v18 offset:{64*db+512}")
    k(f"""
    s_waitcnt lgkmcnt(0)
    buffer_store_dwordx4 v[{WJ}:{WJ+3}], v7, s[4:7], s53 offen sc1
    buffer_store_dwordx4 v[{WJ+4}:{WJ+7}], v7, s[4:7], s53 offen offset:1024 sc1
    s_waitcnt vmcnt(3)
    s_branch L_h2
    L_h1:
    s_waitcnt vmcnt(1) lgkmcnt(0)
    L_h2:
    v_readfirstlane_b32 s60, v16
    """)
    ts(k,1,False)
    kparams(k)
    k("s_mul_i32 s60, s60, 1664525\ns_add_u32 s60, s60, 1013904223")
    Z1=36; Z8=38; V=40; Z2=42; Z4=44; T=46; E=48; X0=50; X1=52; CC=54; C=56
    k("v_sub_f32 v9, 0, v9")
    direct(k, Z1, 8, 9, 1, T)
    direct(k, Z8, 8, 9, 8, T)
    direct(k, V, 8, 9, 256, T)
    k(f"""
    v_add_f32 v34, v34, v34
    v_lshlrev_b32 v10, 16, v10
    v_lshlrev_b32 v11, 16, v11
    v_mul_f32 v{CC}, v10, v34
    v_mul_f32 v{CC+1}, -v11, v34
    """)
    cnt=[0]
    def put(src, rows):
        c=C+(cnt[0]&3); cnt[0]+=1
        k(f"v_cvt_pk_bf16_f32 v{c}, v{src}, v{src+1}")
        for (r,h) in rows: k(f"ds_write_b32 v30, v{c} offset:{TROW*rho(r,h)}")
    put(CC,[(0,0)])
    cmul(k,Z2,Z1,Z1,T)
    cur=CC
    for r in range(1,8):
        nxt = X0 if cur!=X0 else X1
        cmul(k,nxt,cur,Z1,T); put(nxt,[(r,0)]); cur=nxt
    cmul(k,Z4,Z2,Z2,T)
    cmul(k,E,CC,V,T); put(E,[(0,1),(1,1)])
    cur=E
    for rows in ([(2,1)],[(3,1),(4,1),(5,1)],[(6,1)],[(7,1)]):
        nxt = X0 if cur!=X0 else X1
        cmul(k,nxt,cur,Z2,T); put(nxt,rows); cur=nxt
    ecur=E
    for h in (0,1):
        en = CC if ecur==E else E
        cmul(k,en,ecur,V,T); put(en,[(8,h)]); ecur=en
        cmul(k,X0,ecur,Z4,T); put(X0,[(9,h)])
        cmul(k,X1,X0,Z4,T); put(X1,[(10,h)])
    for (r,h) in ((11,0),(11,1),(13,0),(13,1)):
        en = CC if ecur==E else E
        cmul(k,en,ecur,V,T); put(en,[(r,h)]); ecur=en
        cmul(k,X0,ecur,Z8,T); put(X0,[(r+1,h)])
    k(f"""
    s_lshr_b32 s52, s2, 3
    s_min_u32 s53, s52, 27
    s_and_b32 s29, s2, 1
    s_mul_i32 s29, s29, 28
    s_add_u32 s29, s29, s53                  ; t
    s_mul_i32 s30, s29, 4682
    s_lshr_b32 s30, s30, 16                  ; kchunk
    s_mul_i32 s31, s30, 14
    s_sub_u32 s29, s29, s31
    s_cmp_ge_u32 s29, 7
    s_cselect_b32 s8, s14, s12
    s_cselect_b32 s9, s15, s13
    s_cselect_b32 s31, 7, 0
    s_cselect_b32 s53, {1792*4}, 0
    s_sub_u32 s29, s29, s31
    s_bfe_u32 s31, s2, 0x20001
    s_mul_i32 s31, s31, 7
    s_add_u32 s29, s29, s31                  ; cb
    s_lshl_b32 s30, s30, 2
    s_add_u32 s30, s30, s65
    s_mul_i32 s31, s30, {32*3584}
    s_lshl_b32 s54, s29, 7
    s_add_u32 s31, s31, s54                  ; W soffset
    s_mul_i32 s30, s30, {3584*4}
    s_lshl_b32 s29, s29, 8
    s_add_u32 s30, s30, s29
    s_add_u32 s53, s53, s30
    s_add_u32 s53, s53, {WS_CS}
    v_mul_u32_u24 v12, 3584, v12
    v_lshl_add_u32 v12, v13, 4, v12
    v_lshrrev_b32 v14, 4, v2
    v_lshlrev_b32 v14, 3, v14
    v_lshl_add_u32 v13, v13, 5, v14
    s_lshl_b32 s29, s2, {SP1}
    s_add_u32 s29, s29, {WS_F1}
    s_waitcnt vmcnt(0) lgkmcnt(0)
    s_barrier        ; B2
    s_cmp_lg_u32 s3, 4
    s_cbranch_scc1 L_h3
    """)
    flag(k,29,20)
    k("L_h3:")
    ts(k,2,False)
    for i in range(4):
        k(f"buffer_load_dwordx4 v[{CS+4*i}:{CS+4*i+3}], v12, s[8:11], s31 offen")
        if i<3: k(f"s_add_u32 s31, s31, {8*3584}")
    WARM=E_("WARM",2)
    def warm():
        if WARM&2: k("s_bitcmp1_b32 s2, 0\ns_cbranch_scc1 L_nw")
        k(f"s_mov_b32 s29, {8*114688-24*3584:#x}\ns_bitcmp1_b32 s2, 0\ns_cselect_b32 s29, {(-8*114688-24*3584)&0xffffffff:#x}, s29\ns_add_u32 s75, s75, s29")
        for i in range(4):
            k(f"buffer_load_dwordx4 v[{88}:{91}], v12, s[8:11], s75 offen")
            if i<3: k(f"s_add_u32 s75, s75, {8*3584}")
        if WARM&2: k("L_nw:")
    k("s_mov_b32 s75, s31")
    if WARM and not WARM&4: warm()
    rot2init(k, NHS)
    k(f"""
    v_lshrrev_b32 v3, 4, v2
    v_and_b32 v4, 15, v2
    v_lshlrev_b32 v5, 1, v3
    v_xor_b32 v4, v4, v5
    v_lshlrev_b32 v4, 4, v4
    v_lshl_add_u32 v4, v3, 12, v4
    s_lshl_b32 s29, s65, 15
    v_add_u32 v{VH}, s29, v4
    v_xor_b32 v4, 128, v{VH}
    v_add_u32 v{VH+1}, {16384-1024}, v4
    s_lshl_b32 s70, s61, 8
    s_add_u32 s70, s70, {WS_HT}              ; H soffset
    s_mul_i32 s71, s62, 224
    s_mul_i32 s29, s66, 114688
    s_add_u32 s71, s71, s29
    s_lshl_b32 s72, s65, 11
    s_add_u32 s72, s72, {HB}                 ; H lds
    s_and_b32 s29, s65, 1
    s_mul_i32 s73, s29, {UOFF}
    s_mul_i32 s30, s66, {WSL}
    s_add_u32 s73, s73, s30
    s_add_u32 s73, s73, {WB}                 ; W lds
    s_cmp_eq_u32 s29, 0
    s_cselect_b32 s36, s12, s14
    s_cselect_b32 s37, s13, s15
    s_mov_b32 s38, {512*1792*2:#x}
    s_mov_b32 s39, 0x20000
    """)
    for i in range(7):
        k(f"""
        v_add_u32 v6, {64*i}, v2
        v_mul_u32_u24 v5, 4682, v6
        v_lshrrev_b32 v5, 16, v5
        v_mul_u32_u24 v4, 14, v5
        v_sub_u32 v6, v6, v4
        v_mul_u32_u24 v5, 3584, v5
        v_lshl_add_u32 v{VW+i}, v6, 4, v5
        """)
        if i&3: k(f"v_subrev_u32 v{VW+i}, {1024*(i&3)}, v{VW+i}")
    q=[]
    if ROT1:
        k("s_lshr_b32 s59, s2, 6\ns_lshl_b32 s59, s59, 1\ns_bfe_u32 s29, s2, 0x30003\ns_add_u32 s59, s59, s29\ns_and_b32 s59, s59, 7\ns_lshl_b32 s59, s59, 1")
        assert not WARM&4
        k("s_lshl_b32 s75, s59, 17")
    def wso(j):
        if ROT1: k(f"s_add_u32 s31, s59, {j}\ns_and_b32 s31, s31, 15\ns_mul_i32 s31, s31, 114688\ns_add_u32 s31, s31, s71")
        else: k(f"s_add_u32 s31, s71, {j*114688}")
    def issueH(j):
        if j>15 or (E_('NOH',0) and j>=NH): return
        k(f"s_add_u32 m0, s72, {(j%NH)*HS}")
        if ROT1: k(f"s_add_u32 s31, s75, {j*131072}\ns_and_b32 s31, s31, 0x1fffff\ns_add_u32 s31, s31, s70")
        else: k(f"s_add_u32 s31, s70, {j*131072}")
        k(f"buffer_load_dwordx4 v{VH}, s[4:7], s31 offen sc1 lds\nbuffer_load_dwordx4 v{VH+1}, s[4:7], s31 offen offset:1024 sc1 lds")
        q.extend([("H",j)]*2)
    def issueW(j):
        if j>15: return
        k(f"s_add_u32 m0, s73, {(j%NW)*WSL}"); wso(j)
        for i in range(7):
            if i==4: k(f"s_add_u32 m0, s73, {(j%NW)*WSL+4096}")
            k(f"buffer_load_dwordx4 v{VW+i}, s[36:39], s31 offen offset:{1024*(i&3)} lds")
        q.extend([("W",j)]*7)
    def issueW1(b,par):
        if b>15 or (E_('NOW',0) and b>6): return
        o=(b%NW-par)*WSL
        k(f"s_add_u32 m0, s73, {o&0xffffffff:#x}"); wso(b-par)
        for i in range(7):
            if i==4: k(f"s_add_u32 m0, s73, {(o+4096)&0xffffffff:#x}")
            k(f"buffer_load_dwordx4 v{VW+i}, s[36:39], s31 offen offset:{1024*(i&3)} lds")
        q.extend([("V",b)]*7)
    RW=E_("RW",0); NA2=E_("NA2",0); NB6=E_("NB6",4); TR=float(os.environ.get("TR","3.5")); TJ=E_("TJ",3)
    rw=[0]
    def regW(upto):
        while rw[0]<upto:
            n=rw[0]; rw[0]+=1
            if n==4: k("s_cmp_eq_u32 s66, 0\ns_cbranch_scc1 L_rw4")
            for i in range(7):
                k(f"buffer_load_dwordx4 v[{HA+28*n+4*i}:{HA+28*n+4*i+3}], v{VW+i}, s[36:39], s59 offen offset:{1024*(i&3)}")
            if n<4:
                k(f"s_add_u32 s59, s59, {2*114688}"); q.extend([("R",n)]*7)
            else: k("L_rw4:")
    def putW(b,par):
        n=(b-7)>>1
        k(f"v_add_u32 v109, {((b%NW-par)*WSL)&0xffffffff:#x}, v99")
        for i in range(7): k(f"ds_write_b128 v109, v[{HA+28*n+4*i}:{HA+28*n+4*i+3}] offset:{1024*i}")
    if RW:
        assert NW==7
        k(f"s_mul_i32 s59, s66, {(-2*114688)&0xffffffff:#x}\ns_add_u32 s59, s59, s71\ns_add_u32 s59, s59, {8*114688}\nv_add_u32 v99, s73, v7")
        regW(NA2); q.clear()
    wt=[0]
    def issueT(n):
        for _ in range(n):
            if wt[0]<2*NHS:
                wtload(k, HA, wt[0]); q.append(("T",wt[0])); wt[0]+=1
    k("s_barrier        ; B3")
    ts(k,4,False)
    eloads(k)
    uprep(k, 0)
    ts(k,5,False)
    if WARM&4: warm()
    for i in range(4):
        for j in range(4):
            if i==0: k(f"v_lshlrev_b32 v{24+2*j}, 16, v{CS+j}\nv_and_b32 v{25+2*j}, 0xffff0000, v{CS+j}")
            else:
                k(f"v_lshlrev_b32 v32, 16, v{CS+4*i+j}\nv_and_b32 v33, 0xffff0000, v{CS+4*i+j}")
                k(f"v_add_f32 v{24+2*j}, v{24+2*j}, v32\nv_add_f32 v{25+2*j}, v{25+2*j}, v33")
    for i in range(4): k(f"v_permlane32_swap_b32 v{24+i}, v{28+i}")
    for i in range(4): k(f"v_add_f32 v{24+i}, v{24+i}, v{28+i}")
    for i in range(2): k(f"v_permlane16_swap_b32 v{24+i}, v{26+i}")
    for i in range(2): k(f"v_add_f32 v{24+i}, v{24+i}, v{26+i}")
    for i in range(2): k(f"v_add_f32_dpp v{24+i}, v{24+i}, v{24+i} row_ror:8 row_mask:0xf bank_mask:0xf")
    k(f"""
    s_cmp_ge_u32 s52, 28
    s_cbranch_scc1 L_h4
    s_mov_b32 exec_lo, 0x00ff00ff
    s_mov_b32 exec_hi, 0x00ff00ff
    buffer_store_dwordx2 v[24:25], v13, s[4:7], s53 offen sc1
    s_mov_b64 exec, -1
    L_h4:
    """)
    issueW(0); issueW(2)
    if RW: regW(min(NB6,4))
    else: issueT(N1)
    k(f"""
    v_and_b32 v3, 255, v0
    v_lshrrev_b32 v4, 5, v3
    v_lshlrev_b32 v4, 4, v4
    v_and_b32 v5, 15, v3
    v_add_u32 v4, v4, v5
    v_bfe_u32 v5, v3, 4, 1
    v_mul_u32_u24 v5, 112, v5
    v_add_u32 v4, v4, v5
    v_min_u32 v4, 223, v4
    v_lshlrev_b32 v4, 2, v4
    v_add_u32 v110, {PART}, v4
    s_lshl_b32 s29, s65, 10
    s_add_u32 s29, s29, {PART}
    v_add_u32 v111, s29, v7
    v_cmp_le_u32 vcc, 28, v2
    v_mov_b32 v5, {1792*4-28*16}
    v_cndmask_b32 v4, 0, v5, vcc
    v_add_u32 v4, v4, v7
    v_cmp_gt_u32 vcc, 56, v2
    v_mov_b32 v5, 0x7fffff00
    v_cndmask_b32 v4, v5, v4, vcc
    s_mul_i32 s53, s62, 448
    s_mul_i32 s29, s65, {4*3584*4}
    s_add_u32 s53, s53, s29
    s_add_u32 s53, s53, {WS_CS}
    v_lshlrev_b32 v3, 4, v3
    v_add_u32 v3, {AP}, v3
    v_lshrrev_b32 v5, 4, v2                  ; row
    v_and_b32 v15, 15, v2
    v_lshlrev_b32 v12, 6, v15
    v_lshlrev_b32 v13, 4, v15
    v_lshl_add_u32 v6, v5, 12, v13
    s_lshl_b32 s29, s65, 8
    s_add_u32 s29, s29, {PART}
    v_add_u32 v13, s29, v13
    v_lshlrev_b32 v15, 5, v15
    v_and_b32 v1, 1, v5
    v_lshl_add_u32 v15, v1, 4, v15
    v_lshrrev_b32 v1, 1, v5
    v_lshl_add_u32 v15, v1, 9, v15
    s_lshl_b32 s29, s65, 10
    s_add_u32 s29, s29, {PART}
    v_add_u32 v15, s29, v15
    v_and_b32 v1, 7, v2
    v_lshlrev_b32 v14, 4, v1
    v_lshl_add_u32 v14, v5, 10, v14
    v_bfe_u32 v8, v2, 3, 1
    v_lshl_add_u32 v14, v8, 9, v14
    v_lshl_add_u32 v1, v1, 2, v5
    v_lshlrev_b32 v1, 4, v1
    s_lshl_b32 s29, s65, 9
    s_add_u32 s29, s29, {FS}
    v_add_u32 v1, s29, v1
    s_lshl_b32 s54, s62, 17
    s_lshl_b32 s29, s65, 15
    s_add_u32 s54, s54, s29
    s_add_u32 s54, s54, s70
    s_lshl_b32 s29, s61, 4
    s_add_u32 s29, s29, s62
    s_lshl_b32 s56, s29, 6
    s_add_u32 s56, s56, {WS_F4}              ; own F4
    s_lshl_b32 s55, s29, 10
    s_lshl_b32 s29, s65, 8
    s_add_u32 s55, s55, s29
    s_add_u32 s55, s55, {WS_SP}
    s_lshl_b32 s57, s61, 10
    s_add_u32 s57, s57, {WS_F4}              ; F4 row
    s_lshl_b32 s58, s61, 14
    s_lshl_b32 s29, s65, 7
    s_add_u32 s58, s58, s29
    s_add_u32 s58, s58, {WS_SP}
    v_lshlrev_b32 v5, {SP2}, v2
    s_mov_b32 s29, {WS_F2:#x}
    """)
    k(f"s_waitcnt vmcnt({min(63,len(q))})")
    if RW: regW(NB6)
    k("s_barrier        ; B6")
    PF1=E_("PF1",0)
    if not PF1:
        issueW(4)
        if not RW: issueT(N3)
    if NW==7:
        k("s_cmp_lg_u32 s66, 0\ns_cbranch_scc1 L_w6")
        q6=len(q); issueW1(6,0); del q[q6:]
        k("L_w6:")
    if RW: regW(5)
    if not E_("POLM",1):
        k("s_cmp_lg_u32 s3, 4\ns_cbranch_scc1 L_p2x")
        poll(k,"L_p2",5,4,29,48,SL2,SP2)
    k("s_barrier        ; B7")
    assert not (PF1 and NW==7)
    ts(k,7,False)
    S=24; Q=32; RB=[40,44]; T=52
    SH=E_("SH",3); HR=E_("HR",2); JS=E_("JS",0); CJ=E_("CJ",8); CK=E_("CK",12)
    hh=[0]
    def upH(n):
        while hh[0]<=min(n,15): issueH(hh[0]); hh[0]+=1
    def issueS():
        k(f"buffer_load_dwordx4 v[40:43], v6, s[4:7], s54 offen sc1\ns_add_u32 s54, s54, 16384\nbuffer_load_dwordx4 v[44:47], v6, s[4:7], s54 offen sc1")
        q.extend([("S",0),("S",1)])
    upH(SH-1)
    if JS<0: issueS()
    if PF1: issueW(4)
    def issueC():
        for p in range(4):
            k(f"buffer_load_dwordx4 v[{CS+4*p}:{CS+4*p+3}], v4, s[4:7], s53 offen sc1"); q.append(("C",p))
            if p<3: k(f"s_add_u32 s53, s53, {3584*4}")
    def vwait(f):
        n=max(idx for idx,x in enumerate(q) if f(x))
        k(f"s_waitcnt vmcnt({min(63,len(q)-1-n)})")
    def smath(r):
        vwait(lambda x: x==("S",r))
        for d in range(4):
            src=RB[r]+d
            if r==0:
                k(f"v_lshlrev_b32 v{S+2*d}, 16, v{src}\nv_and_b32 v{S+2*d+1}, 0xffff0000, v{src}")
                k(f"v_mul_f32 v{Q+2*d}, v{S+2*d}, v{S+2*d}\nv_mul_f32 v{Q+2*d+1}, v{S+2*d+1}, v{S+2*d+1}")
            else:
                t=T+2*(d&1)
                k(f"v_lshlrev_b32 v{t}, 16, v{src}\nv_and_b32 v{t+1}, 0xffff0000, v{src}")
                k(f"v_add_f32 v{S+2*d}, v{S+2*d}, v{t}\nv_add_f32 v{S+2*d+1}, v{S+2*d+1}, v{t+1}")
                k(f"v_fmac_f32 v{Q+2*d}, v{t}, v{t}\nv_fmac_f32 v{Q+2*d+1}, v{t+1}, v{t+1}")
    def sred():
        for i in range(8): k(f"v_permlane32_swap_b32 v{S+i}, v{Q+i}")
        for i in range(8): k(f"v_add_f32 v{S+i}, v{S+i}, v{Q+i}")
        for i in range(4): k(f"v_permlane16_swap_b32 v{S+i}, v{S+4+i}")
        for i in range(4): k(f"v_add_f32 v{S+i}, v{S+i}, v{S+4+i}")
        k(f"ds_write_b128 v15, v[{S}:{S+3}]\ns_waitcnt lgkmcnt(0)")
    if J0<0: smath(0)
    if J1<0: smath(1)
    if J2<0: sred()
    rest=2*NHS-wt[0]
    HJ=[int(x) for x in os.environ.get("HJ","").split(",") if x]
    HL=E_('HL',1)
    q0=list(q); h0=hh[0]; w0=wt[0]
    k('s_cmp_lg_u32 s66, 0\ns_cbranch_scc1 L_par1')
    for par,j in [(a,b) for a in range(2) for b in range(16)]:
        if j==0:
            q[:]=q0; hh[0]=h0; wt[0]=w0
            if par: k('s_branch L_parx\nL_par1:')
            if NW==7 and par==0:
                i6=max(i for i,x in enumerate(q) if x==('W',4))+1+(0 if RW else N3)
                q[i6:i6]=[('V',6)]*7
        vwait(lambda x: (x[0]=="W" and x[1]+par<=j) or (x[0]=="V" and x[1]<=j) or (x[0]=="H" and x[1]<=j) or (x[0]=="C" and j>=CK) or (x[0]=="P" and j>=JF) or (x[0]=="F" and j>=JQ) or (x[0]=="G" and j>=JR))
        k("s_barrier")
        if STAMP and j in HJ: ts(k,[1,2,4,5,7][HJ.index(j)],False)
        if j==JF:
            flag(k,56,48); q.append(("f",0))
        if j==JQ:
            k(f"v_xor_b32 v48, s60, v50\nv_cmp_ne_u32 vcc, 0, v48\ns_cbranch_vccz L_p4{par}x")
            poll(k,f"L_p4{par}",12,1,57,48,0)
            for i in range(4):
                k(f"buffer_load_dwordx4 v[{24+4*i}:{27+4*i}], v14, s[4:7], s58 offen sc1"); q.append(("G",i))
                if i<3: k("s_add_u32 s58, s58, 4096")
        if j==JP:
            k("buffer_load_dword v50, v12, s[4:7], s57 offen sc1"); q.append(("F",0))
        WF=E_('WF',1)
        if WF and j>=2 and (j+NW)%2==par and not RW: issueW1(j+NW-2,par)
        upH(min(j+NH-2+HL, SH-1+HR*(j+1)))
        if j==JS: issueS()
        if not WF and j>=2 and (j+NW)%2==par and not RW: issueW1(j+NW-2,par)
        if RW:
            nfree=len([b for b in range(7,16) if b%2==par and b-5<j])
            lim=36 if nfree==(5 if par else 4) else 7*nfree
            tgt=min(lim, int(TR*(j-TJ+1))) if j<15 else 36
            if 3<=j<=11 and (j+4)%2==par: k("s_waitcnt lgkmcnt(0)")
            if tgt>wt[0]: issueT(tgt-wt[0])
            if 2<=j and j+5<=15 and (j+5)%2==par: putW(j+5,par)
        if j==CJ: issueC()
        TJ2=E_("TJ2",11)
        if not RW and j>=TJ2: issueT(-(-rest//(16-TJ2)))
        if j==CK:
            assert CK>J2+1 and CK>CJ and JC>CK
            for i in range(8): k(f"v_add_f32 v{CS+i}, v{CS+i}, v{CS+8+i}")
            for i in range(4): k(f"v_add_f32 v{CS+i}, v{CS+i}, v{CS+4+i}")
            k(f"ds_write_b128 v111, v[{CS}:{CS+3}]\ns_waitcnt lgkmcnt(0)")
        if j==J0: smath(0)
        if j==J1: smath(1)
        if j==J2: sred()
        if j==J2+1:
            for p in range(4): k(f"ds_read_b128 v[{24+4*p}:{27+4*p}], v13 offset:{1024*p}")
            k("s_waitcnt lgkmcnt(2)")
            for i in range(4): k(f"v_add_f32 v{24+i}, v{24+i}, v{28+i}")
            k("s_waitcnt lgkmcnt(0)")
            for i in range(4): k(f"v_add_f32 v{32+i}, v{32+i}, v{36+i}")
            for i in range(4): k(f"v_add_f32 v{40+i}, v{24+i}, v{32+i}")
            k("s_mov_b64 exec, 0xffff\nbuffer_store_dwordx4 v[40:43], v7, s[4:7], s55 offen sc1\ns_mov_b64 exec, -1"); q.append(("P",0))
        if j==JC:
            for p in range(4): k(f"ds_read_b32 v{CS+p}, v110 offset:{1024*p}")
            k(f"s_waitcnt lgkmcnt(0)\nv_add_f32 v{CS}, v{CS}, v{CS+1}\nv_add_f32 v{CS+2}, v{CS+2}, v{CS+3}\nv_add_f32 v{CS}, v{CS}, v{CS+2}")
            k(f"""
            v_cvt_pk_bf16_f32 v9, v{CS}, v{CS}
            v_and_b32 v9, 0xffff0000, v9
            v_sub_f32 v8, v{CS}, v9
            v_cvt_pk_bf16_f32 v10, v8, v8
            v_and_b32 v10, 0xffff0000, v10
            v_sub_f32 v8, v8, v10
            v_cvt_pk_bf16_f32 v16, v9, v10
            v_cvt_pk_bf16_f32 v17, v8, 0
            v_mov_b32 v18, 0
            v_mov_b32 v19, 0
            ds_write_b128 v3, v[16:19]
            s_waitcnt lgkmcnt(0)
            """)
        if j==JR:
            for i in range(8): k(f"v_add_f32 v{24+i}, v{24+i}, v{32+i}")
            for i in range(4): k(f"v_add_f32 v{24+i}, v{24+i}, v{28+i}")
            k(f"""
            v_permlane32_swap_b32 v24, v26
            v_permlane32_swap_b32 v25, v27
            v_add_f32 v24, v24, v26
            v_add_f32 v25, v25, v27
            v_permlane16_swap_b32 v24, v25
            v_add_f32 v40, v24, v25
            v_mov_b32_dpp v41, v40 row_ror:8 row_mask:0xf bank_mask:0xf
            v_mul_f32 v40, 0x3b000000, v40
            v_mul_f32 v41, 0x3b000000, v41
            v_fma_f32 v41, -v40, v40, v41
            v_max_f32 v41, 0, v41
            v_cvt_pk_bf16_f32 v41, v41, v41
            v_and_b32 v41, 0xffff0000, v41
            v_add_f32 v41, 0x3727c5ac, v41
            v_cvt_pk_bf16_f32 v41, v41, v41
            v_and_b32 v41, 0xffff0000, v41
            v_sqrt_f32 v41, v41
            v_cvt_pk_bf16_f32 v44, -v40, -v40
            v_cvt_pk_bf16_f32 v41, v41, v41
            v_and_b32 v47, 0xffff0000, v41
            v_rcp_f32 v46, v47
            v_mov_b32 v45, v44
            v_mul_f32 v46, 0xbfb8aa3b, v46
            s_mov_b32 exec_lo, 0x00ff00ff
            s_mov_b32 exec_hi, 0x00ff00ff
            ds_write_b128 v1, v[44:47]
            s_mov_b64 exec, -1
            s_waitcnt lgkmcnt(0)
            """)
    k('L_parx:')
    assert hh[0]==16
    assert wt[0]==2*NHS
    ts(k,8,False)
    k(f"""
    v_add_u32 v6, {112*1024}, v7
    v_lshrrev_b32 v3, 2, v2
    v_lshlrev_b32 v3, 12, v3
    v_and_b32 v4, 3, v2
    v_lshl_add_u32 v3, v4, 4, v3
    v_add_u32 v4, {65536-1024}, v3
    s_and_b32 s29, s65, 1
    s_lshl_b32 s30, s64, 1
    s_add_u32 s29, s29, s30          ; d block32
    s_lshl_b32 s30, s63, 1
    s_add_u32 s30, s30, s66          ; l block32
    s_lshl_b32 s52, s29, 17
    s_lshl_b32 s53, s30, 6
    s_add_u32 s52, s52, s53
    s_add_u32 s52, s52, {WS_HT}      ; h soffset
    s_lshl_b32 s74, s30, 15
    s_lshl_b32 s53, s29, 6
    s_add_u32 s74, s74, s53
    s_lshl_b32 s53, s65, 11
    s_add_u32 s53, s53, {G2R}
    s_mov_b32 s8, s18
    s_mov_b32 s9, s19
    s_mov_b32 s10, {2048*512*2:#x}
    s_barrier        ; B8
    {TSI+' s[92:93]' if STAMP else ''}
    s_mov_b32 m0, s53
    s_nop 0
    buffer_load_dwordx4 v3, s[4:7], s52 offen sc1 lds
    buffer_load_dwordx4 v4, s[4:7], s52 offen offset:1024 sc1 lds
    v_lshrrev_b32 v3, 5, v2
    v_bfe_u32 v4, v2, 2, 2
    v_lshl_add_u32 v4, v3, 4, v4
    v_lshlrev_b32 v4, 6, v4
    v_bfe_u32 v5, v2, 4, 1
    v_lshl_add_u32 v4, v5, 5, v4
    v_and_b32 v5, 3, v2
    v_lshl_add_u32 v4, v5, 3, v4
    v_add_u32 v4, s53, v4
    v_and_b32 v5, 31, v2
    v_lshlrev_b32 v5, 10, v5
    v_lshl_add_u32 v5, v3, 5, v5
    s_lshl_b32 s29, s65, 14
    s_add_u32 s29, s29, {G2H}
    v_add_u32 v3, s29, v7
    s_lshl_b32 s29, s65, 12
    v_add_u32 v1, s29, v7
    """)
    if PW:
        f3addr(k,0)
        pollw(k,"L_p3h",0,2,29,(8 if PWO else 2) if PW==1 else 14,SL3H,False)
    else: k("s_barrier        ; B9")
    ts(k,9,False)
    A2=48
    free=[8+8*i for i in range(5)]
    slot={}; q=[]
    nxt=[0]
    ORD=list(range(NHS))
    if PW==1 and PWO: ORD=list(range(11,18))+list(range(4,11))+list(range(4))
    CHK=({7:4,14:2} if PWO else {4:4,11:8}) if PW==1 else {}
    cur=[0]
    def ldB():
        if nxt[0]>=NHS or not free: return False
        s=ORD[nxt[0]]
        b=free.pop(0); slot[s]=b
        if nxt[0] in CHK: pollw(k,f"L_p3h{nxt[0]}",0,2,29,CHK[nxt[0]],0,True)
        if PW:
            g=s>>2
            if g!=cur[0]:
                d=(g-cur[0])*4096
                k(f"s_add_u32 s68, s68, {d}" if d>0 else f"s_sub_u32 s68, s68, {-d}")
                cur[0]=g
            k(f"buffer_load_dwordx4 v[{b}:{b+3}], v7, s[4:7], s68 offen offset:{1024*(s&3)} sc1")
            k(f"buffer_load_dwordx4 v[{b+4}:{b+7}], v6, s[4:7], s68 offen offset:{1024*(s&3)} sc1")
        else: hgload(k, b, s, NHS)
        q.extend([(s,0),(s,1)]); nxt[0]+=1
        return True
    while ldB(): pass
    for n,s in enumerate(ORD):
        for lb in range(2):
            k(f"s_waitcnt vmcnt({len(q)-1-q.index((s,lb))})")
            for db in range(2):
                c=A2+16*(db+2*lb); a=HA+8*s+4*db; b=slot[s]+4*lb
                k(f"v_mfma_f32_32x32x16_bf16 v[{c}:{c+15}], v[{a}:{a+3}], v[{b}:{b+3}], {'0' if n==0 else f'v[{c}:{c+15}]'}")
        if n>=1:
            free.append(slot[ORD[n-1]]); free.append(HA+8*ORD[n-1])
        ldB(); ldB()
    for w in range(4):
        if w<3: k(f"s_cmp_lg_u32 s65, {w}\ns_cbranch_scc1 L4_w{w}")
        for qd in range(4):
            if qd==w: continue
            for j in range(4):
                k(f"ds_write_b128 v3, v[{A2+16*qd+4*j}:{A2+16*qd+4*j+3}] offset:{qd*4096+j*1024}")
        if w:
            for j in range(16): k(f"v_mov_b32 v{A2+j}, v{A2+16*w+j}")
        if w<3: k(f"s_branch L4_red\nL4_w{w}:")
    k("L4_red:")
    HT=8; HF=16; P=112
    for j in range(4): k(f"ds_read_b64_tr_b16 v[{HT+2*j}:{HT+1+2*j}], v4 offset:{j*256}")
    k("s_waitcnt lgkmcnt(0)\ns_barrier        ; B10")
    for p in range(4):
        for j in range(4): k(f"ds_read_b128 v[{P+16*p+4*j}:{P+3+16*p+4*j}], v1 offset:{G2M+p*16384+j*1024}")
    for j in range(8):
        k(f"v_and_b32 v{HF+1+2*j}, 0xffff0000, v{HT+j}\nv_lshlrev_b32 v{HF+2*j}, 16, v{HT+j}")
    def addp(p):
        for j in range(8): k(f"v_pk_add_f32 v[{A2+2*j}:{A2+2*j+1}], v[{A2+2*j}:{A2+2*j+1}], v[{P+16*p+2*j}:{P+1+16*p+2*j}]")
    for p in range(1,4):
        k(f"s_add_u32 s29, s65, {p}\ns_and_b32 s29, s29, 3\ns_lshl_b32 s29, s29, 14\ns_add_u32 s29, s29, {G2H}\nv_add_u32 v3, s29, v1")
        k(f"s_waitcnt lgkmcnt(12)");
        for j in range(4): k(f"ds_read_b128 v[{P+16*(p+3)+4*j}:{P+3+16*(p+3)+4*j}], v3 offset:{j*1024}")
        addp(p-1)
    for p in range(3,7):
        k(f"s_waitcnt lgkmcnt({4*(6-p)})"); addp(p)
    for j in range(8): k(f"v_cvt_pk_bf16_f32 v{64+j}, v{A2+2*j}, v{A2+2*j+1}")
    for j in range(8): k(f"v_lshlrev_b32 v{A2+2*j}, 16, v{64+j}\nv_and_b32 v{A2+2*j+1}, 0xffff0000, v{64+j}")
    for j in range(8): k(f"v_pk_add_f32 v[{A2+2*j}:{A2+2*j+1}], v[{A2+2*j}:{A2+2*j+1}], v[{HF+2*j}:{HF+1+2*j}]")
    for j in range(8): k(f"v_cvt_pk_bf16_f32 v{64+j}, v{A2+2*j}, v{A2+2*j+1}")
    for jj in range(2):
        k(f"buffer_store_dwordx4 v[{64+4*jj}:{67+4*jj}], v5, s[8:11], s74 offen offset:{16*jj} {os.environ.get('OUTM','')}")
    ts(k,3,False)
    flush(k,[1,8,6,3],10,4)

if __name__=="__main__":
    out = sys.argv[1] if len(sys.argv)>1 else "m.s"
    finish(out, [gen_m()])
```

```python
import sys, os
sys.path.insert(0,'gen')
from common import *
from k2 import cmul, direct, rho, LOG2E, INV2PI
E_=lambda n,d: int(os.environ.get(n,str(d)),0)
WS_WT=0x1000000
WS_F1=0x1400000; WS_F2=0x1410000; WS_F3=0x1420000; WS_TAG=0x1430000; WS_F4=0x1440000; WS_SP=0x1450000
WSL=14464; UOFF=7184; NW=E_("NW",7); WB=0
TB=0; TA=33792; TBL=16896; TROW=528
UC=72320; UCC=4640; UCH=4*UCC
KC=109440; KCC=4224
XT=126336; T1=XT+8192; RED=142720
LNB=XT; ROWS=2112; WDS=143360
NH=E_("NH",8 if NW==6 else 6); HS=8192; HB=NW*WSL
MISC=HB+NH*HS; PART=MISC; FS=MISC+4096; AP=MISC+6144
G2M=0; G2H=65536; G2R=131072
PF=160768
LDS=163840
CUM=[2,4,6,8,10,13,15,18,20,23,25,28,30,32,32,32]
def hb(j): return max(j,(CUM[j]-1)>>1)
NM=10; NHS=18
MA=176; HA=112
N1=E_("N1",36); N3=E_("N3",0)
J0=E_("J0",2); J1=E_("J1",2); J2=E_("J2",3); JF=E_("JF",7); JP=E_("JP",10); JQ=E_("JQ",12); JR=E_("JR",14); JC=E_("JC",13)
SL1=E_("SL1",0); SL2=E_("SL2",32); SL3=E_("SL3",20); SLP=E_("SLP",2)
LIMIT=4000
ROT1=E_('ROT1',0); ROT2=E_('ROT2',0); SP1=E_('SP1',6); SP2=E_('SP2',6)
TSI='s_memtime' if E_('CY',0) else 's_memrealtime'
def ts(k,i,drain=True):
    if not STAMP: return
    k(f"{TSI} s[{80+2*i}:{81+2*i}]")
    if drain: k("s_waitcnt lgkmcnt(0)")
def flush(k, idxs, base, wave):
    if STAMP==3:
        DI=E_("DI",0); DWV=E_("DWV",0); DW=E_("DBGWG",-1)
        if DWV!=wave: return
        if DW>=0: k(f"s_cmp_lg_u32 s2, {DW}\ns_cbranch_scc1 L_df{wave}")
        k(f"""s_cmp_lg_u32 s3, {wave}
        s_cbranch_scc1 L_df{wave}
        s_waitcnt lgkmcnt(0)
        s_add_u32 s29, s{80+2*DI}, 6000
        s_mov_b32 s23, 0
        L_dl{wave}:
        s_memrealtime s[30:31]
        s_add_u32 s23, s23, 1
        s_waitcnt lgkmcnt(0)
        s_sub_u32 s30, s30, s29
        s_cmp_gt_u32 s23, 200000
        s_cbranch_scc1 L_df{wave}
        s_cmp_lt_i32 s30, 0
        s_cbranch_scc1 L_dl{wave}
        L_df{wave}:""")
        return
    if STAMP!=2:
        stamp_flush(k,0,11,20,3,vt=8)
        if STAMP and wave==0: k("s_sub_u32 s29, s74, s72\nv_mov_b32 v8, s29\nbuffer_store_dword v8, v9, s[76:79], 0 offen offset:44")
        return
    DW=E_("DBGWG",0)
    k(f"s_cmp_lg_u32 s2, {DW}\ns_cbranch_scc1 L_df{wave}\ns_cmp_lg_u32 s3, {wave}\ns_cbranch_scc1 L_df{wave}")
    k("s_load_dwordx2 s[76:77], s[0:1], 96\ns_mov_b32 s78, 256\ns_mov_b32 s79, 0x20000\nv_mov_b32 v9, 0\ns_waitcnt lgkmcnt(0)")
    for n,i in enumerate(idxs):
        k(f"s_sub_u32 s29, s{80+2*i}, s80\nv_mov_b32 v8, s29\nbuffer_store_dword v8, v9, s[76:79], 0 offen offset:{4*(base+n)}")
    k(f"L_df{wave}:")
def poll(k, lab, voff, n, soff, t, first, sp=6):
    if first: k(f"s_sleep {first}")
    k(f"s_mov_b32 s31, 0\n{lab}:")
    if sp==2 and n==4: k(f"buffer_load_dwordx4 v[{t}:{t+3}], v7, s[4:7], s{soff} offen sc1")
    else:
      for j in range(n):
        if j: k(f"s_add_u32 s30, s{soff}, {(64<<sp)*j}")
        k(f"buffer_load_dword v{t+j}, v{voff}, s[4:7], s{soff if j==0 else 30} offen sc1")
    k("s_add_u32 s31, s31, 1\ns_waitcnt vmcnt(0)")
    for j in range(n): k(f"v_xor_b32 v{t+j}, s60, v{t+j}")
    for j in range(1,n): k(f"v_or_b32 v{t}, v{t}, v{t+j}")
    k(f"""
    v_cmp_ne_u32 vcc, 0, v{t}
    s_cmp_gt_u32 s31, {LIMIT}
    s_cbranch_scc1 {lab}x
    s_cbranch_vccz {lab}x
    s_sleep {SLP}
    s_branch {lab}
    {lab}x:
    """)
KF=E_("KF",0); SL3D=E_("SL3D",12); TD=E_("TD",0); JB=E_("JB",0); TL=E_("TL",4); JM=E_("JM",0); PW=E_("PW",2); SL3H=E_("SL3H",20); PWO=E_("PWO",1); FW=E_("FW",0); NP=E_("NP",0); SLQ=E_("SLQ",3)
FSH=8 if FW==6 else 6
def f3addr(k, vf):
    k(f"""
    s_lshr_b32 s29, s63, 1
    s_lshl_b32 s29, s29, {FSH+4}
    s_lshl_b32 s23, s65, {FSH+2}
    s_add_u32 s29, s29, s23
    s_add_u32 s29, s29, {WS_F3}
    v_and_b32 v{vf}, 3, v2
    v_lshlrev_b32 v{vf}, {FSH}, v{vf}
    """)
    if FW: k(f"""
    s_and_b32 s23, s63, 1
    s_lshl_b32 s23, s23, {FW+1}
    s_add_u32 s29, s29, s23
    v_bfe_u32 v48, v2, 2, 1
    v_lshl_add_u32 v{vf}, v48, {FW}, v{vf}
    """)
def pollw(k, lab, vf, vt, soff, mask, first, recheck):
    if recheck: k(f"s_and_b32 s30, vcc_lo, {mask}\ns_cbranch_scc0 {lab}x")
    if FW: mask|=mask<<4
    if first and SL3D:
        k(f"s_add_u32 s23, s62, 1\ns_bitcmp1_b32 s23, 1\ns_cbranch_scc1 {lab}s\ns_sleep {min(SL3D,first)}\n{lab}s:")
        first-=min(SL3D,first)
    if first: k(f"s_sleep {first}")
    if NP and not recheck:
        for i in range(NP):
            k(f"buffer_load_dword v{48+i}, v{vf}, s[4:7], s{soff} offen sc1")
            if i<NP-1: k(f"s_sleep {SLQ}")
        for i in range(NP):
            k(f"s_waitcnt vmcnt({NP-1-i})\nv_cmp_ne_u32 vcc, s60, v{48+i}\ns_and_b32 s30, vcc_lo, {mask}\ns_cbranch_scc0 {lab}x")
    k(f"""
    s_mov_b32 s31, 0
    {lab}:
    buffer_load_dword v{vt}, v{vf}, s[4:7], s{soff} offen sc1
    s_add_u32 s31, s31, 1
    s_waitcnt vmcnt(0)
    v_cmp_ne_u32 vcc, s60, v{vt}
    s_cmp_gt_u32 s31, {LIMIT}
    s_cbranch_scc1 {lab}x
    s_and_b32 s30, vcc_lo, {mask}
    s_cbranch_scc0 {lab}x
    s_sleep {SLP}
    s_branch {lab}
    {lab}x:
    """)
def flag(k, soff, t):
    k(f"""
    v_mov_b32 v{t}, s60
    v_mov_b32 v{t+1}, 0
    s_mov_b64 exec, 1
    buffer_store_dword v{t}, v{t+1}, s[4:7], s{soff} offen sc1
    s_mov_b64 exec, -1
    """)
EB=56
def eloads(k):
    k(f"""
    buffer_load_dwordx4 v[{EB}:{EB+3}], v71, s[32:35], s26 offen sc1
    buffer_load_dwordx4 v[{EB+4}:{EB+7}], v70, s[32:35], s26 offen sc1
    buffer_load_dwordx4 v[{EB+8}:{EB+11}], v70, s[32:35], s26 offen offset:32 sc1
    """)
def uprep(k, nafter):
    k(f"s_waitcnt vmcnt({nafter+1})")
    for j in range(6): k(f"v_mov_b32 v{36+j}, v{EB+1+j}")
    k(f"""
    ds_write_b128 v68, v[{EB+2}:{EB+5}] offset:{UCC}
    ds_write_b128 v68, v[{EB+4}:{EB+7}] offset:{3*UCC}
    ds_write_b128 v68, v[36:39]
    ds_write_b128 v68, v[38:41] offset:{2*UCC}
    """)
    for j in range(4):
        k(f"v_lshlrev_b32 v{44+2*j}, 16, v{EB+4+j}\nv_and_b32 v{45+2*j}, 0xffff0000, v{EB+4+j}")
    for j in range(8): k(f"v_mul_f32 v{44+j}, s28, v{44+j}")
    for j in range(4): k(f"v_cvt_pk_bf16_f32 v{52+j}, v{44+2*j}, v{45+2*j}")
    k(f"""
    ds_write_b128 v69, v[52:55] offset:{T1-XT}
    s_waitcnt vmcnt({nafter})
    ds_write_b128 v69, v[{EB+8}:{EB+11}]
    s_waitcnt lgkmcnt(0)
    s_barrier
    """)
def kparams(k):
    k(f"""
    s_lshl_b32 s29, s66, 4
    s_lshr_b32 s27, s27, s29
    s_lshl_b32 s27, s27, 16
    s_lshr_b32 s28, s28, s26
    s_lshl_b32 s28, s28, 16
    v_mov_b32 v33, {LOG2E}
    v_mul_f32 v34, s27, v33
    v_exp_f32 v34, v34
    v_lshlrev_b32 v8, 16, v8
    v_lshlrev_b32 v9, 16, v9
    v_cvt_pk_bf16_f32 v34, v34, v34
    v_and_b32 v34, 0xffff0000, v34
    v_mul_f32 v8, v8, v33
    v_exp_f32 v8, v8
    v_mul_f32 v9, v9, v34
    v_cvt_pk_bf16_f32 v8, v8, v8
    v_and_b32 v8, 0xffff0000, v8
    v_mul_f32 v8, v8, v34
    v_mul_f32 v9, {INV2PI}, v9
    v_mul_f32 v8, 0xbfb8aa3b, v8
    """)
def common_addr(k):
    k(f"""
    v_mov_b32 v24, 0
    v_mov_b32 v25, 0
    v_mov_b32 v26, 0
    v_mov_b32 v27, 0
    s_mul_i32 s29, s3, {UCC}
    s_add_u32 s29, s29, {UC}
    v_add_u32 v28, s29, v7
    s_mul_i32 s29, s65, {KCC}
    s_add_u32 s29, s29, {KC}
    v_add_u32 v29, s29, v7
    s_mov_b64 exec, 0xffffff
    ds_write_b128 v28, v[24:27]
    s_mov_b64 exec, 0x7f
    ds_write_b128 v29, v[24:27]
    s_mov_b64 exec, -1
    s_mul_i32 s29, s66, {TBL}
    s_mul_i32 s31, s25, {TA}
    s_add_u32 s29, s29, s31
    s_and_b32 s31, s3, 1
    s_lshl_b32 s31, s31, 8
    s_add_u32 s29, s29, s31
    v_lshlrev_b32 v30, 2, v2
    v_add_u32 v30, s29, v30
    s_mul_i32 s29, s25, {UCH}
    s_add_u32 s29, s29, {UC+24*16}
    v_and_b32 v3, 255, v0
    v_lshlrev_b32 v69, 4, v3
    v_add_u32 v68, s29, v69
    s_lshl_b32 s29, s25, 12
    s_add_u32 s29, s29, {XT}
    v_add_u32 v69, s29, v69
    v_lshlrev_b32 v70, 6, v3
    v_subrev_u32 v71, 64, v70
    s_lshl_b32 s23, s2, 14
    s_add_u32 s32, s20, s23
    s_addc_u32 s33, s21, 0
    s_mov_b32 s34, 16384
    s_mov_b32 s35, 0x20000
    s_and_b32 s61, s2, 1
    s_lshl_b32 s61, s61, 3
    s_bfe_u32 s23, s2, 0x30003
    s_add_u32 s61, s61, s23          ; rb
    s_bfe_u32 s62, s2, 0x20001
    s_lshl_b32 s62, s62, 2
    s_lshr_b32 s23, s2, 6
    s_add_u32 s62, s62, s23          ; fs
    s_and_b32 s63, s2, 7
    s_lshl_b32 s63, s63, 2
    s_bfe_u32 s23, s2, 0x20003
    s_add_u32 s63, s63, s23          ; tl
    s_lshr_b32 s64, s2, 5            ; td
    s_mul_i32 s67, s64, 112
    s_mul_i32 s23, s65, 28
    s_mul_i32 s29, s25, {7 if KF else NM}
    s_add_u32 s23, s23, s29
    s_add_u32 s67, s67, s23
    s_lshl_b32 s67, s67, 11
    s_add_u32 s67, s67, {WS_WT}
    s_mul_i32 s68, s63, 224
    s_add_u32 s68, s68, s23
    s_lshl_b32 s68, s68, 10
    s_add_u32 s68, s68, {WS_HG}
    """)
def rot2init(k, N):
    if not ROT2: return
    k(f"s_mul_i32 s41, s64, {N}\ns_lshr_b32 s41, s41, 3\ns_lshl_b32 s40, s41, 11\ns_lshl_b32 s41, s41, 10\ns_add_u32 s42, s67, s40\ns_add_u32 s43, s68, s41")
def hgload(k, b, s, N):
    if ROT2:
        if s: k(f"s_add_u32 s41, s41, 1024\ns_cmp_eq_u32 s41, {N*1024}\ns_cselect_b32 s41, 0, s41\ns_add_u32 s43, s68, s41")
        k(f"buffer_load_dwordx4 v[{b}:{b+3}], v7, s[4:7], s43 offen sc1")
        k(f"buffer_load_dwordx4 v[{b+4}:{b+7}], v6, s[4:7], s43 offen sc1")
        return
    if s and s%4==0: k("s_add_u32 s68, s68, 4096")
    if KF and s==7: k(f"s_add_u32 s68, s68, {14*1024}")
    k(f"buffer_load_dwordx4 v[{b}:{b+3}], v7, s[4:7], s68 offen offset:{1024*(s&3)} sc1")
    k(f"buffer_load_dwordx4 v[{b+4}:{b+7}], v6, s[4:7], s68 offen offset:{1024*(s&3)} sc1")
def wtload(k, base, i):
    if ROT2:
        N=NM if base==MA else NHS
        if i and i%2==0: k(f"s_add_u32 s40, s40, 2048\ns_cmp_eq_u32 s40, {N*2048}\ns_cselect_b32 s40, 0, s40\ns_add_u32 s42, s67, s40")
        k(f"buffer_load_dwordx4 v[{base+4*i}:{base+4*i+3}], v7, s[4:7], s42 offen offset:{1024*(i&1)} sc1")
        return
    if i and i%4==0: k("s_add_u32 s67, s67, 4096")
    if KF and base==MA and i==14: k(f"s_add_u32 s67, s67, {14*2048}")
    if KF and base==HA and i==28: k(f"s_add_u32 s67, s67, {3*2048}")
    k(f"buffer_load_dwordx4 v[{base+4*i}:{base+4*i+3}], v7, s[4:7], s67 offen offset:{1024*(i&3)} sc1")

def gen_m():
    k = K("sequential_preLN__ssm_conv_s4d__glu_gated_glu__prompt_kernel", 256, 512, LDS, 256)
    k("L_begin:\ns_cmp_ge_u32 s2, 256\ns_cbranch_scc1 L_end")
    ts(k,0,False)
    k(f"""
    s_load_dwordx16 s[36:51], s[0:1], 0
    s_load_dwordx8 s[12:19], s[0:1], 64
    s_load_dwordx2 s[20:21], s[0:1], 104
    v_lshrrev_b32 v1, 6, v0
    v_and_b32 v2, 63, v0
    v_lshlrev_b32 v7, 4, v2
    v_readfirstlane_b32 s3, v1
    v_and_b32 v3, 255, v0
    s_lshl_b32 s24, s2, 9
    v_lshl_add_u32 v4, v3, 1, s24
    v_mov_b32 v5, 0
    s_lshl_b32 s22, s2, 2
    s_and_b32 s65, s3, 3
    s_lshr_b32 s25, s3, 2
    s_lshl_b32 s26, s25, 4
    s_bfe_u32 s66, s3, 0x10001
    s_mov_b32 s6, {WS_SIZE:#x}
    s_mov_b32 s7, 0x20000
    s_mov_b32 s23, {WS_TAG:#x}
    s_cmp_ge_u32 s3, 4
    s_cbranch_scc1 L_help
    """)
    gen_main(k)
    gen_help(k)
    k("L_end:\ns_endpgm\nL_stop:")
    return k

def gen_main(k):
    k(f"""
    s_lshl_b32 s29, s2, 13
    s_lshl_b32 s30, s3, 11
    s_add_u32 s29, s29, s30
    s_mov_b32 s10, {2048*512*2:#x}
    s_mov_b32 s11, 0x20000
    s_waitcnt lgkmcnt(0)
    s_mov_b32 s8, s36
    s_mov_b32 s9, s37
    s_mov_b32 s4, s20
    s_mov_b32 s5, s21
    buffer_load_dwordx4 v[12:15], v7, s[8:11], s29 offen
    buffer_load_dwordx4 v[16:19], v7, s[8:11], s29 offen offset:1024
    global_load_ushort v8, v4, s[38:39]
    global_load_ushort v9, v4, s[40:41]
    buffer_load_dword v10, v5, s[4:7], s23 offen sc1
    s_load_dword s27, s[46:47], s22
    s_load_dword s28, s[48:49], s22
    """)
    common_addr(k)
    X=12; F=36; O=52
    k(f"""
    s_lshl_b32 s24, s3, 2
    s_add_u32 s24, s24, {PF}
    v_mov_b32 v1, s24
    ds_write_b32 v1, v24
    v_mov_b32 v1, 0x3b000000
    s_mul_i32 s24, s3, {2*ROWS}
    s_add_u32 s24, s24, {LNB}
    v_lshlrev_b32 v4, 5, v2
    v_add_u32 v4, s24, v4
    v_bfe_u32 v5, v2, 2, 2
    v_mul_u32_u24 v5, {ROWS}, v5
    v_lshrrev_b32 v6, 4, v2
    v_lshl_add_u32 v5, v6, 5, v5
    v_and_b32 v6, 3, v2
    v_lshl_add_u32 v5, v6, 3, v5
    s_lshl_b32 s24, s3, 9
    s_add_u32 s24, s24, {LNB}
    v_add_u32 v5, s24, v5
    v_lshrrev_b32 v11, 2, v2
    v_lshlrev_b32 v11, 14, v11
    v_lshl_add_u32 v11, v6, 4, v11
    s_lshl_b32 s24, s3, 20
    s_lshl_b32 s29, s2, 6
    s_add_u32 s24, s24, s29
    """)
    for i in range(2):
        k(f"s_waitcnt vmcnt({4-i})")
        if i==0: ts(k,1,False)
        for j in range(4):
            k(f"v_lshlrev_b32 v{F+8*i+2*j}, 16, v{X+4*i+j}\nv_and_b32 v{F+1+8*i+2*j}, 0xffff0000, v{X+4*i+j}")
        f=F+8*i; S,Q=20+2*i,21+2*i
        k(f"v_add_f32 v{S}, v{f}, v{f+1}\nv_mul_f32 v{Q}, v{f}, v{f}\nv_fmac_f32 v{Q}, v{f+1}, v{f+1}")
        for j in range(2,8): k(f"v_add_f32 v{S}, v{S}, v{f+j}\nv_fmac_f32 v{Q}, v{f+j}, v{f+j}")
    for dpp in ("row_shr:1","row_shr:2","row_shr:4","row_shr:8"):
        for r in range(20,24): k(f"v_add_f32_dpp v{r}, v{r}, v{r} {dpp} row_mask:0xf bank_mask:0xf bound_ctrl:1")
    for dpp in ("row_bcast:15 row_mask:0xa","row_bcast:31 row_mask:0xc"):
        for r in range(20,24): k(f"v_add_f32_dpp v{r}, v{r}, v{r} {dpp} bank_mask:0xf")
    for r in range(4): k(f"v_readlane_b32 s{52+r}, v{20+r}, 63")
    for i in range(2):
        M,V,T=24+3*i,25+3*i,26+3*i
        k(f"""
        v_mul_f32 v{M}, s{52+2*i}, v1
        v_mul_f32 v{V}, s{53+2*i}, v1
        v_fma_f32 v{V}, -v{M}, v{M}, v{V}
        v_max_f32 v{V}, 0, v{V}
        v_cvt_pk_bf16_f32 v{T}, v{M}, v{V}
        v_lshlrev_b32 v{M}, 16, v{T}
        v_and_b32 v{V}, 0xffff0000, v{T}
        v_add_f32 v{V}, 0x3727c5ac, v{V}
        v_cvt_pk_bf16_f32 v{V}, v{V}, v{V}
        v_and_b32 v{V}, 0xffff0000, v{V}
        v_sqrt_f32 v{V}, v{V}
        v_cvt_pk_bf16_f32 v{V}, v{V}, v{V}
        v_and_b32 v{V}, 0xffff0000, v{V}
        v_rcp_f32 v{V}, v{V}
        """)
    for i in range(2):
        M,V=24+3*i,25+3*i; f=F+8*i; o=O+8*i
        for j in range(8): k(f"v_sub_f32 v{f+j}, v{f+j}, v{M}")
        for j in range(4): k(f"v_cvt_pk_bf16_f32 v{o+2*j}, v{f+2*j}, v{f+2*j+1}")
        for j in range(4): k(f"v_lshlrev_b32 v{f+2*j}, 16, v{o+2*j}\nv_and_b32 v{f+2*j+1}, 0xffff0000, v{o+2*j}")
        for j in range(8): k(f"v_mul_f32 v{f+j}, v{f+j}, v{V}")
        for j in range(4): k(f"v_cvt_pk_bf16_f32 v{o+2*j}, v{f+2*j}, v{f+2*j+1}\nv_mov_b32 v{o+2*j+1}, v{X+4*i+j}")
        k(f"ds_write_b128 v4, v[{o}:{o+3}] offset:{i*ROWS}\nds_write_b128 v4, v[{o+4}:{o+7}] offset:{i*ROWS+16}")
    k("s_waitcnt lgkmcnt(0)\ns_barrier        ; B1")
    for it in range(4):
        k(f"ds_read_b64_tr_b16 v[{12+4*it}:{13+4*it}], v5 offset:{it*128}")
        k(f"ds_read_b64_tr_b16 v[{14+4*it}:{15+4*it}], v5 offset:{it*128+4*ROWS}")
    for it in range(4):
        k(f"s_waitcnt lgkmcnt({6-2*it})")
        k(f"buffer_store_dwordx4 v[{12+4*it}:{15+4*it}], v11, s[4:7], s24 offen sc1")
        if it<3: k(f"s_add_u32 s24, s24, {16*16384}")
    ts(k,2,False)
    k("s_waitcnt vmcnt(4)\nv_readfirstlane_b32 s60, v10")
    kparams(k)
    k("s_mul_i32 s60, s60, 1664525\ns_add_u32 s60, s60, 1013904223")
    W=36; X0=38; X1=40; T=42; C=44
    direct(k, W, 8, 9, 8, T)
    k(f"v_mov_b32 v{C}, 0x00003f80\nds_write_b32 v30, v{C}")
    k(f"v_cvt_pk_bf16_f32 v{C+1}, v{W}, v{W+1}\nds_write_b32 v30, v{C+1} offset:{TROW}")
    cur=W
    for j in range(2,32):
        nxt = X0 if cur!=X0 else X1
        cmul(k, nxt, cur, W, T)
        c=C+(j&3)
        k(f"v_cvt_pk_bf16_f32 v{c}, v{nxt}, v{nxt+1}\nds_write_b32 v30, v{c} offset:{TROW*j}")
        cur=nxt
    k(f"""
    v_and_b32 v4, 31, v2
    v_mul_u32_u24 v4, {TROW}, v4
    v_lshrrev_b32 v5, 5, v2
    v_lshl_add_u32 v4, v5, 4, v4
    s_mul_i32 s29, s66, {TBL}
    v_add_u32 v4, s29, v4
    s_waitcnt vmcnt(0) lgkmcnt(0)
    s_barrier        ; B2
    """)
    ts(k,3)
    NB=6; KR=112
    def rd(s):
        b=KR+8*(s%NB)
        k(f"ds_read_b128 v[{b}:{b+3}], v4 offset:{TA+32*s}\nds_read_b128 v[{b+4}:{b+7}], v4 offset:{TB+32*s}")
    for s in range(NB-1): rd(s)
    k(f"""
    s_mul_i32 s29, s3, {KCC}
    s_add_u32 s29, s29, {KC+7*16}
    v_add_u32 v5, s29, v7
    v_and_b32 v8, 1, v2
    v_mul_u32_u24 v8, {KCC}, v8
    v_bfe_u32 v9, v2, 1, 3
    v_lshrrev_b32 v10, 4, v2
    v_sub_u32 v9, v9, v10
    v_add_u32 v9, 3, v9
    v_lshl_add_u32 v8, v9, 4, v8
    s_mul_i32 s29, s66, {2*KCC}
    s_and_b32 s69, s3, 1                     ; c-half
    s_lshl_b32 s56, s69, 8
    s_add_u32 s29, s29, s56
    s_add_u32 s29, s29, {KC}
    v_add_u32 v8, s29, v8
    v_and_b32 v9, 3, v2
    v_mul_u32_u24 v11, {UCC}, v9
    v_bfe_u32 v12, v2, 2, 2
    v_lshl_add_u32 v13, v12, 3, v10
    v_lshl_add_u32 v11, v13, 4, v11
    s_mul_i32 s29, s66, {UCH}
    s_sub_u32 s29, s29, s56
    s_add_u32 s29, s29, {UC+16*16}
    v_add_u32 v11, s29, v11
    v_lshlrev_b32 v13, 5, v10
    v_lshl_add_u32 v13, v9, 2, v13
    v_lshl_add_u32 v13, v12, 7, v13
    v_and_b32 v14, 1, v2
    v_cmp_eq_u32 s[58:59], 1, v14
    """)
    D=16
    PE=E_("PE",-1)
    def early():
        k(f"s_cmp_lg_u32 s3, 0\ns_cbranch_scc1 L_pe\nv_lshlrev_b32 v3, {SP1}, v2\ns_mov_b32 s30, {WS_F1:#x}")
        for j in range(4):
            k(f"buffer_load_dword v{52+j}, v3, s[4:7], s30 offen sc1")
            if j<3: k(f"s_add_u32 s30, s30, {64<<SP1}")
        k("L_pe:")
    for s in range(17):
        if s==PE: early()
        if s==16: break
        if s+NB-1<16: rd(s+NB-1)
        k(f"s_waitcnt lgkmcnt({2*(min(15,s+NB-1)-s)})")
        b=KR+8*(s%NB)
        k(f"v_mfma_f32_32x32x16_bf16 v[{D}:{D+15}], v[{b}:{b+3}], v[{b+4}:{b+7}], {'0' if s==0 else f'v[{D}:{D+15}]'}")
    e=lambda r: D+r
    O=32
    k(f"v_cndmask_b32 v48, v{e(11)}, v{e(12)}, s[58:59]\nv_cndmask_b32 v49, v{e(13)}, v{e(14)}, s[58:59]")
    k("s_cmp_eq_u32 s69, 0\ns_cbranch_scc1 L2_a0")
    def grp(idx, pairs):
        o=O+4*idx
        for t,(lo,hi) in enumerate(pairs):
            if t>0 and pairs[t-1]==(lo,hi): k(f"v_mov_b32 v{o+t}, v{o+t-1}")
            else: k(f"v_cvt_pk_bf16_f32 v{o+t}, v{lo}, v{hi}")
        k(f"ds_write_b128 v5, v[{o}:{o+3}] offset:{idx*1024}")
    grp(0,[(e(7),e(6)),(e(5),e(4)),(e(3),e(2)),(e(1),e(0))])
    grp(1,[(e(10),e(10)),(e(9),e(9)),(e(9),e(8)),(e(8),e(8))])
    grp(2,[(e(12),e(12)),(e(12),48),(e(11),e(11)),(e(11),e(11))])
    grp(3,[(e(14),e(14)),(e(14),49),(e(13),e(13)),(e(13),e(13))])
    k("s_branch L2_conv\nL2_a0:")
    k("v_mov_b32 v50, 0")
    k(f"v_mov_b32_dpp v50, v{e(7)} wave_shr:1 row_mask:0xf bank_mask:0xf bound_ctrl:1")
    grp(1,[(e(10),e(9)),(e(9),e(9)),(e(8),e(8)),(e(8),e(8))])
    grp(2,[(e(12),e(12)),(48,e(11)),(e(11),e(11)),(e(11),e(11))])
    grp(3,[(e(14),e(14)),(49,e(13)),(e(13),e(13)),(e(13),e(13))])
    grp(0,[(e(6),e(5)),(e(4),e(3)),(e(2),e(1)),(e(0),50)])
    k(f"""
    L2_conv:
    v_lshlrev_b32 v3, {SP1}, v2
    s_mov_b32 s29, {WS_F1:#x}
    s_cmp_lg_u32 s3, 0
    s_cbranch_scc1 L_p1x
    """)
    if PE>=0:
        k("s_waitcnt vmcnt(0)")
        for j in range(4): k(f"v_xor_b32 v{52+j}, s60, v{52+j}")
        k("v_or_b32 v52, v52, v53\nv_or3_b32 v52, v52, v54, v55\nv_cmp_ne_u32 vcc, 0, v52\ns_cbranch_vccz L_p1x")
    poll(k,"L_p1",3,4,29,52,SL1,SP1)
    k("s_waitcnt lgkmcnt(0)\ns_barrier        ; B3")
    ts(k,4)
    if TD: k("s_memtime s[40:41]")
    eloads(k)
    if TD: k("s_waitcnt lgkmcnt(0)")
    AF=[48,112]; BF=[80,144]; ACC=16
    def rdA(buf,g,cl): k(f"ds_read_b128 v[{AF[buf]+4*g}:{AF[buf]+4*g+3}], v8 offset:{512*g+64*cl}")
    def rdB(buf,t,cl): k(f"ds_read_b128 v[{BF[buf]+4*t}:{BF[buf]+4*t+3}], v11 offset:{512*t+(12-4*cl)*16}")
    for g in range(8): rdA(1,g,0)
    uprep(k, 0)
    ts(k,5)
    k("s_setprio 1")
    for t in range(8): rdB(1,t,0)
    first=[True]*8
    for cl in range(4):
        buf=(cl&1)^1
        pend=[]
        if cl<3:
            for g in range(8): pend += [("A",g),("B",g)]
        seq=[(t,g) for t in range(8) for g in range(t+1)]
        issued=0
        for idx,(t,g) in enumerate(seq):
            if g==0:
                if cl==0: k(f"s_waitcnt lgkmcnt({min(15,7-t+issued)})")
                else: k(f"s_waitcnt lgkmcnt({min(15,14-2*t+issued)})")
            a=AF[buf]+4*g; b=BF[buf]+4*(t-g); c=ACC+4*t
            k(f"v_mfma_f32_16x16x32_bf16 v[{c}:{c+3}], v[{a}:{a+3}], v[{b}:{b+3}], {'0' if first[t] else f'v[{c}:{c+3}]'}")
            first[t]=False
            start = 4
            if pend and idx>=start and (idx%2==0 or len(seq)-idx<=len(pend)+2):
                kind,j=pend.pop(0)
                (rdA if kind=="A" else rdB)(buf^1,j,cl+1); issued+=1
        assert not pend
    k(f"""
    s_lshl_b32 s29, s3, 12
    s_add_u32 s29, s29, {RED}
    v_add_u32 v4, s29, v7
    s_xor_b32 s29, s3, 1
    s_lshl_b32 s29, s29, 12
    s_add_u32 s29, s29, {RED}
    v_add_u32 v5, s29, v7
    s_lshl_b32 s29, s3, 11
    s_lshl_b32 s57, s2, 13
    s_add_u32 s57, s57, s29
    s_add_u32 s57, s57, {WS_HT}
    s_add_u32 s29, s29, {XT}
    v_add_u32 v6, s29, v13
    v_add_u32 v9, s29, v7
    """)
    XR=112
    for t in range(4):
        k(f"ds_read_b32 v{XR+4*t}, v6 offset:{512*t}\nds_read_b32 v{XR+1+4*t}, v6 offset:{512*t+16}")
        k(f"ds_read_b32 v{XR+2+4*t}, v6 offset:{512*t+T1-XT}\nds_read_b32 v{XR+3+4*t}, v6 offset:{512*t+16+T1-XT}")
    k("s_cmp_eq_u32 s69, 0\ns_cbranch_scc1 L2_r0")
    for t in range(4): k(f"ds_write_b128 v4, v[{ACC+4*t}:{ACC+4*t+3}] offset:{1024*t}")
    k("s_waitcnt lgkmcnt(0)")
    for j in range(16): k(f"v_mov_b32 v{ACC+j}, v{ACC+16+j}")
    k("s_branch L2_r1\nL2_r0:")
    for t in range(4): k(f"ds_write_b128 v4, v[{ACC+16+4*t}:{ACC+16+4*t+3}] offset:{1024*t}")
    k(f"""
    L2_r1:
    s_lshl_b32 s29, s3, 2
    s_add_u32 s29, s29, {PF}
    v_mov_b32 v8, s29
    v_xor_b32 v10, 4, v8
    ds_write_b32 v8, v8
    s_mov_b32 s31, 0
    L_b5:
    ds_read_b32 v11, v10
    s_add_u32 s31, s31, 1
    s_waitcnt lgkmcnt(0)
    v_cmp_eq_u32 vcc, 0, v11
    s_cmp_gt_u32 s31, 100000
    s_cbranch_scc1 L_b5x
    s_cbranch_vccnz L_b5
    L_b5x:
    """)
    for t in range(4): k(f"ds_read_b128 v[{48+4*t}:{51+4*t}], v5 offset:{1024*t}")
    for t in range(4):
        for hh in range(2):
            i=2*t+hh
            k(f"v_lshlrev_b32 v{64+2*i}, 16, v{XR+4*t+hh}\nv_and_b32 v{65+2*i}, 0xffff0000, v{XR+4*t+hh}")
            k(f"v_lshlrev_b32 v{80+2*i}, 16, v{XR+2+4*t+hh}\nv_and_b32 v{81+2*i}, 0xffff0000, v{XR+2+4*t+hh}")
    for t in range(4):
        k(f"s_waitcnt lgkmcnt({3-t+2*t})")
        a=ACC+4*t
        for r in range(4): k(f"v_add_f32 v{a+r}, v{a+r}, v{48+4*t+r}")
        def rnd(): k(f"v_cvt_pk_bf16_f32 v{a}, v{a}, v{a+1}\nv_cvt_pk_bf16_f32 v{a+2}, v{a+2}, v{a+3}")
        def unp():
            k(f"v_and_b32 v{a+1}, 0xffff0000, v{a}\nv_and_b32 v{a+3}, 0xffff0000, v{a+2}")
            k(f"v_lshlrev_b32 v{a}, 16, v{a}\nv_lshlrev_b32 v{a+2}, 16, v{a+2}")
        rnd(); unp()
        for r in range(4): k(f"v_add_f32 v{a+r}, v{a+r}, v{80+4*t+r}")
        rnd(); unp()
        for r in range(4): k(f"v_add_f32 v{a+r}, v{a+r}, v{64+4*t+r}")
        rnd()
        k(f"ds_write_b32 v6, v{a} offset:{512*t}\nds_write_b32 v6, v{a+2} offset:{512*t+16}")
    k(f"""
    s_waitcnt lgkmcnt(0)
    ds_read_b128 v[48:51], v9
    ds_read_b128 v[52:55], v9 offset:1024
    s_waitcnt lgkmcnt(1)
    buffer_store_dwordx4 v[48:51], v7, s[4:7], s57 offen sc1
    s_waitcnt lgkmcnt(0)
    buffer_store_dwordx4 v[52:55], v7, s[4:7], s57 offen offset:1024 sc1
    """)
    ts(k,6,False)
    rot2init(k, NM)
    MSL=E_("MSL",0)
    NA=4; AW=48; BW=[16,32]; ACC=64
    k(f"""
    v_lshrrev_b32 v3, 4, v2                  ; q
    v_bfe_u32 v4, v2, 2, 2                   ; r
    v_lshl_add_u32 v5, v3, 2, v4             ; row 4q+r
    v_and_b32 v6, 3, v2                      ; c
    v_mul_u32_u24 v8, 224, v5
    v_and_b32 v10, 1, v6
    v_lshl_add_u32 v10, v10, 3, v8
    v_lshrrev_b32 v11, 1, v6
    v_mul_u32_u24 v11, {UOFF}, v11
    s_lshl_b32 s29, s66, 4
    s_add_u32 s29, s29, {WB+96}
    v_add3_u32 v10, v10, v11, s29            ; A mixed
    v_add_u32 v11, {4*WSL}, v10
    v_lshl_add_u32 v8, v6, 3, v8
    s_lshl_b32 s29, s66, 7
    s_add_u32 s29, s29, {WB}
    v_add_u32 v8, s29, v8                    ; A normal
    v_add_u32 v9, {4*WSL}, v8
    v_lshlrev_b32 v1, 8, v5
    v_lshl_add_u32 v1, v6, 3, v1
    v_add_u32 v1, {HB}, v1
    v_and_b32 v5, 7, v5
    s_lshl_b32 s29, s69, 2
    v_xor_b32 v5, s29, v5
    """)
    for lb in range(4):
        k(f"v_xor_b32 v6, {lb}, v5\nv_lshl_add_u32 v{12+lb}, v6, 5, v1")
    k(f"""
    v_and_b32 v1, 15, v2                     ; m
    v_lshlrev_b32 v6, 4, v1
    s_lshl_b32 s29, s66, 11
    s_add_u32 s29, s29, {AP}
    v_add_u32 v4, s29, v6
    v_lshrrev_b32 v5, 3, v1
    v_lshl_add_u32 v5, v5, 7, v6
    s_lshl_b32 s29, s66, 7
    s_add_u32 s29, s29, {AP+96*16}
    v_add_u32 v5, s29, v5
    s_lshl_b32 s29, s69, 10
    s_add_u32 s29, s29, {FS}
    v_add_u32 v6, s29, v6
    v_add_u32 v1, s29, v7
    v_cmp_eq_u32 s[56:57], 0, v3
    s_lshl_b32 s70, s61, 1
    s_add_u32 s70, s70, s69
    s_mul_i32 s70, s70, 224
    s_mul_i32 s29, s62, 7
    s_add_u32 s70, s70, s29
    s_add_u32 s71, s70, 3
    s_lshl_b32 s29, s66, 2
    s_add_u32 s70, s70, s29
    s_lshl_b32 s70, s70, 10
    s_add_u32 s70, s70, {WS_HG}
    s_lshl_b32 s71, s71, 10
    s_lshl_b32 s29, s66, 9
    s_add_u32 s71, s71, s29
    s_add_u32 s71, s71, {WS_HG}
    v_lshlrev_b32 v3, {SP2}, v2
    s_lshl_b32 s29, s2, {SP2}
    s_add_u32 s29, s29, {WS_F2}
    {TSI+' s[82:83]' if STAMP and E_('B6S',0) else ''}
    s_waitcnt vmcnt(0)
    {TSI+' s[84:85]' if STAMP and E_('B6S',0) else ''}
    s_barrier        ; B6
    {TSI+' s[86:87]' if STAMP and E_('B6S',0) else ''}
    s_cmp_lg_u32 s3, 0
    s_cbranch_scc1 L_f2x
    """)
    flag(k,29,48)
    k("L_f2x:")
    if MSL: k(f"s_sleep {MSL}")
    NMA=E_("NMA",10); POLM=E_("POLM",1); TM0=E_("TM0",90); TMS=E_("TMS",2)
    for i in range(NMA): wtload(k, MA, i)
    if POLM:
        k(f"s_cmp_lg_u32 s3, 1\ns_cbranch_scc1 L_p2x\ns_mov_b32 s29, {WS_F2:#x}")
        if TD:
            k(f"""s_memtime s[42:43]
            s_waitcnt lgkmcnt(0)
            s_sub_u32 s41, s42, s40
            s_add_u32 s41, s41, {E_("CAP",2300)}
            s_min_u32 s41, s41, {TD}
            s_sleep {E_("SL2M",14)}
            L_w2:
            s_memtime s[42:43]
            s_waitcnt lgkmcnt(0)
            s_sub_u32 s42, s42, s40
            s_cmp_ge_u32 s42, s41
            s_cbranch_scc1 L_w2x
            s_sleep 1
            s_branch L_w2
            L_w2x:""")
        poll(k,"L_p2",3,4,29,48,0 if TD else SL2,SP2)
    mt=[NMA]
    k("s_barrier        ; B7")
    ts(k,7)
    q=[]
    ZS=32; ZM=40
    FBB=E_("FBB",2)
    def rdA1(t,h=None):
        b=AW+4*(t%NA)
        if t>=119: return
        if h is None: rdA1(t,0); rdA1(t,1); return
        j=t//7; fb=t%7
        if j==16:
            if h: return
            if fb<6: k(f"ds_read_b128 v[{b}:{b+3}], v4 offset:{(fb>>1)*512+(fb&1)*256}")
            else: k(f"ds_read_b128 v[{b}:{b+3}], v5")
            q.append(("A",t)); return
        sl=j%NW
        va = (8 if fb<6 else 10) + (0 if sl<4 else 1)
        off=(sl%4)*WSL + ((fb&1)*UOFF + (fb>>1)*32 if fb<6 else 0)
        k(f"ds_read_b64_tr_b16 v[{b+2*h}:{b+2*h+1}], v{va} offset:{off+h*16*224}")
        q.append(("A",t))
    def rdB1(s,lb,h=None):
        b=BW[s&1]+4*lb
        if h is None: rdB1(s,lb,0); rdB1(s,lb,1); return
        if s==16:
            if h: return
            k(f"ds_read_b64 v[{b}:{b+1}], v6 offset:{lb*256}\nv_mov_b32 v{b+2}, 0\nv_mov_b32 v{b+3}, 0"); q.append(("B",s,lb)); return
        off=(s%NH)*HS
        k(f"ds_read_b64_tr_b16 v[{b+2*h}:{b+2*h+1}], v{12+lb} offset:{off+h*4096}")
        q.append(("B",s,lb))
    k("s_barrier        ; G0")
    if STAMP: k("s_memtime s[72:73]")
    ts(k,8)
    rdB1(0,0); rdA1(0)
    for lb in range(1,4): rdB1(0,lb)
    for t in range(1,NA): rdA1(t)
    waited=[-1]
    def need(tag):
        n=max(idx for idx,x in enumerate(q) if x==tag)
        if n>waited[0]:
            k(f"s_waitcnt lgkmcnt({len(q)-1-n})"); waited[0]=n
    for t in range(119):
        s=t//7; fb=t%7
        a=AW+4*(t%NA)
        for lb in range(4):
            if lb==0: need(("A",t))
            if fb==0:
                need(("B",s,lb))
                if s==16:
                    b=BW[0]+4*lb
                    k(f"v_cndmask_b32 v{b}, 0, v{b}, s[56:57]\nv_cndmask_b32 v{b+1}, 0, v{b+1}, s[56:57]")
            c=ACC+16*fb+4*lb; b=BW[s&1]+4*lb
            k(f"v_mfma_f32_16x16x32_bf16 v[{c}:{c+3}], v[{a}:{a+3}], v[{b}:{b+3}], {'0' if s==0 else f'v[{c}:{c+3}]'}")
            if s<16:
                if fb==FBB and lb==1 and s<15: k("s_barrier")
                if FBB<=fb<FBB+4 and lb in (1,2): rdB1(s+1,fb-FBB,lb-1)
            if s==16 and fb==1:
                k(f"ds_read_b64 v[{ZS+2*lb}:{ZS+2*lb+1}], v6 offset:{lb*256+8}"); q.append(("Z",0))
                if lb==3: k(f"ds_read_b64 v[{ZM}:{ZM+1}], v1 offset:8"); q.append(("Z",0))
            if lb==2 and t>=TM0 and (t-TM0)%TMS==0 and mt[0]<2*NM:
                wtload(k, MA, mt[0]); mt[0]+=1
            if lb==3: rdA1(t+NA,0)
            if lb==0 and t>0: rdA1(t-1+NA,1)
    while mt[0]<2*NM:
        wtload(k, MA, mt[0]); mt[0]+=1
    ts(k,10,False)
    if STAMP: k("s_memtime s[74:75]")
    k(f"""
    v_add_u32 v6, {112*1024}, v7
    v_and_b32 v4, 31, v2
    v_lshlrev_b32 v4, 4, v4
    v_lshrrev_b32 v5, 5, v2
    v_mul_u32_u24 v5, {112*1024}, v5
    v_add_u32 v4, v4, v5
    s_waitcnt lgkmcnt(0)
    """)
    def glu(gs, us, zs, outs):
        for g,z in zip(gs,zs): k(f"v_pk_mul_f32 v[{g}:{g+1}], v[{g}:{g+1}], v[{z}:{z+1}] op_sel_hi:[1,0]")
        for g in gs: k(f"v_exp_f32 v{g}, v{g}\nv_exp_f32 v{g+1}, v{g+1}")
        for g,z in zip(gs,zs): k(f"v_pk_fma_f32 v[{g}:{g+1}], v[{g}:{g+1}], v[{z}:{z+1}], v[{z}:{z+1}] op_sel:[0,1,1] op_sel_hi:[1,1,1]")
        for g in gs: k(f"v_rcp_f32 v{g}, v{g}\nv_rcp_f32 v{g+1}, v{g+1}")
        for g,u in zip(gs,us): k(f"v_pk_mul_f32 v[{g}:{g+1}], v[{g}:{g+1}], v[{u}:{u+1}]")
        for g,o in zip(gs,outs): k(f"v_cvt_pk_bf16_f32 v{o}, v{g}, v{g+1}")
    n=0
    for i in range(3):
        for L in range(2):
            cg=ACC+32*i+8*L; cu=cg+16; o=AW+4*(n&3); n+=1
            glu([cg,cg+2,cg+4,cg+6],[cu,cu+2,cu+4,cu+6],[ZS+4*L,ZS+4*L,ZS+4*L+2,ZS+4*L+2],[o,o+1,o+2,o+3])
            k(f"v_permlane16_swap_b32 v{o}, v{o+2}\nv_permlane16_swap_b32 v{o+1}, v{o+3}")
            k(f"buffer_store_dwordx4 v[{o}:{o+3}], v{7-L}, s[4:7], s70 offen offset:{1024*i} sc1")
        if i==0:
            c=ACC+96
            for r in range(4): k(f"v_permlane32_swap_b32 v{c+r}, v{c+8+r}\nv_permlane32_swap_b32 v{c+4+r}, v{c+12+r}")
            for r in range(4): k(f"v_permlane16_swap_b32 v{c+r}, v{c+4+r}\nv_permlane16_swap_b32 v{c+8+r}, v{c+12+r}")
    c=ACC+96; o=AW+4*(n&3)
    glu([c,c+2,c+4,c+6],[c+8,c+10,c+12,c+14],[ZM]*4,[o,o+1,o+2,o+3])
    k(f"buffer_store_dwordx4 v[{o}:{o+3}], v4, s[4:7], s71 offen sc1")
    k(f"""
    s_setprio 0
    s_lshl_b32 s29, s61, 4
    s_add_u32 s29, s29, s62
    s_lshl_b32 s29, s29, {FSH}
    s_add_u32 s29, s29, {WS_F3}
    s_lshl_b32 s23, s3, 14
    v_add_u32 v5, s23, v7
    v_and_b32 v3, 15, v2
    v_lshlrev_b32 v3, 6, v3
    """)
    if FW:
        k(f"s_lshl_b32 s23, s69, 1\ns_add_u32 s23, s23, s66\ns_lshl_b32 s23, s23, {FW}\ns_add_u32 s29, s29, s23\nv_mov_b32 v48, s60\nv_mov_b32 v49, 0\ns_mov_b64 exec, 1\ns_waitcnt vmcnt(0)")
        k("buffer_store_dword v48, v49, s[4:7], s29 offen sc1\ns_mov_b64 exec, -1\ns_barrier        ; B8")
    else:
        k(f"""
        s_waitcnt vmcnt(0)
        s_barrier        ; B8
        s_cmp_lg_u32 s3, 0
        s_cbranch_scc1 {'L_nf3' if PW else 'L_p3x'}
        """)
        flag(k,29,48)
    if PW:
        k("L_nf3:")
        f3addr(k,3)
        pollw(k,"L_p3",3,48,29,1 if PW==1 else (9 if KF else 3),SL3,False)
    else:
        k(f"s_lshr_b32 s29, s63, 1\ns_lshl_b32 s29, s29, 10\ns_add_u32 s29, s29, {WS_F3}")
        poll(k,"L_p3",3,1,29,48,SL3)
        k("s_barrier        ; B9")
    ts(k,9,False)
    A2=48
    slots=[8+8*i for i in range(5)]+[112+8*i for i in range(5)]
    MI=E_("MI",10); MR=E_("MR",1); mi=[0]
    def mld(n):
        for _ in range(n):
            s=mi[0]
            if s>=NM: return
            if PW==1 and s==7: pollw(k,"L_p3b",3,48,29,2,0,True)
            hgload(k, slots[s], s, NM); mi[0]+=1
    mld(MI)
    for s in range(NM):
        for lb in range(2):
            k(f"s_waitcnt vmcnt({2*(mi[0]-1-s)+1-lb})")
            for db in range(2):
                c=A2+16*(db+2*lb); a=MA+8*s+4*db; b=slots[s]+4*lb
                k(f"v_mfma_f32_32x32x16_bf16 v[{c}:{c+15}], v[{a}:{a+3}], v[{b}:{b+3}], {'0' if s==0 else f'v[{c}:{c+15}]'}")
        mld(MR)
    if E_("G2S",0): ts(k,1,False)
    for j in range(16):
        k(f"ds_write_b128 v5, v[{A2+4*j}:{A2+4*j+3}] offset:{G2M+j*1024}")
    if TL and JM:
        k("s_lshl_b32 s23, s65, 12\nv_add_u32 v3, s23, v7\nv_add_u32 v4, s23, v5\ns_waitcnt lgkmcnt(0)\ns_barrier        ; B9b")
        for p_ in range(4):
            for j in range(4):
                if p_==3 and j==3: k("s_waitcnt lgkmcnt(14)")
                k(f"ds_read_b128 v[{A2+16*p_+4*j}:{A2+16*p_+4*j+3}], v3 offset:{G2M+p_*16384+j*1024}")
        for p_ in range(1,4):
            k(f"s_waitcnt lgkmcnt({4*(3-p_)})")
            for j in range(8): k(f"v_pk_add_f32 v[{A2+2*j}:{A2+2*j+1}], v[{A2+2*j}:{A2+2*j+1}], v[{A2+16*p_+2*j}:{A2+16*p_+2*j+1}]")
        for j in range(4): k(f"ds_write_b128 v4, v[{A2+4*j}:{A2+4*j+3}] offset:{G2M+j*1024}")
    k(f"""
    s_waitcnt lgkmcnt(0)
    {'s_barrier        ; B9b' if JB else ''}
    s_barrier        ; B10
    s_or_b32 s23, s2, s3
    s_cmp_lg_u32 s23, 0
    s_cbranch_scc1 L_mend
    s_mov_b32 s29, {WS_TAG:#x}
    """)
    flag(k,29,48)
    k("L_mend:")
    flush(k,[1,2,3,4,5,6,7,8,10,9],0,0)
    k("s_endpgm")

def gen_help(k):
    VH=100; VW=102
    CS=72; WJ=88
    k(f"""
    L_help:
    v_lshrrev_b32 v12, 3, v2
    v_and_b32 v13, 7, v2
    v_lshlrev_b32 v14, 4, v13
    v_lshl_add_u32 v14, v12, 10, v14
    v_add_u32 v15, {8192-1024}, v14
    s_lshr_b32 s29, s2, 1                    ; kf
    s_and_b32 s30, s2, 1
    s_lshl_b32 s30, s30, 2
    s_add_u32 s30, s30, s65
    s_lshl_b32 s31, s29, 14
    s_lshl_b32 s52, s30, 7
    s_add_u32 s31, s31, s52
    s_lshl_b32 s52, s65, 11
    s_add_u32 s52, s52, {WDS}
    s_mov_b32 m0, s52
    s_mul_i32 s53, s30, 112
    s_add_u32 s53, s53, s29
    s_lshl_b32 s53, s53, 11
    s_add_u32 s53, s53, {WS_WT}
    s_mov_b32 s10, {1792*512*2:#x}
    s_mov_b32 s11, 0x20000
    s_waitcnt lgkmcnt(0)
    s_mov_b32 s8, s16
    s_mov_b32 s9, s17
    s_mov_b32 s4, s20
    s_mov_b32 s5, s21
    s_cmp_ge_u32 s2, 224
    s_cbranch_scc1 L_h0
    buffer_load_dwordx4 v14, s[8:11], s31 offen lds
    buffer_load_dwordx4 v15, s[8:11], s31 offen offset:1024 lds
    L_h0:
    global_load_ushort v8, v4, s[38:39]
    global_load_ushort v9, v4, s[40:41]
    global_load_ushort v10, v4, s[42:43]
    global_load_ushort v11, v4, s[44:45]
    buffer_load_dword v16, v5, s[4:7], s23 offen sc1
    s_load_dword s27, s[46:47], s22
    s_load_dword s28, s[48:49], s22
    s_getpc_b64 s[54:55]
    L_pc:
    s_add_u32 s54, s54, L_begin-L_pc
    s_addc_u32 s55, s55, -1
    s_lshr_b32 s29, s2, 3
    s_lshl_b32 s29, s29, 2
    s_add_u32 s29, s29, s65
    s_lshl_b32 s29, s29, 9
    v_and_b32 v17, 7, v2
    v_lshl_add_u32 v17, v17, 6, s29
    v_min_u32 v17, L_stop-L_begin-4, v17
    global_load_dword v17, v17, s[54:55]
    """)
    common_addr(k)
    k(f"""
    v_lshrrev_b32 v18, 5, v2
    v_bfe_u32 v19, v2, 2, 2
    v_lshl_add_u32 v18, v18, 3, v19
    v_lshlrev_b32 v18, 7, v18
    v_and_b32 v19, 1, v2
    v_lshl_add_u32 v18, v19, 5, v18
    v_bfe_u32 v19, v2, 4, 1
    v_lshl_add_u32 v18, v19, 4, v18
    v_bfe_u32 v19, v2, 1, 1
    v_lshl_add_u32 v18, v19, 3, v18
    v_add_u32 v18, s52, v18
    s_barrier        ; B1
    s_cmp_ge_u32 s2, 224
    s_cbranch_scc1 L_h1
    s_waitcnt vmcnt(6)
    """)
    for db in range(2):
        k(f"ds_read_b64_tr_b16 v[{WJ+4*db}:{WJ+4*db+1}], v18 offset:{64*db}\nds_read_b64_tr_b16 v[{WJ+4*db+2}:{WJ+4*db+3}], v18 offset:{64*db+512}")
    k(f"""
    s_waitcnt lgkmcnt(0)
    buffer_store_dwordx4 v[{WJ}:{WJ+3}], v7, s[4:7], s53 offen sc1
    buffer_store_dwordx4 v[{WJ+4}:{WJ+7}], v7, s[4:7], s53 offen offset:1024 sc1
    s_waitcnt vmcnt(3)
    s_branch L_h2
    L_h1:
    s_waitcnt vmcnt(1) lgkmcnt(0)
    L_h2:
    v_readfirstlane_b32 s60, v16
    """)
    ts(k,1,False)
    kparams(k)
    k("s_mul_i32 s60, s60, 1664525\ns_add_u32 s60, s60, 1013904223")
    Z1=36; Z8=38; V=40; Z2=42; Z4=44; T=46; E=48; X0=50; X1=52; CC=54; C=56
    k("v_sub_f32 v9, 0, v9")
    direct(k, Z1, 8, 9, 1, T)
    direct(k, Z8, 8, 9, 8, T)
    direct(k, V, 8, 9, 256, T)
    k(f"""
    v_add_f32 v34, v34, v34
    v_lshlrev_b32 v10, 16, v10
    v_lshlrev_b32 v11, 16, v11
    v_mul_f32 v{CC}, v10, v34
    v_mul_f32 v{CC+1}, -v11, v34
    """)
    cnt=[0]
    def put(src, rows):
        c=C+(cnt[0]&3); cnt[0]+=1
        k(f"v_cvt_pk_bf16_f32 v{c}, v{src}, v{src+1}")
        for (r,h) in rows: k(f"ds_write_b32 v30, v{c} offset:{TROW*rho(r,h)}")
    put(CC,[(0,0)])
    cmul(k,Z2,Z1,Z1,T)
    cur=CC
    for r in range(1,8):
        nxt = X0 if cur!=X0 else X1
        cmul(k,nxt,cur,Z1,T); put(nxt,[(r,0)]); cur=nxt
    cmul(k,Z4,Z2,Z2,T)
    cmul(k,E,CC,V,T); put(E,[(0,1),(1,1)])
    cur=E
    for rows in ([(2,1)],[(3,1),(4,1),(5,1)],[(6,1)],[(7,1)]):
        nxt = X0 if cur!=X0 else X1
        cmul(k,nxt,cur,Z2,T); put(nxt,rows); cur=nxt
    ecur=E
    for h in (0,1):
        en = CC if ecur==E else E
        cmul(k,en,ecur,V,T); put(en,[(8,h)]); ecur=en
        cmul(k,X0,ecur,Z4,T); put(X0,[(9,h)])
        cmul(k,X1,X0,Z4,T); put(X1,[(10,h)])
    for (r,h) in ((11,0),(11,1),(13,0),(13,1)):
        en = CC if ecur==E else E
        cmul(k,en,ecur,V,T); put(en,[(r,h)]); ecur=en
        cmul(k,X0,ecur,Z8,T); put(X0,[(r+1,h)])
    k(f"""
    s_lshr_b32 s52, s2, 3
    s_min_u32 s53, s52, 27
    s_and_b32 s29, s2, 1
    s_mul_i32 s29, s29, 28
    s_add_u32 s29, s29, s53                  ; t
    s_mul_i32 s30, s29, 4682
    s_lshr_b32 s30, s30, 16                  ; kchunk
    s_mul_i32 s31, s30, 14
    s_sub_u32 s29, s29, s31
    s_cmp_ge_u32 s29, 7
    s_cselect_b32 s8, s14, s12
    s_cselect_b32 s9, s15, s13
    s_cselect_b32 s31, 7, 0
    s_cselect_b32 s53, {1792*4}, 0
    s_sub_u32 s29, s29, s31
    s_bfe_u32 s31, s2, 0x20001
    s_mul_i32 s31, s31, 7
    s_add_u32 s29, s29, s31                  ; cb
    s_lshl_b32 s30, s30, 2
    s_add_u32 s30, s30, s65
    s_mul_i32 s31, s30, {32*3584}
    s_lshl_b32 s54, s29, 7
    s_add_u32 s31, s31, s54                  ; W soffset
    s_mul_i32 s30, s30, {3584*4}
    s_lshl_b32 s29, s29, 8
    s_add_u32 s30, s30, s29
    s_add_u32 s53, s53, s30
    s_add_u32 s53, s53, {WS_CS}
    v_mul_u32_u24 v12, 3584, v12
    v_lshl_add_u32 v12, v13, 4, v12
    v_lshrrev_b32 v14, 4, v2
    v_lshlrev_b32 v14, 3, v14
    v_lshl_add_u32 v13, v13, 5, v14
    s_lshl_b32 s29, s2, {SP1}
    s_add_u32 s29, s29, {WS_F1}
    s_waitcnt vmcnt(0) lgkmcnt(0)
    s_barrier        ; B2
    s_cmp_lg_u32 s3, 4
    s_cbranch_scc1 L_h3
    """)
    flag(k,29,20)
    k("L_h3:")
    ts(k,2,False)
    for i in range(4):
        k(f"buffer_load_dwordx4 v[{CS+4*i}:{CS+4*i+3}], v12, s[8:11], s31 offen")
        if i<3: k(f"s_add_u32 s31, s31, {8*3584}")
    WARM=E_("WARM",2)
    def warm():
        if WARM&2: k("s_bitcmp1_b32 s2, 0\ns_cbranch_scc1 L_nw")
        k(f"s_mov_b32 s29, {8*114688-24*3584:#x}\ns_bitcmp1_b32 s2, 0\ns_cselect_b32 s29, {(-8*114688-24*3584)&0xffffffff:#x}, s29\ns_add_u32 s75, s75, s29")
        for i in range(4):
            k(f"buffer_load_dwordx4 v[{88}:{91}], v12, s[8:11], s75 offen")
            if i<3: k(f"s_add_u32 s75, s75, {8*3584}")
        if WARM&2: k("L_nw:")
    k("s_mov_b32 s75, s31")
    if WARM and not WARM&4: warm()
    rot2init(k, NHS)
    k(f"""
    v_lshrrev_b32 v3, 4, v2
    v_and_b32 v4, 15, v2
    v_lshlrev_b32 v5, 1, v3
    v_xor_b32 v4, v4, v5
    v_lshlrev_b32 v4, 4, v4
    v_lshl_add_u32 v4, v3, 12, v4
    s_lshl_b32 s29, s65, 15
    v_add_u32 v{VH}, s29, v4
    v_xor_b32 v4, 128, v{VH}
    v_add_u32 v{VH+1}, {16384-1024}, v4
    s_lshl_b32 s70, s61, 8
    s_add_u32 s70, s70, {WS_HT}              ; H soffset
    s_mul_i32 s71, s62, 224
    s_mul_i32 s29, s66, 114688
    s_add_u32 s71, s71, s29
    s_lshl_b32 s72, s65, 11
    s_add_u32 s72, s72, {HB}                 ; H lds
    s_and_b32 s29, s65, 1
    s_mul_i32 s73, s29, {UOFF}
    s_mul_i32 s30, s66, {WSL}
    s_add_u32 s73, s73, s30
    s_add_u32 s73, s73, {WB}                 ; W lds
    s_cmp_eq_u32 s29, 0
    s_cselect_b32 s36, s12, s14
    s_cselect_b32 s37, s13, s15
    s_mov_b32 s38, {512*1792*2:#x}
    s_mov_b32 s39, 0x20000
    """)
    for i in range(7):
        k(f"""
        v_add_u32 v6, {64*i}, v2
        v_mul_u32_u24 v5, 4682, v6
        v_lshrrev_b32 v5, 16, v5
        v_mul_u32_u24 v4, 14, v5
        v_sub_u32 v6, v6, v4
        v_mul_u32_u24 v5, 3584, v5
        v_lshl_add_u32 v{VW+i}, v6, 4, v5
        """)
        if i&3: k(f"v_subrev_u32 v{VW+i}, {1024*(i&3)}, v{VW+i}")
    q=[]
    if ROT1:
        k("s_lshr_b32 s59, s2, 6\ns_lshl_b32 s59, s59, 1\ns_bfe_u32 s29, s2, 0x30003\ns_add_u32 s59, s59, s29\ns_and_b32 s59, s59, 7\ns_lshl_b32 s59, s59, 1")
        assert not WARM&4
        k("s_lshl_b32 s75, s59, 17")
    def wso(j):
        if ROT1: k(f"s_add_u32 s31, s59, {j}\ns_and_b32 s31, s31, 15\ns_mul_i32 s31, s31, 114688\ns_add_u32 s31, s31, s71")
        else: k(f"s_add_u32 s31, s71, {j*114688}")
    def issueH(j):
        if j>15 or (E_('NOH',0) and j>=NH): return
        k(f"s_add_u32 m0, s72, {(j%NH)*HS}")
        if ROT1: k(f"s_add_u32 s31, s75, {j*131072}\ns_and_b32 s31, s31, 0x1fffff\ns_add_u32 s31, s31, s70")
        else: k(f"s_add_u32 s31, s70, {j*131072}")
        k(f"buffer_load_dwordx4 v{VH}, s[4:7], s31 offen sc1 lds\nbuffer_load_dwordx4 v{VH+1}, s[4:7], s31 offen offset:1024 sc1 lds")
        q.extend([("H",j)]*2)
    def issueW(j):
        if j>15: return
        k(f"s_add_u32 m0, s73, {(j%NW)*WSL}"); wso(j)
        for i in range(7):
            if i==4: k(f"s_add_u32 m0, s73, {(j%NW)*WSL+4096}")
            k(f"buffer_load_dwordx4 v{VW+i}, s[36:39], s31 offen offset:{1024*(i&3)} lds")
        q.extend([("W",j)]*7)
    def issueW1(b,par):
        if b>15 or (E_('NOW',0) and b>6): return
        o=(b%NW-par)*WSL
        k(f"s_add_u32 m0, s73, {o&0xffffffff:#x}"); wso(b-par)
        for i in range(7):
            if i==4: k(f"s_add_u32 m0, s73, {(o+4096)&0xffffffff:#x}")
            k(f"buffer_load_dwordx4 v{VW+i}, s[36:39], s31 offen offset:{1024*(i&3)} lds")
        q.extend([("V",b)]*7)
    RW=E_("RW",0); NA2=E_("NA2",0); NB6=E_("NB6",4); TR=float(os.environ.get("TR","3.5")); TJ=E_("TJ",3)
    rw=[0]
    def regW(upto):
        while rw[0]<upto:
            n=rw[0]; rw[0]+=1
            if n==4: k("s_cmp_eq_u32 s66, 0\ns_cbranch_scc1 L_rw4")
            for i in range(7):
                k(f"buffer_load_dwordx4 v[{HA+28*n+4*i}:{HA+28*n+4*i+3}], v{VW+i}, s[36:39], s59 offen offset:{1024*(i&3)}")
            if n<4:
                k(f"s_add_u32 s59, s59, {2*114688}"); q.extend([("R",n)]*7)
            else: k("L_rw4:")
    def putW(b,par):
        n=(b-7)>>1
        k(f"v_add_u32 v109, {((b%NW-par)*WSL)&0xffffffff:#x}, v99")
        for i in range(7): k(f"ds_write_b128 v109, v[{HA+28*n+4*i}:{HA+28*n+4*i+3}] offset:{1024*i}")
    if RW:
        assert NW==7
        k(f"s_mul_i32 s59, s66, {(-2*114688)&0xffffffff:#x}\ns_add_u32 s59, s59, s71\ns_add_u32 s59, s59, {8*114688}\nv_add_u32 v99, s73, v7")
        regW(NA2); q.clear()
    wt=[0]
    def issueT(n):
        for _ in range(n):
            if wt[0]<2*NHS:
                wtload(k, HA, wt[0]); q.append(("T",wt[0])); wt[0]+=1
    k("s_barrier        ; B3")
    ts(k,4,False)
    eloads(k)
    uprep(k, 0)
    ts(k,5,False)
    if WARM&4: warm()
    for i in range(4):
        for j in range(4):
            if i==0: k(f"v_lshlrev_b32 v{24+2*j}, 16, v{CS+j}\nv_and_b32 v{25+2*j}, 0xffff0000, v{CS+j}")
            else:
                k(f"v_lshlrev_b32 v32, 16, v{CS+4*i+j}\nv_and_b32 v33, 0xffff0000, v{CS+4*i+j}")
                k(f"v_add_f32 v{24+2*j}, v{24+2*j}, v32\nv_add_f32 v{25+2*j}, v{25+2*j}, v33")
    for i in range(4): k(f"v_permlane32_swap_b32 v{24+i}, v{28+i}")
    for i in range(4): k(f"v_add_f32 v{24+i}, v{24+i}, v{28+i}")
    for i in range(2): k(f"v_permlane16_swap_b32 v{24+i}, v{26+i}")
    for i in range(2): k(f"v_add_f32 v{24+i}, v{24+i}, v{26+i}")
    for i in range(2): k(f"v_add_f32_dpp v{24+i}, v{24+i}, v{24+i} row_ror:8 row_mask:0xf bank_mask:0xf")
    k(f"""
    s_cmp_ge_u32 s52, 28
    s_cbranch_scc1 L_h4
    s_mov_b32 exec_lo, 0x00ff00ff
    s_mov_b32 exec_hi, 0x00ff00ff
    buffer_store_dwordx2 v[24:25], v13, s[4:7], s53 offen sc1
    s_mov_b64 exec, -1
    L_h4:
    """)
    issueW(0); issueW(2)
    if RW: regW(min(NB6,4))
    else: issueT(N1)
    k(f"""
    v_and_b32 v3, 255, v0
    v_lshrrev_b32 v4, 5, v3
    v_lshlrev_b32 v4, 4, v4
    v_and_b32 v5, 15, v3
    v_add_u32 v4, v4, v5
    v_bfe_u32 v5, v3, 4, 1
    v_mul_u32_u24 v5, 112, v5
    v_add_u32 v4, v4, v5
    v_min_u32 v4, 223, v4
    v_lshlrev_b32 v4, 2, v4
    v_add_u32 v110, {PART}, v4
    s_lshl_b32 s29, s65, 10
    s_add_u32 s29, s29, {PART}
    v_add_u32 v111, s29, v7
    v_cmp_le_u32 vcc, 28, v2
    v_mov_b32 v5, {1792*4-28*16}
    v_cndmask_b32 v4, 0, v5, vcc
    v_add_u32 v4, v4, v7
    v_cmp_gt_u32 vcc, 56, v2
    v_mov_b32 v5, 0x7fffff00
    v_cndmask_b32 v4, v5, v4, vcc
    s_mul_i32 s53, s62, 448
    s_mul_i32 s29, s65, {4*3584*4}
    s_add_u32 s53, s53, s29
    s_add_u32 s53, s53, {WS_CS}
    v_lshlrev_b32 v3, 4, v3
    v_add_u32 v3, {AP}, v3
    v_lshrrev_b32 v5, 4, v2                  ; row
    v_and_b32 v15, 15, v2
    v_lshlrev_b32 v12, 6, v15
    v_lshlrev_b32 v13, 4, v15
    v_lshl_add_u32 v6, v5, 12, v13
    s_lshl_b32 s29, s65, 8
    s_add_u32 s29, s29, {PART}
    v_add_u32 v13, s29, v13
    v_lshlrev_b32 v15, 5, v15
    v_and_b32 v1, 1, v5
    v_lshl_add_u32 v15, v1, 4, v15
    v_lshrrev_b32 v1, 1, v5
    v_lshl_add_u32 v15, v1, 9, v15
    s_lshl_b32 s29, s65, 10
    s_add_u32 s29, s29, {PART}
    v_add_u32 v15, s29, v15
    v_and_b32 v1, 7, v2
    v_lshlrev_b32 v14, 4, v1
    v_lshl_add_u32 v14, v5, 10, v14
    v_bfe_u32 v8, v2, 3, 1
    v_lshl_add_u32 v14, v8, 9, v14
    v_lshl_add_u32 v1, v1, 2, v5
    v_lshlrev_b32 v1, 4, v1
    s_lshl_b32 s29, s65, 9
    s_add_u32 s29, s29, {FS}
    v_add_u32 v1, s29, v1
    s_lshl_b32 s54, s62, 17
    s_lshl_b32 s29, s65, 15
    s_add_u32 s54, s54, s29
    s_add_u32 s54, s54, s70
    s_lshl_b32 s29, s61, 4
    s_add_u32 s29, s29, s62
    s_lshl_b32 s56, s29, 6
    s_add_u32 s56, s56, {WS_F4}              ; own F4
    s_lshl_b32 s55, s29, 10
    s_lshl_b32 s29, s65, 8
    s_add_u32 s55, s55, s29
    s_add_u32 s55, s55, {WS_SP}
    s_lshl_b32 s57, s61, 10
    s_add_u32 s57, s57, {WS_F4}              ; F4 row
    s_lshl_b32 s58, s61, 14
    s_lshl_b32 s29, s65, 7
    s_add_u32 s58, s58, s29
    s_add_u32 s58, s58, {WS_SP}
    v_lshlrev_b32 v5, {SP2}, v2
    s_mov_b32 s29, {WS_F2:#x}
    """)
    k(f"s_waitcnt vmcnt({min(63,len(q))})")
    if RW: regW(NB6)
    k("s_barrier        ; B6")
    PF1=E_("PF1",0)
    if not PF1:
        issueW(4)
        if not RW: issueT(N3)
    if NW==7:
        k("s_cmp_lg_u32 s66, 0\ns_cbranch_scc1 L_w6")
        q6=len(q); issueW1(6,0); del q[q6:]
        k("L_w6:")
    if RW: regW(5)
    if not E_("POLM",1):
        k("s_cmp_lg_u32 s3, 4\ns_cbranch_scc1 L_p2x")
        poll(k,"L_p2",5,4,29,48,SL2,SP2)
    k("s_barrier        ; B7")
    assert not (PF1 and NW==7)
    ts(k,7,False)
    S=24; Q=32; RB=[40,44]; T=52
    SH=E_("SH",3); HR=E_("HR",2); JS=E_("JS",0); CJ=E_("CJ",8); CK=E_("CK",12)
    hh=[0]
    def upH(n):
        while hh[0]<=min(n,15): issueH(hh[0]); hh[0]+=1
    def issueS():
        k(f"buffer_load_dwordx4 v[40:43], v6, s[4:7], s54 offen sc1\ns_add_u32 s54, s54, 16384\nbuffer_load_dwordx4 v[44:47], v6, s[4:7], s54 offen sc1")
        q.extend([("S",0),("S",1)])
    upH(SH-1)
    if JS<0: issueS()
    if PF1: issueW(4)
    def issueC():
        for p in range(4):
            k(f"buffer_load_dwordx4 v[{CS+4*p}:{CS+4*p+3}], v4, s[4:7], s53 offen sc1"); q.append(("C",p))
            if p<3: k(f"s_add_u32 s53, s53, {3584*4}")
    def vwait(f):
        n=max(idx for idx,x in enumerate(q) if f(x))
        k(f"s_waitcnt vmcnt({min(63,len(q)-1-n)})")
    def smath(r):
        vwait(lambda x: x==("S",r))
        for d in range(4):
            src=RB[r]+d
            if r==0:
                k(f"v_lshlrev_b32 v{S+2*d}, 16, v{src}\nv_and_b32 v{S+2*d+1}, 0xffff0000, v{src}")
                k(f"v_mul_f32 v{Q+2*d}, v{S+2*d}, v{S+2*d}\nv_mul_f32 v{Q+2*d+1}, v{S+2*d+1}, v{S+2*d+1}")
            else:
                t=T+2*(d&1)
                k(f"v_lshlrev_b32 v{t}, 16, v{src}\nv_and_b32 v{t+1}, 0xffff0000, v{src}")
                k(f"v_add_f32 v{S+2*d}, v{S+2*d}, v{t}\nv_add_f32 v{S+2*d+1}, v{S+2*d+1}, v{t+1}")
                k(f"v_fmac_f32 v{Q+2*d}, v{t}, v{t}\nv_fmac_f32 v{Q+2*d+1}, v{t+1}, v{t+1}")
    def sred():
        for i in range(8): k(f"v_permlane32_swap_b32 v{S+i}, v{Q+i}")
        for i in range(8): k(f"v_add_f32 v{S+i}, v{S+i}, v{Q+i}")
        for i in range(4): k(f"v_permlane16_swap_b32 v{S+i}, v{S+4+i}")
        for i in range(4): k(f"v_add_f32 v{S+i}, v{S+i}, v{S+4+i}")
        k(f"ds_write_b128 v15, v[{S}:{S+3}]\ns_waitcnt lgkmcnt(0)")
    if J0<0: smath(0)
    if J1<0: smath(1)
    if J2<0: sred()
    rest=2*NHS-wt[0]
    HJ=[int(x) for x in os.environ.get("HJ","").split(",") if x]
    HL=E_('HL',1)
    q0=list(q); h0=hh[0]; w0=wt[0]
    k('s_cmp_lg_u32 s66, 0\ns_cbranch_scc1 L_par1')
    for par,j in [(a,b) for a in range(2) for b in range(16)]:
        if j==0:
            q[:]=q0; hh[0]=h0; wt[0]=w0
            if par: k('s_branch L_parx\nL_par1:')
            if NW==7 and par==0:
                i6=max(i for i,x in enumerate(q) if x==('W',4))+1+(0 if RW else N3)
                q[i6:i6]=[('V',6)]*7
        vwait(lambda x: (x[0]=="W" and x[1]+par<=j) or (x[0]=="V" and x[1]<=j) or (x[0]=="H" and x[1]<=j) or (x[0]=="C" and j>=CK) or (x[0]=="P" and j>=JF) or (x[0]=="F" and j>=JQ) or (x[0]=="G" and j>=JR))
        k("s_barrier")
        if STAMP and j in HJ: ts(k,[1,2,4,5,7][HJ.index(j)],False)
        if j==JF:
            flag(k,56,48); q.append(("f",0))
        if j==JQ:
            k(f"v_xor_b32 v48, s60, v50\nv_cmp_ne_u32 vcc, 0, v48\ns_cbranch_vccz L_p4{par}x")
            poll(k,f"L_p4{par}",12,1,57,48,0)
            for i in range(4):
                k(f"buffer_load_dwordx4 v[{24+4*i}:{27+4*i}], v14, s[4:7], s58 offen sc1"); q.append(("G",i))
                if i<3: k("s_add_u32 s58, s58, 4096")
        if j==JP:
            k("buffer_load_dword v50, v12, s[4:7], s57 offen sc1"); q.append(("F",0))
        WF=E_('WF',1)
        if WF and j>=2 and (j+NW)%2==par and not RW: issueW1(j+NW-2,par)
        upH(min(j+NH-2+HL, SH-1+HR*(j+1)))
        if j==JS: issueS()
        if not WF and j>=2 and (j+NW)%2==par and not RW: issueW1(j+NW-2,par)
        if RW:
            nfree=len([b for b in range(7,16) if b%2==par and b-5<j])
            lim=36 if nfree==(5 if par else 4) else 7*nfree
            tgt=min(lim, int(TR*(j-TJ+1))) if j<15 else 36
            if 3<=j<=11 and (j+4)%2==par: k("s_waitcnt lgkmcnt(0)")
            if tgt>wt[0]: issueT(tgt-wt[0])
            if 2<=j and j+5<=15 and (j+5)%2==par: putW(j+5,par)
        if j==CJ: issueC()
        TJ2=E_("TJ2",11)
        if not RW and j>=TJ2: issueT(-(-rest//(16-TJ2)))
        if j==CK:
            assert CK>J2+1 and CK>CJ and JC>CK
            for i in range(8): k(f"v_add_f32 v{CS+i}, v{CS+i}, v{CS+8+i}")
            for i in range(4): k(f"v_add_f32 v{CS+i}, v{CS+i}, v{CS+4+i}")
            k(f"ds_write_b128 v111, v[{CS}:{CS+3}]\ns_waitcnt lgkmcnt(0)")
        if j==J0: smath(0)
        if j==J1: smath(1)
        if j==J2: sred()
        if j==J2+1:
            for p in range(4): k(f"ds_read_b128 v[{24+4*p}:{27+4*p}], v13 offset:{1024*p}")
            k("s_waitcnt lgkmcnt(2)")
            for i in range(4): k(f"v_add_f32 v{24+i}, v{24+i}, v{28+i}")
            k("s_waitcnt lgkmcnt(0)")
            for i in range(4): k(f"v_add_f32 v{32+i}, v{32+i}, v{36+i}")
            for i in range(4): k(f"v_add_f32 v{40+i}, v{24+i}, v{32+i}")
            k("s_mov_b64 exec, 0xffff\nbuffer_store_dwordx4 v[40:43], v7, s[4:7], s55 offen sc1\ns_mov_b64 exec, -1"); q.append(("P",0))
        if j==JC:
            for p in range(4): k(f"ds_read_b32 v{CS+p}, v110 offset:{1024*p}")
            k(f"s_waitcnt lgkmcnt(0)\nv_add_f32 v{CS}, v{CS}, v{CS+1}\nv_add_f32 v{CS+2}, v{CS+2}, v{CS+3}\nv_add_f32 v{CS}, v{CS}, v{CS+2}")
            k(f"""
            v_cvt_pk_bf16_f32 v9, v{CS}, v{CS}
            v_and_b32 v9, 0xffff0000, v9
            v_sub_f32 v8, v{CS}, v9
            v_cvt_pk_bf16_f32 v10, v8, v8
            v_and_b32 v10, 0xffff0000, v10
            v_sub_f32 v8, v8, v10
            v_cvt_pk_bf16_f32 v16, v9, v10
            v_cvt_pk_bf16_f32 v17, v8, 0
            v_mov_b32 v18, 0
            v_mov_b32 v19, 0
            ds_write_b128 v3, v[16:19]
            s_waitcnt lgkmcnt(0)
            """)
        if j==JR:
            for i in range(8): k(f"v_add_f32 v{24+i}, v{24+i}, v{32+i}")
            for i in range(4): k(f"v_add_f32 v{24+i}, v{24+i}, v{28+i}")
            k(f"""
            v_permlane32_swap_b32 v24, v26
            v_permlane32_swap_b32 v25, v27
            v_add_f32 v24, v24, v26
            v_add_f32 v25, v25, v27
            v_permlane16_swap_b32 v24, v25
            v_add_f32 v40, v24, v25
            v_mov_b32_dpp v41, v40 row_ror:8 row_mask:0xf bank_mask:0xf
            v_mul_f32 v40, 0x3b000000, v40
            v_mul_f32 v41, 0x3b000000, v41
            v_fma_f32 v41, -v40, v40, v41
            v_max_f32 v41, 0, v41
            v_cvt_pk_bf16_f32 v41, v41, v41
            v_and_b32 v41, 0xffff0000, v41
            v_add_f32 v41, 0x3727c5ac, v41
            v_cvt_pk_bf16_f32 v41, v41, v41
            v_and_b32 v41, 0xffff0000, v41
            v_sqrt_f32 v41, v41
            v_cvt_pk_bf16_f32 v44, -v40, -v40
            v_cvt_pk_bf16_f32 v41, v41, v41
            v_and_b32 v47, 0xffff0000, v41
            v_rcp_f32 v46, v47
            v_mov_b32 v45, v44
            v_mul_f32 v46, 0xbfb8aa3b, v46
            s_mov_b32 exec_lo, 0x00ff00ff
            s_mov_b32 exec_hi, 0x00ff00ff
            ds_write_b128 v1, v[44:47]
            s_mov_b64 exec, -1
            s_waitcnt lgkmcnt(0)
            """)
    k('L_parx:')
    assert hh[0]==16
    assert wt[0]==2*NHS
    ts(k,8,False)
    k(f"""
    v_add_u32 v6, {112*1024}, v7
    v_lshrrev_b32 v3, 2, v2
    v_lshlrev_b32 v3, 12, v3
    v_and_b32 v4, 3, v2
    v_lshl_add_u32 v3, v4, 4, v3
    v_add_u32 v4, {65536-1024}, v3
    s_and_b32 s29, s65, 1
    s_lshl_b32 s30, s64, 1
    s_add_u32 s29, s29, s30          ; d block32
    s_lshl_b32 s30, s63, 1
    s_add_u32 s30, s30, s66          ; l block32
    s_lshl_b32 s52, s29, 17
    s_lshl_b32 s53, s30, 6
    s_add_u32 s52, s52, s53
    s_add_u32 s52, s52, {WS_HT}      ; h soffset
    s_lshl_b32 s74, s30, 15
    s_lshl_b32 s53, s29, 6
    s_add_u32 s74, s74, s53
    s_lshl_b32 s53, s65, 11
    s_add_u32 s53, s53, {G2R}
    s_mov_b32 s8, s18
    s_mov_b32 s9, s19
    s_mov_b32 s10, {2048*512*2:#x}
    s_barrier        ; B8
    {TSI+' s[92:93]' if STAMP else ''}
    s_mov_b32 m0, s53
    s_nop 0
    buffer_load_dwordx4 v3, s[4:7], s52 offen sc1 lds
    buffer_load_dwordx4 v4, s[4:7], s52 offen offset:1024 sc1 lds
    v_lshrrev_b32 v3, 5, v2
    v_bfe_u32 v4, v2, 2, 2
    v_lshl_add_u32 v4, v3, 4, v4
    v_lshlrev_b32 v4, 6, v4
    v_bfe_u32 v5, v2, 4, 1
    v_lshl_add_u32 v4, v5, 5, v4
    v_and_b32 v5, 3, v2
    v_lshl_add_u32 v4, v5, 3, v4
    v_add_u32 v4, s53, v4
    v_and_b32 v5, 31, v2
    v_lshlrev_b32 v5, 10, v5
    v_lshl_add_u32 v5, v3, 5, v5
    s_lshl_b32 s29, s65, 14
    s_add_u32 s29, s29, {G2H}
    v_add_u32 v3, s29, v7
    s_lshl_b32 s29, s65, 12
    v_add_u32 v1, s29, v7
    """)
    if PW:
        f3addr(k,0)
        pollw(k,"L_p3h",0,2,29,(8 if PWO else 2) if PW==1 else 14,SL3H,False)
    else: k("s_barrier        ; B9")
    ts(k,9,False)
    if TL:
        g2tail(k); return
    A2=48
    free=[8+8*i for i in range(5)]
    slot={}; q=[]
    nxt=[0]
    ORD=list(range(NHS))
    if PW==1 and PWO: ORD=list(range(11,18))+list(range(4,11))+list(range(4))
    CHK=({7:4,14:2} if PWO else {4:4,11:8}) if PW==1 else {}
    cur=[0]
    def ldB():
        if nxt[0]>=NHS or not free: return False
        s=ORD[nxt[0]]
        b=free.pop(0); slot[s]=b
        if nxt[0] in CHK: pollw(k,f"L_p3h{nxt[0]}",0,2,29,CHK[nxt[0]],0,True)
        if PW:
            g=s>>2
            if g!=cur[0]:
                d=(g-cur[0])*4096
                k(f"s_add_u32 s68, s68, {d}" if d>0 else f"s_sub_u32 s68, s68, {-d}")
                cur[0]=g
            k(f"buffer_load_dwordx4 v[{b}:{b+3}], v7, s[4:7], s68 offen offset:{1024*(s&3)} sc1")
            k(f"buffer_load_dwordx4 v[{b+4}:{b+7}], v6, s[4:7], s68 offen offset:{1024*(s&3)} sc1")
        else: hgload(k, b, s, NHS)
        q.extend([(s,0),(s,1)]); nxt[0]+=1
        return True
    while ldB(): pass
    for n,s in enumerate(ORD):
        for lb in range(2):
            k(f"s_waitcnt vmcnt({len(q)-1-q.index((s,lb))})")
            for db in range(2):
                c=A2+16*(db+2*lb); a=HA+8*s+4*db; b=slot[s]+4*lb
                k(f"v_mfma_f32_32x32x16_bf16 v[{c}:{c+15}], v[{a}:{a+3}], v[{b}:{b+3}], {'0' if n==0 else f'v[{c}:{c+15}]'}")
        if E_("G2S",0) and n==E_("G2N",0): ts(k,2,False)
        if n>=1:
            free.append(slot[ORD[n-1]]); free.append(HA+8*ORD[n-1])
        ldB(); ldB()
        if JB and n==JB:
            assert nxt[0]==NHS and len(free)>=8
            ch=[free.pop(0) for _ in range(8)]
            k("s_barrier        ; B9b")
            for p in range(4):
                for j in range(4):
                    if p==3 and j==3: k("s_waitcnt lgkmcnt(14)")
                    r=ch[2*p+(j>>1)]+4*(j&1)
                    k(f"ds_read_b128 v[{r}:{r+3}], v1 offset:{G2M+p*16384+j*1024}")
        def addc(d,e):
            for j in range(8):
                x=ch[2*d+(j>>2)]+2*(j&3); y=ch[2*e+(j>>2)]+2*(j&3)
                k(f"v_pk_add_f32 v[{x}:{x+1}], v[{x}:{x+1}], v[{y}:{y+1}]")
        if JB and n==JB+2: k("s_waitcnt lgkmcnt(8)"); addc(0,1)
        if JB and n==JB+3: k("s_waitcnt lgkmcnt(0)"); addc(2,3); addc(0,2)
    if E_("G2S",0): ts(k,1,False)
    for w in range(4):
        if w<3: k(f"s_cmp_lg_u32 s65, {w}\ns_cbranch_scc1 L4_w{w}")
        for qd in range(4):
            if qd==w: continue
            for j in range(4):
                k(f"ds_write_b128 v3, v[{A2+16*qd+4*j}:{A2+16*qd+4*j+3}] offset:{qd*4096+j*1024}")
        if w:
            for j in range(16): k(f"v_mov_b32 v{A2+j}, v{A2+16*w+j}")
        if w<3: k(f"s_branch L4_red\nL4_w{w}:")
    k("L4_red:")
    HT=8; HF=16; P=112
    def addp(p):
        for j in range(8): k(f"v_pk_add_f32 v[{A2+2*j}:{A2+2*j+1}], v[{A2+2*j}:{A2+2*j+1}], v[{P+16*p+2*j}:{P+1+16*p+2*j}]")
    if JB:
        for j in range(8):
            x=ch[j>>2]+2*(j&3)
            k(f"v_pk_add_f32 v[{A2+2*j}:{A2+2*j+1}], v[{A2+2*j}:{A2+2*j+1}], v[{x}:{x+1}]")
        for j in range(4): k(f"ds_read_b64_tr_b16 v[{HT+2*j}:{HT+1+2*j}], v4 offset:{j*256}")
        for p in range(1,4):
            k(f"s_add_u32 s29, s65, {p}\ns_and_b32 s29, s29, 3\ns_lshl_b32 s29, s29, 14\ns_add_u32 s29, s29, {G2H}\nv_add_u32 v{39+p}, s29, v1")
        k("s_waitcnt lgkmcnt(0)\ns_barrier        ; B10")
        for p in range(3):
            for j in range(4): k(f"ds_read_b128 v[{P+16*p+4*j}:{P+3+16*p+4*j}], v{40+p} offset:{j*1024}")
        for j in range(8):
            k(f"v_and_b32 v{HF+1+2*j}, 0xffff0000, v{HT+j}\nv_lshlrev_b32 v{HF+2*j}, 16, v{HT+j}")
        for p in range(3):
            k(f"s_waitcnt lgkmcnt({4*(2-p)})"); addp(p)
    else:
        for j in range(4): k(f"ds_read_b64_tr_b16 v[{HT+2*j}:{HT+1+2*j}], v4 offset:{j*256}")
        k("s_waitcnt lgkmcnt(0)\ns_barrier        ; B10")
        for p in range(4):
            for j in range(4): k(f"ds_read_b128 v[{P+16*p+4*j}:{P+3+16*p+4*j}], v1 offset:{G2M+p*16384+j*1024}")
        for j in range(8):
            k(f"v_and_b32 v{HF+1+2*j}, 0xffff0000, v{HT+j}\nv_lshlrev_b32 v{HF+2*j}, 16, v{HT+j}")
        for p in range(1,4):
            k(f"s_add_u32 s29, s65, {p}\ns_and_b32 s29, s29, 3\ns_lshl_b32 s29, s29, 14\ns_add_u32 s29, s29, {G2H}\nv_add_u32 v3, s29, v1")
            k(f"s_waitcnt lgkmcnt(12)");
            for j in range(4): k(f"ds_read_b128 v[{P+16*(p+3)+4*j}:{P+3+16*(p+3)+4*j}], v3 offset:{j*1024}")
            addp(p-1)
        for p in range(3,7):
            k(f"s_waitcnt lgkmcnt({4*(6-p)})"); addp(p)
    for j in range(8): k(f"v_cvt_pk_bf16_f32 v{64+j}, v{A2+2*j}, v{A2+2*j+1}")
    for j in range(8): k(f"v_lshlrev_b32 v{A2+2*j}, 16, v{64+j}\nv_and_b32 v{A2+2*j+1}, 0xffff0000, v{64+j}")
    for j in range(8): k(f"v_pk_add_f32 v[{A2+2*j}:{A2+2*j+1}], v[{A2+2*j}:{A2+2*j+1}], v[{HF+2*j}:{HF+1+2*j}]")
    for j in range(8): k(f"v_cvt_pk_bf16_f32 v{64+j}, v{A2+2*j}, v{A2+2*j+1}")
    for jj in range(2):
        k(f"buffer_store_dwordx4 v[{64+4*jj}:{67+4*jj}], v5, s[8:11], s74 offen offset:{16*jj} {os.environ.get('OUTM','')}")
    ts(k,3,False)
    flush(k,[1,8,6,3],10,4)

def g2tail(k):
    A2=48; HF=16; P=112; T=TL
    k(f"""
    s_cmp_lt_u32 s65, 2
    s_cselect_b32 s23, {112*1024}, 0
    s_cselect_b32 s29, 0, {112*1024}
    s_cselect_b32 s30, 8192, 0
    s_cselect_b32 s31, 0, 8192
    v_add_u32 v6, s29, v7
    v_add_u32 v7, s23, v7
    v_add_u32 v0, s31, v3
    v_add_u32 v3, s30, v3
    """)
    LO=[(s,lb) for s in range(NHS-T) for lb in range(2)]+[(s,0) for s in range(NHS-T,NHS)]+[(s,1) for s in range(NHS-T,NHS)]
    free=[8+4*i for i in range(10)]; slot={}; nx=[0]; cur=[0]
    def ld():
        if nx[0]>=len(LO) or not free: return False
        s,lb=LO[nx[0]]; b=free.pop(0); slot[(s,lb)]=b
        if KF and s>=14: s+=3
        g=s>>2
        if g!=cur[0]:
            d=(g-cur[0])*4096
            k(f"s_add_u32 s68, s68, {d}" if d>0 else f"s_sub_u32 s68, s68, {-d}"); cur[0]=g
        k(f"buffer_load_dwordx4 v[{b}:{b+3}], v{7-lb}, s[4:7], s68 offen offset:{1024*(s&3)} sc1")
        nx[0]+=1
        return True
    def mf(s,lb,db):
        c=A2+16*(db+2*lb); a=HA+8*s+4*db; b=slot[(s,lb)]
        k(f"v_mfma_f32_32x32x16_bf16 v[{c}:{c+15}], v[{a}:{a+3}], v[{b}:{b+3}], {'0' if s==0 else f'v[{c}:{c+15}]'}")
    while ld(): pass
    for p in range(1,4):
        k(f"s_add_u32 s29, s65, {p}\ns_and_b32 s29, s29, 3\ns_lshl_b32 s29, s29, 14\ns_add_u32 s{40+p}, s29, {G2H}")
    k("s_lshl_b32 s40, s65, 14")
    wq=[(db,j) for db in range(2) for j in range(4)]
    def wr0(n):
        for _ in range(n):
            if wq:
                db,j=wq.pop(0); k(f"ds_write_b128 v3, v[{A2+16*db+4*j}:{A2+16*db+4*j+3}] offset:{db*4096+j*1024}")
    NL=len(LO); pend=[]
    for i,(s,lb) in enumerate(LO[:-1]):
        k(f"s_waitcnt vmcnt({nx[0]-1-i})")
        tail=i>NL-T
        mf(s,lb,0)
        if tail: wr0(2)
        mf(s,lb,1)
        if tail: wr0(2)
        free.extend(pend); pend=[slot[(s,lb)]]
        if lb==1: pend+= [HA+8*s, HA+8*s+4]
        ld(); ld()
        if JM and (s,lb)==(JM,1): k("s_barrier        ; B9b")
        if i==NL-T-1:
            assert nx[0]==NL and len(free)>=4
            HT=[free.pop(0),free.pop(0)]; AD=free.pop(0)
            for j in range(4): k(f"ds_read_b64_tr_b16 v[{HT[j>>1]+2*(j&1)}:{HT[j>>1]+1+2*(j&1)}], v4 offset:{j*256}")
            for p in range(4): k(f"v_add_u32 v{AD+p}, s{40+p}, v1")
            for _ in range(E_("XN",0)): k("s_nop 0")
    if E_("G2S",0): ts(k,1,False)
    used=set(range(HT[0],HT[0]+4))|set(range(HT[1],HT[1]+4))|set(range(AD,AD+4))
    PP=[x for x in range(112,256,16) if not (set(range(x,x+16))&used)]
    HF=[x for x in (8,24,32,16) if not (set(range(x,x+16))&used)]
    HF=HF[0] if HF else PP.pop()
    NPR=4 if JM else 7
    assert len(PP)>=NPR
    k("s_waitcnt vmcnt(0)\ns_bitcmp1_b32 s65, 0\ns_cbranch_scc1 L4_o1")
    for own in range(2):
        s,lb=LO[-1]; oth=1-own; C=A2+32+16*own; X=A2+32+16*oth
        w2=list(wq)
        mf(s,lb,oth); mf(s,lb,own)
        for db,j in w2: k(f"ds_write_b128 v3, v[{A2+16*db+4*j}:{A2+16*db+4*j+3}] offset:{db*4096+j*1024}")
        for j in range(4): k(f"ds_write_b128 v0, v[{X+4*j}:{X+4*j+3}] offset:{oth*4096+j*1024}")
        k("s_waitcnt lgkmcnt(0)\ns_barrier        ; B10")
        rd=[(AD,G2M)] if JM else [(1,G2M+p*16384) for p in range(4)]
        rd+=[(AD+p,0) for p in range(1,4)]
        def rdp(p):
            for j in range(4): k(f"ds_read_b128 v[{PP[p]+4*j}:{PP[p]+3+4*j}], v{rd[p][0]} offset:{rd[p][1]+j*1024}")
        for p in range(3): rdp(p)
        for j in range(8):
            t=HT[j>>2]+(j&3)
            k(f"v_and_b32 v{HF+1+2*j}, 0xffff0000, v{t}\nv_lshlrev_b32 v{HF+2*j}, 16, v{t}")
        for p in range(NPR):
            k(f"s_waitcnt lgkmcnt({4*min(2,NPR-1-p)})")
            if p+3<NPR: rdp(p+3)
            for j in range(8): k(f"v_pk_add_f32 v[{C+2*j}:{C+2*j+1}], v[{C+2*j}:{C+2*j+1}], v[{PP[p]+2*j}:{PP[p]+1+2*j}]")
        for jj in range(2):
            R=range(4*jj,4*jj+4)
            for j in R: k(f"v_cvt_pk_bf16_f32 v{A2+j}, v{C+2*j}, v{C+2*j+1}")
            for j in R: k(f"v_lshlrev_b32 v{C+2*j}, 16, v{A2+j}\nv_and_b32 v{C+2*j+1}, 0xffff0000, v{A2+j}")
            for j in R: k(f"v_pk_add_f32 v[{C+2*j}:{C+2*j+1}], v[{C+2*j}:{C+2*j+1}], v[{HF+2*j}:{HF+1+2*j}]")
            for j in R: k(f"v_cvt_pk_bf16_f32 v{A2+j}, v{C+2*j}, v{C+2*j+1}")
            k(f"buffer_store_dwordx4 v[{A2+4*jj}:{A2+3+4*jj}], v5, s[8:11], s74 offen offset:{16*jj}")
        if own==0: k("s_branch L4_e\nL4_o1:")
    k("L4_e:")
    ts(k,3,False)
    flush(k,[1,8,6,3],10,4)

if __name__=="__main__":
    out = sys.argv[1] if len(sys.argv)>1 else "m.s"
    finish(out, [gen_m()])
```
